```python
import torch

def _softmax(x, axis=-1):
    return torch.softmax(x, dim=axis)
def _gelu(x):
    return torch.nn.functional.gelu(x, approximate="tanh")
def _silu(x):
    return torch.nn.functional.silu(x)
def _sigmoid(x):
    return torch.sigmoid(x)
def _layernorm(x, axis=-1, eps=1e-5):
    m = x.mean(dim=axis, keepdim=True)
    v = x.var(dim=axis, keepdim=True, unbiased=False)
    return (x - m) / torch.sqrt(v + eps)
def _scatter_add(tgt, idx, src, axis=0):
    return tgt.clone().index_add_(axis, idx, src)
def _segment_sum(src, seg, n):
    out = torch.zeros((n,) + src.shape[1:], dtype=src.dtype)
    return out.index_add_(0, seg, src)
def _pad(x, pw):
    flat = tuple(v for pair in reversed(pw) for v in pair)
    return torch.nn.functional.pad(x, flat)

kernel_name = 'sequential_preLN__linear_kernel_hedgehog__geglu_ffn__prompt'

def setup_inputs():

    _w = (lambda a: (lambda t: t.to(torch.bfloat16) if t.is_floating_point() else t)(torch.as_tensor(a)))
    def _A_setup():
        B, S, D, H = 1, 2048, 640, 32
        Dh = D // H
        return {
            "x": _w((lambda *s: torch.randn(*s, dtype=torch.bfloat16) * 0.05)(B, S, D)),
            "wqkv": _w((lambda *s: torch.randn(*s, dtype=torch.bfloat16) * 0.2)(D, 3 * D)),
            "w_phi": _w((lambda *s: torch.randn(*s, dtype=torch.bfloat16) * 0.2)(H, Dh, Dh) * (Dh ** -0.5)),
            "wo": _w((lambda *s: torch.randn(*s, dtype=torch.bfloat16) * 0.05)(D, D)),
        }
    _A_in = _A_setup()

    def _B_setup():
        B, S, D, F = 1, 2048, 640, 1728
        return {
            "x": _w((lambda *s: torch.randn(*s, dtype=torch.bfloat16) * 0.05)(B, S, D)),
            "w_gate": _w((lambda *s: torch.randn(*s, dtype=torch.bfloat16) * 0.05)(D, F)),
            "w_up": _w((lambda *s: torch.randn(*s, dtype=torch.bfloat16) * 0.05)(D, F)),
            "w_down": _w((lambda *s: torch.randn(*s, dtype=torch.bfloat16) * 0.05)(F, D)),
        }
    _B_in = _B_setup()

    return {
        "A_x": _A_in["x"],
        "A_wqkv": _A_in["wqkv"],
        "A_w_phi": _A_in["w_phi"],
        "A_wo": _A_in["wo"],
        "B_x": _B_in["x"],
        "B_w_gate": _B_in["w_gate"],
        "B_w_up": _B_in["w_up"],
        "B_w_down": _B_in["w_down"],
    }

def reference(A_x, A_wqkv, A_w_phi, A_wo, B_x, B_w_gate, B_w_up, B_w_down):
    def _A_ref(x, wqkv, w_phi, wo):
        B, S, D = x.shape
        H = 32; Dh = D // H
        qkv = (lambda x, *d: x.permute(*d))((x @ wqkv).reshape(B, S, 3, H, Dh), 2, 0, 3, 1, 4)
        q, k, v = qkv[0], qkv[1], qkv[2]
        pq = torch.einsum("bhsd,hdf->bhsf", q, w_phi)
        pk = torch.einsum("bhsd,hdf->bhsf", k, w_phi)
        phi_q = torch.concatenate([_softmax(pq, axis=-1), _softmax(-pq, axis=-1)], axis=-1)
        phi_k = torch.concatenate([_softmax(pk, axis=-1), _softmax(-pk, axis=-1)], axis=-1)
        kv = torch.einsum("bhsf,bhsd->bhfd", phi_k, v)
        z  = torch.einsum("bhsf->bhf", phi_k)
        num = torch.einsum("bhqf,bhfd->bhqd", phi_q, kv)
        den = torch.einsum("bhqf,bhf->bhq", phi_q, z)[..., None] + 1e-6
        o = num / den
        return (lambda x, *d: x.permute(*d))(o, 0, 2, 1, 3).reshape(B, S, D) @ wo

    def _B_ref(x, w_gate, w_up, w_down):
        return (_gelu(x @ w_gate) * (x @ w_up)) @ w_down

    x = A_x
    h = x + _A_ref(_layernorm(x, axis=-1), A_wqkv, A_w_phi, A_wo)
    h2 = h + _B_ref(_layernorm(h, axis=-1), B_w_gate, B_w_up, B_w_down)
    return h2
```

```python
S, D, H, DH, F = 2048, 640, 32, 20, 1728

WS_KV   = 0x0
KV_HEAD = 3360
WS_PHIQ = 0x20000
WS_WOP  = 0x520000
WS_WGU  = 0x5F0000
WS_WD   = 0xA50000
WS_H    = 0xC70000
WS_STAT = 0xEF0000
WS_ACT  = 0xF00000
WS_END  = 0x1600000
WS_BYTES = 268435456

class Asm:
    def __init__(self):
        self.L = []
        self.uid = 0
    def __call__(self, s):
        for line in s.split("\n"):
            self.L.append(line)
    def label(self, base):
        self.uid += 1
        return f"L{base}_{self.uid}"
    def nop(self, n):
        while n > 0:
            k = min(n, 16)
            self(f"s_nop {k-1}")
            n -= k
    def text(self):
        return "\n".join(self.L) + "\n"

def vr(b, n=1):
    return f"v{b}" if n == 1 else f"v[{b}:{b+n-1}]"
def ar(b, n=1):
    return f"a{b}" if n == 1 else f"a[{b}:{b+n-1}]"
def sr(b, n=1):
    return f"s{b}" if n == 1 else f"s[{b}:{b+n-1}]"

def srd(a, dst, ptr, nbytes):
    a(f"s_mov_b32 s{dst}, s{ptr}")
    a(f"s_mov_b32 s{dst+1}, s{ptr+1}")
    a(f"s_mov_b32 s{dst+2}, 0x{nbytes:x}")
    a(f"s_mov_b32 s{dst+3}, 0x00020000")

def kernel_begin(a, name):
    a(f".globl {name}")
    a(".p2align 8")
    a(f".type {name},@function")
    a(f"{name}:")

def kernel_desc(a, name, vgpr, accum, sgpr=102):
    a(".p2align 6")
    a(f".amdhsa_kernel {name}")
    a(f"  .amdhsa_next_free_vgpr {vgpr}")
    a(f"  .amdhsa_next_free_sgpr {sgpr}")
    a(f"  .amdhsa_accum_offset {accum}")
    a("  .amdhsa_group_segment_fixed_size 0")
    a("  .amdhsa_kernarg_size 88")
    a("  .amdhsa_user_sgpr_count 2")
    a("  .amdhsa_user_sgpr_kernarg_segment_ptr 1")
    a("  .amdhsa_system_sgpr_workgroup_id_x 1")
    a(".end_amdhsa_kernel")

import os
STAMP = int(os.environ.get("STAMP", "0"))
WS_STAMPS = 0x1800000
def stamp(a, idx):
    if STAMP:
        a(f"s_memrealtime s[{80+2*idx}:{81+2*idx}]")
def stamp_init(a):
    if STAMP:
        for i in range(80, 100): a(f"s_mov_b32 s{i}, 0")
        stamp(a, 0)
def stamp_store(a, kidx, ws_ptr=24):
    if not STAMP: return
    stamp(a, 9)
    lb = a.label("nostamp")
    a("s_waitcnt lgkmcnt(0)")
    a("s_mov_b64 exec, -1")
    a("v_cmp_eq_u32 vcc, 0, v0")
    a("s_and_saveexec_b64 s[60:61], vcc")
    a(f"s_cbranch_execz {lb}")
    a(f"s_mov_b32 s60, s{ws_ptr}")
    a(f"s_mov_b32 s61, s{ws_ptr+1}")
    a(f"s_mov_b32 s62, 0x{WS_STAMPS+0x100000:x}")
    a(f"s_mov_b32 s63, 0x00020000")
    a(f"s_lshl_b32 s3, s2, 7")
    a(f"s_add_u32 s3, s3, {WS_STAMPS + kidx*512*128}")
    a("v_mov_b32 v1, s3")
    for i in range(10):
        a(f"v_mov_b32 v2, s{80+2*i}")
        a(f"v_mov_b32 v3, s{81+2*i}")
        a(f"buffer_store_dwordx2 v[2:3], v1, s[60:63], 0 offen offset:{8*i}")
        a("s_nop 1")
    a(f"{lb}:")
```

```python
from common import *

S_WAVE, S_XCD, S_SLOT = 26, 27, 28
SRD_WS, SRD_A, SRD_B, SRD_PHI, SRD_DBG = 32, 36, 40, 44, 48

def emit_pack_dma(a, srd_reg, nins_per_wave, pitch, s_off_reg, lds_base_expr_reg, v_off):
    lp = a.label("pdma")
    a(f"s_mov_b32 s60, {nins_per_wave}")
    a(f"{lp}:")
    a(f"s_mov_b32 m0, s{lds_base_expr_reg}")
    a(f"s_add_u32 s{lds_base_expr_reg}, s{lds_base_expr_reg}, 1024")
    a(f"buffer_load_dwordx4 v{v_off}, s[{srd_reg}:{srd_reg+3}], s{s_off_reg} offen lds")
    a(f"s_add_u32 s{s_off_reg}, s{s_off_reg}, {8*pitch}")
    a(f"s_sub_u32 s60, s60, 1")
    a(f"s_cmp_lg_u32 s60, 0")
    a(f"s_cbranch_scc1 {lp}")

def emit_pack(a):
    a(f"s_sub_u32 s52, s{S_SLOT}, 24")
    a(f"s_lshl_b32 s52, s52, 3")
    a(f"s_add_u32 s52, s52, s{S_XCD}")
    a("s_cmp_ge_u32 s52, 57")
    a("s_cbranch_scc1 Lp1_end")
    a(f"s_cmp_ge_u32 s{S_WAVE}, 4")
    a("s_cbranch_scc1 Lp1_exit")
    a("v_and_b32 v1, 63, v0")
    a("v_lshlrev_b32 v2, 4, v1")
    a("v_lshrrev_b32 v3, 3, v1")
    a("v_and_b32 v4, 7, v1")
    a("v_lshlrev_b32 v4, 4, v4")
    a("v_lshrrev_b32 v5, 4, v1")
    a("v_bfe_u32 v6, v1, 2, 2")
    a("v_and_b32 v7, 3, v1")
    a("s_cmp_lt_u32 s52, 27")
    a("s_cbranch_scc0 Lp1_pack_not_gu")
    srd(a, SRD_A, 14, D*F*2)
    srd(a, SRD_B, 16, D*F*2)
    a("v_mul_u32_u24 v8, 3456, v3")
    a("v_add_u32 v8, v8, v4")
    a(f"s_mul_i32 s53, s{S_WAVE}, {20*8*3456}")
    a("s_lshl_b32 s54, s52, 7")
    a("s_add_u32 s53, s53, s54")
    a("s_mov_b32 s55, s53")
    a(f"s_mul_i32 s56, s{S_WAVE}, {20*1024}")
    a(f"s_add_u32 s57, s56, 81920")
    emit_pack_dma(a, SRD_A, 20, 3456, 53, 56, 8)
    emit_pack_dma(a, SRD_B, 20, 3456, 55, 57, 8)
    a("v_and_b32 v9, 1, v5")
    a("v_mul_u32_u24 v9, 81920, v9")
    a("v_lshrrev_b32 v10, 1, v5")
    a("v_lshlrev_b32 v10, 3, v10")
    a("v_add_u32 v10, v10, v6")
    a("v_lshlrev_b32 v10, 7, v10")
    a("v_add_u32 v9, v9, v10")
    a("v_and_b32 v10, 1, v7")
    a("v_lshlrev_b32 v10, 4, v10")
    a("v_add_u32 v9, v9, v10")
    a("v_lshrrev_b32 v10, 1, v7")
    a("v_lshlrev_b32 v10, 3, v10")
    a("v_add_u32 v9, v9, v10")
    a(f"s_lshl_b32 s53, s{S_WAVE}, 5")
    a("v_add_u32 v9, s53, v9")
    for i in range(4): a(f"v_mov_b32 v{12+i}, 0x3f803f80")
    for i in range(16): a(f"v_mov_b32 v{16+i}, 0")
    a("s_lshl_b32 s53, s52, 2")
    a(f"s_add_u32 s53, s53, s{S_WAVE}")
    a(f"s_mul_i32 s53, s53, {41*1024}")
    a(f"s_add_u32 s53, s53, {WS_WGU}")
    a("s_waitcnt vmcnt(0)")
    a("s_barrier")
    lp = a.label("gu")
    a("s_mov_b32 s60, 10")
    a(f"{lp}:")
    for u in range(4):
        a(f"ds_read_b64_tr_b16 v[{32+4*u}:{33+4*u}], v9 offset:{u*2048}")
        a(f"ds_read_b64_tr_b16 v[{34+4*u}:{35+4*u}], v9 offset:{u*2048+512}")
    a("v_add_u32 v9, 8192, v9")
    for u in range(4):
        a(f"s_waitcnt lgkmcnt({6-2*u})")
        a(f"v_mfma_f32_32x32x16_bf16 v[16:31], v[12:15], v[{32+4*u}:{35+4*u}], v[16:31]")
        a(f"buffer_store_dwordx4 v[{32+4*u}:{35+4*u}], v2, s[{SRD_WS}:{SRD_WS+3}], s53 offen")
        a("s_add_u32 s53, s53, 1024")
    a("s_sub_u32 s60, s60, 1")
    a("s_cmp_lg_u32 s60, 0")
    a(f"s_cbranch_scc1 {lp}")
    a.nop(14)
    a("v_cvt_pk_bf16_f32 v32, v16, v16")
    a("v_lshlrev_b32 v33, 16, v32")
    a("v_sub_f32 v34, v16, v33")
    a("v_cvt_pk_bf16_f32 v36, v33, v34")
    a("v_cmp_gt_u32 vcc, 32, v1")
    a.nop(2)
    a("v_cndmask_b32 v36, 0, v36, vcc")
    a("v_mov_b32 v37, v36")
    a("v_mov_b32 v38, 0")
    a("v_mov_b32 v39, 0")
    a(f"buffer_store_dwordx4 v[36:39], v2, s[{SRD_WS}:{SRD_WS+3}], s53 offen")
    a("s_branch Lp1_end")
    a("Lp1_pack_not_gu:")
    a("s_cmp_lt_u32 s52, 47")
    a("s_cbranch_scc0 Lp1_pack_wo")
    srd(a, SRD_A, 18, F*D*2)
    a("s_sub_u32 s52, s52, 27")
    a("s_lshr_b32 s58, s52, 1")
    a("s_and_b32 s59, s52, 1")
    a("v_mul_u32_u24 v8, 1280, v3")
    a("v_add_u32 v8, v8, v4")
    a(f"s_mul_i32 s53, s59, {864*1280}")
    a(f"s_mul_i32 s54, s{S_WAVE}, {27*8*1280}")
    a("s_add_u32 s53, s53, s54")
    a("s_lshl_b32 s54, s58, 7")
    a("s_add_u32 s53, s53, s54")
    a(f"s_mul_i32 s56, s{S_WAVE}, {27*1024}")
    emit_pack_dma(a, SRD_A, 27, 1280, 53, 56, 8)
    a("v_lshlrev_b32 v9, 3, v5")
    a("v_add_u32 v9, v9, v6")
    a("v_lshlrev_b32 v9, 7, v9")
    a("v_lshlrev_b32 v10, 3, v7")
    a("v_add_u32 v9, v9, v10")
    a(f"s_lshl_b32 s53, s{S_WAVE}, 5")
    a("v_add_u32 v9, s53, v9")
    a("s_lshl_b32 s53, s58, 2")
    a(f"s_add_u32 s53, s53, s{S_WAVE}")
    a("s_mul_i32 s54, s53, 52429")
    a("s_lshr_b32 s54, s54, 18")
    a("s_mul_i32 s55, s54, 5")
    a("s_sub_u32 s55, s53, s55")
    a("s_mul_i32 s54, s54, 54")
    a("s_mul_i32 s56, s59, 27")
    a("s_add_u32 s54, s54, s56")
    a("s_mul_i32 s54, s54, 5")
    a("s_add_u32 s54, s54, s55")
    a("s_lshl_b32 s53, s54, 10")
    a(f"s_add_u32 s53, s53, {WS_WD}")
    a("s_waitcnt vmcnt(0)")
    a("s_barrier")
    lp = a.label("wd")
    a("s_mov_b32 s60, 9")
    a(f"{lp}:")
    for u in range(3):
        a(f"ds_read_b64_tr_b16 v[{32+4*u}:{33+4*u}], v9 offset:{u*4096}")
        a(f"ds_read_b64_tr_b16 v[{34+4*u}:{35+4*u}], v9 offset:{u*4096+512}")
    a("v_add_u32 v9, 12288, v9")
    for u in range(3):
        a(f"s_waitcnt lgkmcnt({4-2*u})")
        a(f"buffer_store_dwordx4 v[{32+4*u}:{35+4*u}], v2, s[{SRD_WS}:{SRD_WS+3}], s53 offen")
        a("s_add_u32 s53, s53, 5120")
    a("s_sub_u32 s60, s60, 1")
    a("s_cmp_lg_u32 s60, 0")
    a(f"s_cbranch_scc1 {lp}")
    a("s_branch Lp1_end")
    a("Lp1_pack_wo:")
    srd(a, SRD_A, 10, D*D*2)
    a("s_sub_u32 s58, s52, 47")
    a("v_mul_u32_u24 v8, 1280, v3")
    a("v_add_u32 v8, v8, v4")
    a(f"s_mul_i32 s53, s{S_WAVE}, {20*8*1280}")
    a("s_lshl_b32 s54, s58, 7")
    a("s_add_u32 s53, s53, s54")
    a(f"s_mul_i32 s56, s{S_WAVE}, {20*1024}")
    emit_pack_dma(a, SRD_A, 20, 1280, 53, 56, 8)
    a("v_and_b32 v10, 1, v5")
    a("v_lshlrev_b32 v10, 5, v10")
    a("v_lshlrev_b32 v11, 3, v7")
    a("v_add_u32 v10, v10, v11")
    a(f"s_and_b32 s53, s{S_WAVE}, 1")
    a("s_lshl_b32 s53, s53, 6")
    a(f"s_lshr_b32 s54, s{S_WAVE}, 1")
    a("s_mul_i32 s54, s54, 40960")
    a("s_add_u32 s53, s53, s54")
    a("v_add_u32 v10, s53, v10")
    a("v_lshrrev_b32 v11, 1, v5")
    a("v_lshlrev_b32 v9, 2, v11")
    a("v_add_u32 v9, v9, v6")
    a("v_lshlrev_b32 v9, 7, v9")
    a("v_add_u32 v9, v9, v10")
    a("v_mul_u32_u24 v11, 20, v11")
    a("v_add_u32 v11, v11, v6")
    a("v_add_u32 v11, 16, v11")
    a("v_lshlrev_b32 v11, 7, v11")
    a("v_add_u32 v11, v11, v10")
    a("s_lshl_b32 s53, s58, 1")
    a(f"s_and_b32 s54, s{S_WAVE}, 1")
    a("s_add_u32 s53, s53, s54")
    a("s_mul_i32 s54, s53, 52429")
    a("s_lshr_b32 s54, s54, 18")
    a("s_mul_i32 s55, s54, 5")
    a("s_sub_u32 s55, s53, s55")
    a("s_lshl_b32 s54, s54, 3")
    a(f"s_lshr_b32 s56, s{S_WAVE}, 1")
    a("s_lshl_b32 s56, s56, 2")
    a("s_add_u32 s54, s54, s56")
    a("s_mul_i32 s54, s54, 25")
    a("s_add_u32 s54, s54, s55")
    a("s_lshl_b32 s53, s54, 10")
    a(f"s_add_u32 s53, s53, {WS_WOP}")
    a("s_waitcnt vmcnt(0)")
    a("s_barrier")
    for Qi in range(4):
        for m in range(5):
            b = 32 + 4*m
            if m < 4:
                o = (4*Qi+m)*2560
                a(f"ds_read_b64_tr_b16 v[{b}:{b+1}], v9 offset:{o}")
                a(f"ds_read_b64_tr_b16 v[{b+2}:{b+3}], v9 offset:{o+1024}")
            else:
                o = Qi*10240
                a(f"ds_read_b64_tr_b16 v[{b}:{b+1}], v11 offset:{o}")
                a(f"ds_read_b64_tr_b16 v[{b+2}:{b+3}], v11 offset:{o+5120}")
        for m in range(5):
            b = 32 + 4*m
            a(f"s_waitcnt lgkmcnt({8-2*m})")
            a(f"buffer_store_dwordx4 v[{b}:{b+3}], v2, s[{SRD_WS}:{SRD_WS+3}], s53 offen")
            a("s_add_u32 s53, s53, 5120")
        a.nop(2)
    a("s_branch Lp1_end")

RING = 36864
RB0 = 16384
LDS_WPHI = 0
LDS_ZERO = 8192
LDS_CS   = 9216
LDS_PHI = 16384
PHI_P = 352
LDS_V = 61440
V_P = 224
LDS_KVO = 90112

V_XOFF = 2
V_WOFF = 6
V_XR0, V_XR1, V_WR = 11, 12, 13
V_ONES = 16
V_ACC = 20
V_CS = 100
V_SX = 120
V_SQ = 128
V_A0, V_A1 = 136, 176
V_B0, V_B1 = 216, 224
VT = 232

S_XOFF, S_WOFF, S_SLOTB, S_M0X, S_M0W, S_IT, S_INC = 52, 53, 54, 55, 56, 57, 58
S_ROLE, S_RB, S_HG, S_ZERO = 59, 61, 62, 63
S_L2E = 64

def acc(mt, T): return V_ACC + (mt*10 + T)*4

def emit_stage_loads(a):
    a(f"s_add_u32 m0, s66, s{S_M0X}")
    a("s_nop 0")
    for i in range(4):
        a(f"buffer_load_dwordx4 v{V_XOFF+i}, s[{SRD_A}:{SRD_A+3}], s{S_XOFF} offen offset:{i*1024} lds")
    a(f"s_add_u32 m0, s66, s{S_M0W}")
    a("s_nop 0")
    for j in range(4):
        a(f"buffer_load_dwordx4 v{V_WOFF+j}, s[{SRD_B}:{SRD_B+3}], s{S_WOFF} offen offset:{j*1024} lds")
    a(f"s_add_u32 m0, m0, 4096")
    a("s_nop 0")
    a(f"buffer_load_dwordx4 v{V_WOFF+4}, s[{SRD_B}:{SRD_B+3}], s{S_WOFF} offen lds")

def emit_advance_stage(a):
    a(f"s_add_u32 s{S_XOFF}, s{S_XOFF}, 128")
    a(f"s_add_u32 s{S_WOFF}, s{S_WOFF}, {64*3840}")
    a("s_add_u32 s67, s67, 1")
    a("s_cmp_ge_u32 s67, 10")
    a(f"s_cselect_b32 s{S_XOFF}, 0x7ff00000, s{S_XOFF}")
    a(f"s_cselect_b32 s{S_WOFF}, 0x7ff00000, s{S_WOFF}")
    a(f"s_add_u32 s66, s66, {RING}")
    a(f"s_cmp_ge_u32 s66, {RB0+4*RING}")
    a(f"s_cselect_b32 s66, {RB0}, s66")

def frag_reads(setA, setB, ks, vx):
    R = []
    for mt in range(2):
        R.append(f"ds_read_b128 v[{setB+4*mt}:{setB+4*mt+3}], v{vx} offset:{mt*2048}")
    for T in range(10):
        arr, t = divmod(T, 5)
        off = arr*10240 + ks*5120 + t*8
        R.append(f"ds_read_b64_tr_b16 v[{setA+4*T}:{setA+4*T+1}], v{V_WR} offset:{off}")
        R.append(f"ds_read_b64_tr_b16 v[{setA+4*T+2}:{setA+4*T+3}], v{V_WR} offset:{off+1280}")
    return R

def mf16(d, A, B, c=None):
    c = d if c is None else c
    return f"v_mfma_f32_16x16x32_bf16 v[{d}:{d+3}], v[{A}:{A+3}], v[{B}:{B+3}], v[{c}:{c+3}]"

import os
EXP = os.environ.get("EXP", "")
def emit_half(a, curA, curB, reads, cs_waves):
    if "noread" in EXP: reads = []
    M = []
    for T in range(10):
        for mt in range(2):
            M.append(mf16(acc(mt, T), curA+4*T, curB+4*mt))
        if T == 4:
            for mt in range(2):
                M.append(mf16(V_SX+4*mt, V_ONES, curB+4*mt))
    for mt in range(2):
        M.append(mf16(V_SQ+4*mt, curB+4*mt, curB+4*mt))
    ri = 0
    for k, m in enumerate(M):
        if "nomfma" not in EXP: a(m)
        for _ in range(2 if k < 6 else 1):
            if ri < len(reads):
                a(reads[ri]); ri += 1
    assert ri == len(reads)
    for wv in cs_waves:
        lb = a.label("cs")
        a(f"s_cmp_lg_u32 s{S_WAVE}, {wv}")
        a(f"s_cbranch_scc1 {lb}")
        arr = wv >> 1
        for t in range(5):
            a(mf16(V_CS+4*t, curA+4*(arr*5+t), V_ONES))
        a(f"{lb}:")

def emit_loader(a):
    srd(a, SRD_A, 4, S*D*2)
    srd(a, SRD_B, 6, D*3*D*2)
    srd(a, SRD_PHI, 8, H*DH*DH*2)
    srd(a, SRD_DBG, 22, 256)
    a("v_and_b32 v1, 63, v0")
    a(f"s_mov_b32 s{S_ZERO}, 0")
    lb_not = a.label("noticket")
    a(f"s_cmp_lg_u32 s{S_ROLE}, 0")
    a(f"s_cbranch_scc1 {lb_not}")
    a(f"s_cmp_lg_u32 s{S_WAVE}, 0")
    a(f"s_cbranch_scc1 {lb_not}")
    a(f"s_lshl_b32 s60, s{S_HG}, 2")
    a("v_mov_b32 v14, s60")
    a("v_mov_b32 v15, 1")
    a("s_mov_b64 exec, 1")
    a(f"buffer_atomic_add v15, v14, s[{SRD_DBG}:{SRD_DBG+3}], 0 offen sc0")
    a("s_mov_b64 exec, -1")
    a(f"{lb_not}:")
    a("v_lshrrev_b32 v14, 3, v1")
    a("v_and_b32 v32, 7, v1")
    a("v_xor_b32 v32, v32, v14")
    a("v_lshlrev_b32 v32, 4, v32")
    a("v_mul_u32_u24 v14, 1280, v14")
    a(f"v_add_u32 v{V_XOFF}, v14, v32")
    for i in range(1, 4):
        a(f"v_add_u32 v{V_XOFF+i}, {i*(10240-1024)}, v{V_XOFF}")
    a(f"s_lshl_b32 s60, s{S_RB}, 7")
    a(f"s_lshl_b32 s66, s{S_WAVE}, 5")
    a("s_add_u32 s60, s60, s66")
    a(f"s_mul_i32 s{S_XOFF}, s60, 1280")
    a(f"s_lshr_b32 s66, s{S_WAVE}, 1")
    a(f"s_and_b32 s67, s{S_WAVE}, 1")
    a(f"s_mul_i32 s68, s{S_HG}, 160")
    a(f"s_mul_i32 s69, s66, 1280")
    a("s_add_u32 s68, s68, s69")
    a("s_add_u32 s68, s68, 1280")
    a(f"s_mul_i32 s69, s{S_HG}, 320")
    a(f"s_mul_i32 s70, s66, 160")
    a("s_add_u32 s69, s69, s70")
    a(f"s_cmp_eq_u32 s{S_ROLE}, 0")
    a("s_cselect_b32 s68, s68, s69")
    a(f"s_mul_i32 s69, s67, {32*3840}")
    a(f"s_add_u32 s{S_WOFF}, s68, s69")
    a(f"s_lshl_b32 s{S_M0X}, s{S_WAVE}, 12")
    a(f"s_mul_i32 s{S_M0W}, s66, 10240")
    a(f"s_mul_i32 s69, s67, 5120")
    a(f"s_add_u32 s{S_M0W}, s{S_M0W}, s69")
    a(f"s_add_u32 s{S_M0W}, s{S_M0W}, 16384")
    for j in range(5):
        a(f"v_add_u32 v32, {64*j}, v1")
        a("v_mul_u32_u24 v33, 205, v32")
        a("v_lshrrev_b32 v33, 11, v33")
        a("v_mul_u32_u24 v34, 10, v33")
        a("v_sub_u32 v34, v32, v34")
        a("v_and_b32 v35, 0x13, v33")
        a("v_and_b32 v36, 4, v33")
        a("v_lshlrev_b32 v36, 1, v36")
        a("v_or_b32 v35, v35, v36")
        a("v_and_b32 v36, 8, v33")
        a("v_lshrrev_b32 v36, 1, v36")
        a("v_or_b32 v35, v35, v36")
        a("v_mul_u32_u24 v35, 3840, v35")
        a("v_lshlrev_b32 v34, 4, v34")
        a(f"v_add_u32 v{V_WOFF+j}, v35, v34")
        if 0 < j < 4:
            a(f"v_subrev_u32 v{V_WOFF+j}, {1024*j}, v{V_WOFF+j}")
    a(f"s_mov_b32 s66, {RB0}")
    a("s_mov_b32 s67, 0")
    emit_stage_loads(a)
    emit_advance_stage(a)
    a(f"s_mul_i32 s68, s{S_HG}, 3200")
    a(f"s_mul_i32 s69, s{S_HG}, 6400")
    a(f"s_cmp_eq_u32 s{S_ROLE}, 0")
    a("s_cselect_b32 s68, s68, s69")
    a(f"s_lshl_b32 s69, s{S_WAVE}, 11")
    a("s_add_u32 s68, s68, s69")
    a(f"s_add_u32 m0, s69, {LDS_WPHI}")
    a("v_lshlrev_b32 v14, 4, v1")
    a(f"buffer_load_dwordx4 v14, s[{SRD_PHI}:{SRD_PHI+3}], s68 offen lds")
    a(f"buffer_load_dwordx4 v14, s[{SRD_PHI}:{SRD_PHI+3}], s68 offen offset:1024 lds")
    for st in range(1, 4):
        emit_stage_loads(a)
        emit_advance_stage(a)
    lb_nz = a.label("nozero")
    a(f"s_cmp_lg_u32 s{S_ROLE}, 0")
    a(f"s_cbranch_scc1 {lb_nz}")
    a(f"s_cmp_lg_u32 s{S_WAVE}, 0")
    a(f"s_cbranch_scc1 {lb_nz}")
    a("s_waitcnt vmcnt(38)")
    a("v_readfirstlane_b32 s60, v15")
    a("s_nop 3")
    a("s_cmp_lg_u32 s60, 0")
    a(f"s_cbranch_scc1 {lb_nz}")
    a(f"s_mov_b32 s{S_ZERO}, 1")
    a("s_mov_b32 s72, s24\ns_mov_b32 s73, s25")
    a(f"s_add_u32 s74, s{S_HG}, 1")
    a(f"s_mul_i32 s74, s74, 13440")
    a("s_mov_b32 s75, 0x00020000")
    a(f"s_mul_i32 s60, s{S_HG}, 13440")
    a("v_lshlrev_b32 v32, 4, v1")
    for i in range(4): a(f"v_mov_b32 v{36+i}, 0")
    for i in range(14):
        a(f"buffer_store_dwordx4 v[36:39], v32, s[72:75], s60 offen sc1")
        a("s_add_u32 s60, s60, 1024")
    a("s_waitcnt vmcnt(43)")
    a("s_branch Lp1_ld_b0")
    a(f"{lb_nz}:")
    a("s_waitcnt vmcnt(29)")
    a("Lp1_ld_b0:")
    stamp(a, 2)
    a("s_barrier")
    for i in range(10):
        if i <= 6: n = 18
        elif i == 7: n = 9
        else: n = 0
        if i == 0:
            lbz = a.label("z0"); lbz2 = a.label("z0b")
            a(f"s_cmp_eq_u32 s{S_ZERO}, 1")
            a(f"s_cbranch_scc1 {lbz}")
            a(f"s_waitcnt vmcnt({n})")
            a(f"s_branch {lbz2}")
            a(f"{lbz}:")
            a(f"s_waitcnt vmcnt({n+14})")
            a(f"{lbz2}:")
        elif i == 1:
            lbz = a.label("z1"); lbz2 = a.label("z1b")
            a(f"s_cmp_eq_u32 s{S_ZERO}, 1")
            a(f"s_cbranch_scc1 {lbz}")
            a(f"s_waitcnt vmcnt({n})")
            a(f"s_branch {lbz2}")
            a(f"{lbz}:")
            a(f"s_waitcnt vmcnt({n+14})")
            a(f"{lbz2}:")
        elif i < 9:
            a(f"s_waitcnt vmcnt({n})")
        a("s_barrier")
        if i + 4 < 10 and "noload" not in EXP:
            emit_stage_loads(a)
            emit_advance_stage(a)
        if i == 2:
            lb_f = a.label("noflag")
            a(f"s_cmp_lg_u32 s{S_ZERO}, 1")
            a(f"s_cbranch_scc1 {lb_f}")
            a(f"s_lshl_b32 s60, s{S_HG}, 2")
            a("s_add_u32 s60, s60, 32")
            a("v_mov_b32 v14, s60")
            a("v_mov_b32 v15, 1")
            a("s_mov_b64 exec, 1")
            a(f"buffer_store_dword v15, v14, s[{SRD_DBG}:{SRD_DBG+3}], 0 offen sc1")
            a("s_mov_b64 exec, -1")
            a(f"{lb_f}:")
    a("s_branch Lp1_exit")

def emit_main(a):
    srd(a, SRD_DBG, 22, 256)
    a("v_and_b32 v1, 63, v0")
    a(f"s_lshl_b32 s{S_M0X}, s{S_WAVE}, 12")
    a("v_and_b32 v232, 15, v1")
    a("v_lshrrev_b32 v233, 4, v1")
    a("v_and_b32 v234, 7, v232")
    a("v_xor_b32 v234, v234, v233")
    a("v_lshlrev_b32 v234, 4, v234")
    a("v_lshlrev_b32 v235, 7, v232")
    a("v_add_u32 v234, v234, v235")
    a(f"v_add_u32 v234, {RB0}, v234")
    a(f"v_add_u32 v{V_XR0}, s{S_M0X}, v234")
    a(f"v_xor_b32 v{V_XR1}, 64, v{V_XR0}")
    a("v_bfe_u32 v234, v1, 2, 2")
    a("v_and_b32 v235, 1, v233")
    a("v_lshlrev_b32 v235, 2, v235")
    a("v_add_u32 v234, v234, v235")
    a("v_lshrrev_b32 v235, 1, v233")
    a("v_lshlrev_b32 v235, 4, v235")
    a("v_add_u32 v234, v234, v235")
    a("v_mul_u32_u24 v234, 160, v234")
    a("v_and_b32 v235, 3, v1")
    a("v_mul_u32_u24 v235, 40, v235")
    a("v_add_u32 v234, v234, v235")
    a(f"v_add_u32 v{V_WR}, {RB0+16384}, v234")
    for i in range(4): a(f"v_mov_b32 v{V_ONES+i}, 0x3f803f80")
    for r in range(V_ACC, V_SQ+8): a(f"v_mov_b32 v{r}, 0")
    a("v_lshlrev_b32 v232, 2, v0")
    a("v_mov_b32 v233, 0")
    a(f"ds_write_b32 v232, v233 offset:{LDS_ZERO}")
    a(f"s_mov_b32 s{S_IT}, 0")
    a(f"s_mov_b32 s{S_SLOTB}, 0")
    a(f"s_mov_b32 s76, {RING}")
    a(f"s_mov_b32 s77, {(-3*RING) & 0xffffffff}")
    a("s_waitcnt lgkmcnt(0)")
    stamp(a, 2)
    a("s_barrier")
    stamp(a, 3)
    for r in frag_reads(V_A0, V_B0, 0, V_XR0): a(r)
    a("s_waitcnt lgkmcnt(0)")
    lp = a.label("main")
    a(f"{lp}:")
    emit_half(a, V_A0, V_B0, frag_reads(V_A1, V_B1, 1, V_XR1), [0, 2])
    a(f"s_add_u32 s{S_SLOTB}, s{S_SLOTB}, {RING}")
    a(f"s_cmp_ge_u32 s{S_SLOTB}, {4*RING}")
    a(f"s_cselect_b32 s{S_INC}, s77, s76")
    a(f"s_cselect_b32 s{S_SLOTB}, 0, s{S_SLOTB}")
    a(f"v_add_u32 v{V_XR0}, s{S_INC}, v{V_XR0}")
    a(f"v_add_u32 v{V_XR1}, s{S_INC}, v{V_XR1}")
    a(f"v_add_u32 v{V_WR}, s{S_INC}, v{V_WR}")
    a("s_waitcnt lgkmcnt(0)")
    a("s_barrier")
    emit_half(a, V_A1, V_B1, frag_reads(V_A0, V_B0, 0, V_XR0), [1, 3])
    a("s_waitcnt lgkmcnt(0)")
    a(f"s_add_u32 s{S_IT}, s{S_IT}, 1")
    a(f"s_cmp_lt_u32 s{S_IT}, 10")
    a(f"s_cbranch_scc1 {lp}")

def emit_epi_common(a):
    a.nop(8)
    a("v_and_b32 v232, 15, v1")
    a("v_lshrrev_b32 v233, 4, v1")
    a("v_lshlrev_b32 v234, 4, v233")
    a(f"s_mul_i32 s60, s{S_WAVE}, 320")
    a(f"v_add_u32 v234, s60, v234")
    a("v_cmp_eq_u32 vcc, 0, v232")
    a("s_and_saveexec_b64 s[68:69], vcc")
    for t in range(5):
        a(f"ds_write_b128 v234, v[{V_CS+4*t}:{V_CS+4*t+3}] offset:{LDS_CS+64*t}")
    a("s_mov_b64 exec, s[68:69]")
    a("v_and_b32 v234, 3, v1")
    a("v_cmp_eq_u32 s[68:69], 1, v234")
    a("v_cmp_eq_u32 s[70:71], 2, v234")
    a("v_cmp_eq_u32 s[72:73], 3, v234")
    a("v_lshrrev_b32 v235, 2, v232")
    a("v_lshlrev_b32 v235, 4, v235")
    a("v_add_u32 v235, v235, v232")
    a("v_lshlrev_b32 v235, 2, v235")
    for mt in range(2):
        q = V_SQ+4*mt
        a(f"v_cndmask_b32 v{236+mt}, v{q}, v{q+1}, s[68:69]")
        a(f"v_cndmask_b32 v{236+mt}, v{236+mt}, v{q+2}, s[70:71]")
        a(f"v_cndmask_b32 v{236+mt}, v{236+mt}, v{q+3}, s[72:73]")
    for mt in range(2):
        a(f"ds_bpermute_b32 v{238+mt}, v235, v{236+mt}")
    a("s_waitcnt lgkmcnt(0)")
    a("s_barrier")
    a("v_lshlrev_b32 v234, 4, v233")
    for T in range(10):
        arr, t = divmod(T, 5)
        a(f"ds_read_b128 v[{V_A0+4*T}:{V_A0+4*T+3}], v234 offset:{LDS_CS+(2*arr)*320+64*t}")
        a(f"ds_read_b128 v[{V_A1+4*T}:{V_A1+4*T+3}], v234 offset:{LDS_CS+(2*arr+1)*320+64*t}")
    a(f"s_mov_b32 s60, 0x3acccccd")
    for mt in range(2):
        a(f"v_mul_f32 v{236+mt}, s60, v{V_SX+4*mt}")
        a(f"v_mul_f32 v{238+mt}, s60, v{238+mt}")
        a(f"v_fma_f32 v{238+mt}, -v{236+mt}, v{236+mt}, v{238+mt}")
        a(f"v_max_f32 v{238+mt}, 0, v{238+mt}")
        a(f"v_add_f32 v{238+mt}, 0x3727c5ac, v{238+mt}")
        a(f"v_rsq_f32 v{240+2*mt}, v{238+mt}")
        a.nop(1)
        a(f"v_mul_f32 v{244+2*mt}, v{236+mt}, v{240+2*mt}")
        a(f"v_sub_f32 v{244+2*mt}, 0, v{244+2*mt}")
    a("s_waitcnt lgkmcnt(0)")
    for i in range(20):
        a(f"v_pk_add_f32 v[{V_A0+2*i}:{V_A0+2*i+1}], v[{V_A0+2*i}:{V_A0+2*i+1}], v[{V_A1+2*i}:{V_A1+2*i+1}]")
    for mt in range(2):
        for i in range(20):
            r = acc(mt, 0) + 2*i
            t = V_A1 + 2*i
            a(f"v_pk_mul_f32 v[{t}:{t+1}], v[{V_A0+2*i}:{V_A0+2*i+1}], v[{244+2*mt}:{245+2*mt}] op_sel_hi:[1,0]")
            a(f"v_pk_fma_f32 v[{r}:{r+1}], v[{r}:{r+1}], v[{240+2*mt}:{241+2*mt}], v[{t}:{t+1}] op_sel_hi:[1,0,1]")

def emit_softmax(a, P, E, OUT, T0):
    mx, mn = T0, T0+2
    a(f"v_max3_f32 v{mx}, v{P}, v{P+1}, v{P+2}")
    a(f"v_min3_f32 v{mn}, v{P}, v{P+1}, v{P+2}")
    for i in range(3, 19, 2):
        a(f"v_max3_f32 v{mx}, v{mx}, v{P+i}, v{P+i+1}")
        a(f"v_min3_f32 v{mn}, v{mn}, v{P+i}, v{P+i+1}")
    a(f"v_max_f32 v{mx}, v{mx}, v{P+19}")
    a(f"v_min_f32 v{mn}, v{mn}, v{P+19}")
    a(f"v_mul_f32 v{mx}, s{S_L2E+1}, v{mx}")
    a(f"v_mul_f32 v{mn}, s{S_L2E}, v{mn}")
    for i in range(10):
        a(f"v_pk_fma_f32 v[{E+2*i}:{E+2*i+1}], v[{P+2*i}:{P+2*i+1}], s[70:71], v[{mx}:{mx+1}] op_sel_hi:[1,1,0]")
        a(f"v_pk_fma_f32 v[{P+2*i}:{P+2*i+1}], v[{P+2*i}:{P+2*i+1}], s[70:71], v[{mn}:{mn+1}] op_sel_hi:[1,1,0] neg_lo:[1,0,0] neg_hi:[1,0,0]")
    for i in range(20):
        a(f"v_exp_f32 v{E+i}, v{E+i}")
        a(f"v_exp_f32 v{P+i}, v{P+i}")
    a.nop(1)
    sp, sm = T0, T0+2
    a(f"v_pk_add_f32 v[{sp}:{sp+1}], v[{E}:{E+1}], v[{E+2}:{E+3}]")
    a(f"v_pk_add_f32 v[{sm}:{sm+1}], v[{P}:{P+1}], v[{P+2}:{P+3}]")
    for i in range(2, 10):
        a(f"v_pk_add_f32 v[{sp}:{sp+1}], v[{sp}:{sp+1}], v[{E+2*i}:{E+2*i+1}]")
        a(f"v_pk_add_f32 v[{sm}:{sm+1}], v[{sm}:{sm+1}], v[{P+2*i}:{P+2*i+1}]")
    a(f"v_add_f32 v{sp}, v{sp}, v{sp+1}")
    a(f"v_add_f32 v{sm}, v{sm}, v{sm+1}")
    a(f"v_rcp_f32 v{sp}, v{sp}")
    a(f"v_rcp_f32 v{sm}, v{sm}")
    a.nop(1)
    for i in range(10):
        a(f"v_pk_mul_f32 v[{E+2*i}:{E+2*i+1}], v[{E+2*i}:{E+2*i+1}], v[{sp}:{sp+1}] op_sel_hi:[1,0]")
        a(f"v_pk_mul_f32 v[{P+2*i}:{P+2*i+1}], v[{P+2*i}:{P+2*i+1}], v[{sm}:{sm+1}] op_sel_hi:[1,0]")
    for i in range(10):
        a(f"v_cvt_pk_bf16_f32 v{OUT+i}, v{E+2*i}, v{E+2*i+1}")
        a(f"v_cvt_pk_bf16_f32 v{OUT+10+i}, v{P+2*i}, v{P+2*i+1}")

def mf16k16(d, A, B):
    return f"v_mfma_f32_16x16x16_bf16 v[{d}:{d+3}], v[{A}:{A+1}], v[{B}:{B+1}], v[{d}:{d+3}]"

def emit_phi_frags(a, dst, vaddr):
    for t in range(5):
        b = dst + 10*t
        for kk in range(2):
            for q in range(2):
                a(f"ds_read_b64_tr_b16 v[{b+4*kk+2*q}:{b+4*kk+2*q+1}], v{vaddr} offset:{(8*kk+4*q)*40+8*t}")
        a(f"ds_read_b64_tr_b16 v[{b+8}:{b+9}], v{vaddr} offset:{16*40+8*t}")

def emit_phi_mfma(a, PF, KB, P):
    for t in range(5):
        b = PF + 10*t
        d = P + 4*t
        a(f"v_mfma_f32_16x16x32_bf16 v[{d}:{d+3}], v[{b}:{b+3}], v[{KB}:{KB+3}], 0")
    for t in range(5):
        b = PF + 10*t
        d = P + 4*t
        a(f"v_mfma_f32_16x16x32_bf16 v[{d}:{d+3}], v[{b+4}:{b+7}], v[{KB+4}:{KB+7}], v[{d}:{d+3}]")
    for t in range(5):
        b = PF + 10*t
        d = P + 4*t
        a(mf16k16(d, b+8, KB+8))

def emit_phi_addr(a, dst, hh):
    a("v_lshrrev_b32 v232, 4, v1")
    a("v_and_b32 v233, 3, v1")
    a("v_bfe_u32 v234, v1, 2, 2")
    a("v_mul_u32_u24 v234, 40, v234")
    a("v_mul_u32_u24 v235, 800, v232")
    a(f"v_add_u32 v235, {LDS_WPHI+hh*3200}, v235")
    a("v_cmp_eq_u32 vcc, v232, v233")
    a(f"v_mov_b32 v236, {LDS_ZERO}")
    a.nop(1)
    a("v_cndmask_b32 v235, v236, v235, vcc")
    a(f"v_add_u32 v{dst}, v235, v234")

def emit_consts(a):
    a(f"s_mov_b32 s{S_L2E}, 0x3fb8aa3b")
    a(f"s_mov_b32 s{S_L2E+1}, 0xbfb8aa3b")
    a("s_mov_b32 s70, 0x3fb8aa3b")
    a("s_mov_b32 s71, 0x3fb8aa3b")

def emit_epi_kv(a):
    emit_consts(a)
    PF = V_A0
    KB = 186
    P = 100
    E = 206
    OUT = V_ACC
    emit_phi_addr(a, 14, 0)
    emit_phi_frags(a, PF, 14)
    for mt in range(2):
        for t in range(5):
            r = acc(mt, t)
            a(f"v_cvt_pk_bf16_f32 v{KB+10*mt+2*t}, v{r}, v{r+1}")
            a(f"v_cvt_pk_bf16_f32 v{KB+10*mt+2*t+1}, v{r+2}, v{r+3}")
    a("v_and_b32 v232, 15, v1")
    a("v_lshrrev_b32 v233, 4, v1")
    a(f"s_lshl_b32 s60, s{S_WAVE}, 5")
    a("v_add_u32 v232, s60, v232")
    a(f"v_mul_u32_u24 v234, {PHI_P}, v232")
    a("v_mul_u32_u24 v235, 80, v233")
    a("v_add_u32 v248, v234, v235")
    a(f"v_mul_u32_u24 v234, {V_P}, v232")
    a("v_mul_u32_u24 v235, 48, v233")
    a("v_add_u32 v249, v234, v235")
    a(f"v_add_u32 v249, {LDS_V}, v249")
    for mt in range(2):
        vb = 226
        vb = 120
        for t in range(5):
            r = acc(mt, 5+t)
            a(f"v_cvt_pk_bf16_f32 v{vb+2*t}, v{r}, v{r+1}")
            a(f"v_cvt_pk_bf16_f32 v{vb+2*t+1}, v{r+2}, v{r+3}")
        a(f"v_mov_b32 v{vb+10}, 0x3f80")
        a(f"v_mov_b32 v{vb+11}, 0")
        for i in range(3):
            a(f"ds_write_b128 v249, v[{vb+4*i}:{vb+4*i+3}] offset:{mt*16*V_P+16*i}")
        a.nop(2)
    a("s_waitcnt lgkmcnt(0)")
    for mt in range(2):
        emit_phi_mfma(a, PF, KB+10*mt, P)
        a.nop(8)
        o = acc(mt, 0)
        emit_softmax(a, P, E, o, 250)
        for i in range(5):
            a(f"ds_write_b128 v248, v[{o+4*i}:{o+4*i+3}] offset:{LDS_PHI+mt*16*PHI_P+16*i}")
    a("s_waitcnt lgkmcnt(0)")
    a("s_barrier")
    a("v_lshrrev_b32 v232, 4, v1")
    a("v_lshlrev_b32 v232, 2, v232")
    a("v_bfe_u32 v233, v1, 2, 2")
    a("v_add_u32 v232, v232, v233")
    a("v_and_b32 v233, 3, v1")
    a("v_lshlrev_b32 v233, 3, v233")
    a(f"v_mul_u32_u24 v234, {PHI_P}, v232")
    a("v_add_u32 v234, v234, v233")
    a(f"s_mul_i32 s60, s{S_WAVE}, 80")
    a("v_add_u32 v234, s60, v234")
    a(f"v_mul_u32_u24 v235, {V_P}, v232")
    a("v_add_u32 v235, v235, v233")
    a(f"s_mul_i32 s60, s{S_WAVE}, 48")
    a("v_add_u32 v235, s60, v235")
    a(f"v_add_u32 v235, {LDS_V}, v235")
    KD = 100
    for i in range(24): a(f"v_mov_b32 v{KD+i}, 0")
    FA, FB = 136, 184
    for s in range(4):
        for ft in range(3):
            for q in range(2):
                a(f"ds_read_b64_tr_b16 v[{FA+12*s+4*ft+2*q}:{FA+12*s+4*ft+2*q+1}], v234 offset:{LDS_PHI+(32*s+16*q)*PHI_P+32*ft}")
        for dt in range(2):
            for q in range(2):
                a(f"ds_read_b64_tr_b16 v[{FB+8*s+4*dt+2*q}:{FB+8*s+4*dt+2*q+1}], v235 offset:{(32*s+16*q)*V_P+32*dt}")
    for s in range(4):
        if s == 0: a("s_waitcnt lgkmcnt(0)")
        for ft in range(3):
            for dt in range(2):
                a(mf16(KD+4*(ft*2+dt), FA+12*s+4*ft, FB+8*s+4*dt))
    a.nop(8)
    a("v_and_b32 v232, 15, v1")
    a("v_lshrrev_b32 v233, 4, v1")
    a("v_and_b32 v234, 1, v233")
    a("v_lshrrev_b32 v235, 1, v233")
    a("v_lshlrev_b32 v236, 1, v234")
    a("v_add_u32 v236, v236, v235")
    a("v_mul_u32_u24 v236, 336, v236")
    a("v_lshlrev_b32 v237, 4, v232")
    a("v_add_u32 v236, v236, v237")
    a(f"s_mul_i32 s60, s{S_WAVE}, 3360")
    a(f"s_add_u32 s61, s60, {LDS_KVO}")
    a("v_add_u32 v236, s61, v236")
    a("v_mul_u32_u24 v238, 336, v234")
    a("v_add_u32 v238, v238, v237")
    a("v_add_u32 v238, s61, v238")
    a("v_cmp_gt_u32 s[68:69], 5, v232")
    a("v_cmp_eq_u32 s[70:71], 0, v235")
    a("s_and_b64 s[72:73], s[68:69], s[70:71]")
    for ft in range(2):
        a(f"ds_write_b128 v236, v[{KD+4*(ft*2)}:{KD+4*(ft*2)+3}] offset:{ft*4*336}")
    a("s_mov_b64 exec, s[68:69]")
    for ft in range(2):
        a(f"ds_write_b128 v236, v[{KD+4*(ft*2+1)}:{KD+4*(ft*2+1)+3}] offset:{ft*4*336+256}")
    a("s_mov_b64 exec, s[70:71]")
    a(f"ds_write_b128 v238, v[{KD+16}:{KD+19}] offset:{8*336}")
    a("s_mov_b64 exec, s[72:73]")
    a(f"ds_write_b128 v238, v[{KD+20}:{KD+23}] offset:{8*336+256}")
    a("s_mov_b64 exec, -1")
    a("v_lshlrev_b32 v232, 2, v1")
    a("v_add_u32 v233, s61, v232")
    a("s_waitcnt lgkmcnt(0)")
    for i in range(14):
        a(f"ds_read_b32 v{136+i}, v233 offset:{256*i}")
    stamp(a, 6)
    a(f"s_lshl_b32 s68, s{S_HG}, 2")
    a("s_add_u32 s68, s68, 32")
    a("v_mov_b32 v234, s68")
    lp = a.label("poll")
    a(f"{lp}:")
    a(f"buffer_load_dword v235, v234, s[{SRD_DBG}:{SRD_DBG+3}], 0 offen sc1")
    a("s_waitcnt vmcnt(0)")
    a("v_readfirstlane_b32 s69, v235")
    a("s_nop 3")
    a("s_cmp_eq_u32 s69, 0")
    a(f"s_cbranch_scc1 {lp}")
    stamp(a, 7)
    a(f"s_mul_i32 s68, s{S_HG}, 13440")
    a("s_add_u32 s68, s68, s60")
    a("s_waitcnt lgkmcnt(0)")
    for i in range(13):
        a(f"buffer_atomic_add_f32 v{136+i}, v232, s[{SRD_WS}:{SRD_WS+3}], s68 offen offset:{256*i}")
    a("s_mov_b64 exec, 0xff")
    a(f"buffer_atomic_add_f32 v{136+13}, v232, s[{SRD_WS}:{SRD_WS+3}], s68 offen offset:{256*13}")
    a("s_mov_b64 exec, -1")
    a("s_branch Lp1_end")

def emit_epi_q(a):
    emit_consts(a)
    PF = V_A0
    KB = 186
    P = 100
    E = 206
    a("v_and_b32 v232, 15, v1")
    a("v_lshrrev_b32 v233, 4, v1")
    a("v_mul_u32_u24 v233, 2560, v233")
    a("v_lshlrev_b32 v232, 4, v232")
    a("v_add_u32 v248, v232, v233")
    a(f"s_lshl_b32 s60, s{S_RB}, 2")
    a(f"s_add_u32 s60, s60, s{S_WAVE}")
    a("s_lshl_b32 s60, s60, 5")
    a(f"s_lshl_b32 s68, s{S_HG}, 3")
    a("s_add_u32 s60, s60, s68")
    a("s_mul_i32 s60, s60, 2560")
    a(f"s_add_u32 s60, s60, {WS_PHIQ}")
    for hh in range(2):
        emit_phi_addr(a, 14, hh)
        emit_phi_frags(a, PF, 14)
        for mt in range(2):
            for t in range(5):
                r = acc(mt, 5*hh+t)
                a(f"v_cvt_pk_bf16_f32 v{KB+2*t}, v{r}, v{r+1}")
                a(f"v_cvt_pk_bf16_f32 v{KB+2*t+1}, v{r+2}, v{r+3}")
            a("s_waitcnt lgkmcnt(0)")
            emit_phi_mfma(a, PF, KB, P)
            a.nop(8)
            o = acc(mt, 5*hh)
            emit_softmax(a, P, E, o, 250)
            for p in range(5):
                a(f"buffer_store_dwordx4 v[{o+4*p}:{o+4*p+3}], v248, s[{SRD_WS}:{SRD_WS+3}], s60 offen offset:{p*512+mt*256}")
        if hh == 0:
            a(f"s_add_u32 s60, s60, {4*2560}")
    a("s_branch Lp1_end")

def emit_p1(a):
    kernel_begin(a, "p1_kernel")
    a("s_cmp_ge_u32 s2, 256")
    a("s_cbranch_scc1 Lp1_exit")
    stamp_init(a)
    a("s_load_dwordx8 s[4:11], s[0:1], 0")
    a("s_load_dwordx8 s[12:19], s[0:1], 32")
    a("s_load_dwordx4 s[20:23], s[0:1], 64")
    a("s_load_dwordx2 s[24:25], s[0:1], 80")
    a("v_lshrrev_b32 v1, 6, v0")
    a(f"s_and_b32 s{S_XCD}, s2, 7")
    a(f"s_lshr_b32 s{S_SLOT}, s2, 3")
    a(f"v_readfirstlane_b32 s{S_WAVE}, v1")
    a("s_waitcnt lgkmcnt(0)")
    stamp(a, 1)
    srd(a, SRD_WS, 24, WS_END)
    a(f"s_cmp_ge_u32 s{S_SLOT}, 24")
    a("s_cbranch_scc1 Lp1_pack")
    a(f"s_lshr_b32 s60, s{S_XCD}, 1")
    a(f"s_and_b32 s66, s{S_XCD}, 1")
    a(f"s_cmp_ge_u32 s{S_SLOT}, 16")
    a("s_cbranch_scc1 Lp1_q")
    a(f"s_mov_b32 s{S_ROLE}, 0")
    a(f"s_lshl_b32 s{S_RB}, s60, 2")
    a(f"s_lshr_b32 s67, s{S_SLOT}, 2")
    a(f"s_add_u32 s{S_RB}, s{S_RB}, s67")
    a(f"s_lshl_b32 s{S_HG}, s66, 2")
    a(f"s_and_b32 s67, s{S_SLOT}, 3")
    a(f"s_add_u32 s{S_HG}, s{S_HG}, s67")
    a("s_branch Lp1_main")
    a("Lp1_q:")
    a(f"s_mov_b32 s{S_ROLE}, 1")
    a(f"s_sub_u32 s67, s{S_SLOT}, 16")
    a(f"s_lshl_b32 s{S_RB}, s60, 2")
    a(f"s_lshr_b32 s68, s67, 1")
    a(f"s_add_u32 s{S_RB}, s{S_RB}, s68")
    a(f"s_lshl_b32 s{S_HG}, s66, 1")
    a(f"s_and_b32 s68, s67, 1")
    a(f"s_add_u32 s{S_HG}, s{S_HG}, s68")
    a("Lp1_main:")
    a(f"s_cmp_ge_u32 s{S_WAVE}, 4")
    a("s_cbranch_scc0 Lp1_cons")
    a(f"s_sub_u32 s{S_WAVE}, s{S_WAVE}, 4")
    emit_loader(a)
    a("Lp1_cons:")
    emit_main(a)
    stamp(a, 4)
    emit_epi_common(a)
    stamp(a, 5)
    a(f"s_cmp_eq_u32 s{S_ROLE}, 0")
    a("s_cbranch_scc0 Lp1_epi_q")
    emit_epi_kv(a)
    a("Lp1_epi_q:")
    emit_epi_q(a)
    a("Lp1_pack:")
    emit_pack(a)
    a("Lp1_end:")
    stamp_store(a, 0)
    a("Lp1_exit:")
    a("s_endpgm")
```

```python
from common import *

S_WAVE, S_XCD, S_SLOT, S_TB, S_NB = 26, 27, 28, 29, 30
SRD_WS, SRD_X = 32, 36
KVL_W = 27648
LDS_XT = 110592
LDS_ST = 120832
LDS_RED = 0

def mf32(d, A, B, c):
    return f"v_mfma_f32_32x32x16_bf16 {d}, {A}, {B}, {c}"

def emit_p2(a):
    kernel_begin(a, "p2_kernel")
    a("s_cmp_ge_u32 s2, 256")
    a("s_cbranch_scc1 Lp2_exit")
    stamp_init(a)
    a("s_load_dwordx2 s[4:5], s[0:1], 0")
    a("s_load_dwordx2 s[24:25], s[0:1], 80")
    a("v_lshrrev_b32 v1, 6, v0")
    a(f"s_and_b32 s{S_XCD}, s2, 7")
    a(f"s_lshr_b32 s{S_SLOT}, s2, 3")
    a(f"v_readfirstlane_b32 s{S_WAVE}, v1")
    a(f"s_lshl_b32 s{S_TB}, s{S_XCD}, 3")
    a(f"s_lshr_b32 s31, s{S_SLOT}, 2")
    a(f"s_add_u32 s{S_TB}, s{S_TB}, s31")
    a(f"s_and_b32 s{S_NB}, s{S_SLOT}, 3")
    a("v_and_b32 v1, 63, v0")
    a("v_lshlrev_b32 v2, 4, v1")
    a("s_waitcnt lgkmcnt(0)")
    stamp(a, 1)
    srd(a, SRD_WS, 24, WS_END)
    srd(a, SRD_X, 4, S*D*2)
    a(f"s_mul_i32 s40, s{S_WAVE}, 26880")
    if WS_KV: a(f"s_add_u32 s40, s40, {WS_KV}")
    a(f"s_mul_i32 s41, s{S_WAVE}, {KVL_W}")
    for i in range(27):
        if i % 4 == 0:
            a(f"s_add_u32 m0, s41, {i*1024}")
            a("s_nop 0")
        a(f"buffer_load_dwordx4 v2, s[{SRD_WS}:{SRD_WS+3}], s40 offen offset:{(i%4)*1024} lds")
        if i % 4 == 3: a("s_add_u32 s40, s40, 4096")
    for h in range(8):
        for r in range(4): a(f"v_accvgpr_write_b32 a{12*h+8+r}, 0")
    a(f"s_lshl_b32 s42, s{S_TB}, 5")
    a(f"s_lshl_b32 s43, s{S_WAVE}, 3")
    a("s_add_u32 s42, s42, s43")
    a("s_mul_i32 s42, s42, 2560")
    a(f"s_add_u32 s42, s42, {WS_PHIQ}")
    a("s_mov_b32 s44, -1")
    a("s_mov_b32 s45, 0")
    for h in range(8):
        a(f"buffer_load_dwordx4 a[{12*h}:{12*h+3}], v2, s[{SRD_WS}:{SRD_WS+3}], s42 offen")
        a(f"buffer_load_dwordx4 a[{12*h+4}:{12*h+7}], v2, s[{SRD_WS}:{SRD_WS+3}], s42 offen offset:1024")
        a("s_mov_b64 exec, s[44:45]")
        a(f"buffer_load_dwordx4 a[{12*h+8}:{12*h+11}], v2, s[{SRD_WS}:{SRD_WS+3}], s42 offen offset:2048")
        a("s_mov_b64 exec, -1")
        a("s_add_u32 s42, s42, 2560")
    def wreg(j): return f"a[{96+4*j}:{96+4*j+3}]" if j < 40 else f"v[{200+4*(j-40)}:{200+4*(j-40)+3}]"
    a(f"s_lshl_b32 s46, s{S_NB}, 3")
    a(f"s_lshl_b32 s47, s{S_WAVE}, 1")
    a("s_add_u32 s46, s46, s47")
    a(f"s_mul_i32 s46, s46, {25*1024}")
    a(f"s_add_u32 s46, s46, {WS_WOP}")
    wo_issued = [0]
    def issue_wo(n):
        for _ in range(n):
            j = wo_issued[0]
            if j >= 50: return
            a(f"buffer_load_dwordx4 {wreg(j)}, v2, s[{SRD_WS}:{SRD_WS+3}], s46 offen offset:{(j%4)*1024}")
            if j % 4 == 3: a("s_add_u32 s46, s46, 4096")
            wo_issued[0] += 1
    issue_wo(12)
    a("v_and_b32 v3, 31, v1")
    a("v_lshrrev_b32 v4, 5, v1")
    a("v_min_u32 v5, 20, v3")
    a("v_subrev_u32 v6, 4, v3")
    a("v_min_u32 v6, 20, v6")
    a("v_cmp_gt_u32 vcc, 16, v3")
    a.nop(1)
    a("v_cndmask_b32 v6, v6, v3, vcc")
    a("v_mul_u32_u24 v7, 336, v4")
    a(f"v_add_u32 v7, s41, v7")
    a("v_lshlrev_b32 v5, 4, v5")
    a("v_lshlrev_b32 v6, 4, v6")
    a("v_add_u32 v5, v5, v7")
    a("v_add_u32 v6, v6, v7")
    a("v_cmp_gt_u32 s[48:49], 32, v1")
    for jj in range(3):
        lb = a.label("xt")
        if jj == 2:
            a(f"s_cmp_ge_u32 s{S_WAVE}, 2")
            a(f"s_cbranch_scc1 {lb}")
        a(f"s_lshl_b32 s50, s{S_WAVE}, 6")
        a(f"s_add_u32 s50, s50, {256*jj}")
        a("v_add_u32 v8, s50, v1")
        a("v_mul_u32_u24 v9, 3277, v8")
        a("v_lshrrev_b32 v9, 16, v9")
        a("v_mul_u32_u24 v10, 20, v9")
        a("v_sub_u32 v10, v8, v10")
        a("v_mul_u32_u24 v9, 1280, v9")
        a("v_lshlrev_b32 v10, 4, v10")
        a("v_add_u32 v9, v9, v10")
        a(f"s_mul_i32 s51, s{S_TB}, {32*1280}")
        a(f"s_mul_i32 s52, s{S_NB}, 320")
        a("s_add_u32 s51, s51, s52")
        a("s_lshl_b32 s50, s50, 4")
        a(f"s_add_u32 m0, s50, {LDS_XT}")
        a("s_nop 0")
        a(f"buffer_load_dwordx4 v9, s[{SRD_X}:{SRD_X+3}], s51 offen lds")
        a(f"{lb}:")
    XN = 2
    ACC = 16
    DD = 96
    KF = 112
    AF = 136
    OF = 148
    RF = 180
    for r in range(ACC, ACC+80): a(f"v_mov_b32 v{r}, 0")
    stamp(a, 2)
    for h in range(8):
        va = 5 if h % 2 == 0 else 6
        n = 3*(7-h) + wo_issued[0] + XN
        a(f"s_waitcnt vmcnt({min(n,63)})")
        if h == 0: stamp(a, 3)
        for s in range(3):
            for q in range(2):
                blk = (4*s + 2*q) if s < 2 else (8 + q)
                r = KF + 8*s + 4*q
                a(f"ds_read_b128 v[{r}:{r+3}], v{va} offset:{h*3360 + blk*336}")
        issue_wo(5)
        a("s_waitcnt lgkmcnt(0)")
        for s in range(3):
            for i in range(4):
                a(f"v_cvt_pk_bf16_f32 v{AF+4*s+i}, v{KF+8*s+2*i}, v{KF+8*s+2*i+1}")
        for i in range(4):
            a(f"v_cndmask_b32 v{AF+8+i}, 0, v{AF+8+i}, s[48:49]")
        a.nop(2)
        a(mf32(f"v[{DD}:{DD+15}]", f"v[{AF}:{AF+3}]", f"a[{12*h}:{12*h+3}]", "0"))
        a(mf32(f"v[{DD}:{DD+15}]", f"v[{AF+4}:{AF+7}]", f"a[{12*h+4}:{12*h+7}]", f"v[{DD}:{DD+15}]"))
        a(mf32(f"v[{DD}:{DD+15}]", f"v[{AF+8}:{AF+11}]", f"a[{12*h+8}:{12*h+11}]", f"v[{DD}:{DD+15}]"))
        a.nop(13)
        a(f"v_add_f32 v188, 0x358637bd, v{DD+12}")
        a("v_rcp_f32 v188, v188")
        a.nop(1)
        for i in range(6):
            a(f"v_pk_mul_f32 v[{DD+2*i}:{DD+2*i+1}], v[{DD+2*i}:{DD+2*i+1}], v[188:189] op_sel_hi:[1,0]")
        for i in range(4):
            a(f"v_cvt_pk_bf16_f32 v{OF+4*h+i}, v{DD+2*i}, v{DD+2*i+1}")
        Q, m = divmod(h, 4)
        rr = RF + 4*Q + 2*(m >> 1)
        a("s_mov_b64 exec, s[48:49]" if m % 2 == 0 else "s_not_b64 exec, s[48:49]")
        a(f"v_cvt_pk_bf16_f32 v{rr}, v{DD+8}, v{DD+9}")
        a(f"v_cvt_pk_bf16_f32 v{rr+1}, v{DD+10}, v{DD+11}")
        a("s_mov_b64 exec, -1")
    assert wo_issued[0] == 50
    stamp(a, 4)
    for j in range(50):
        Q, rem = divmod(j, 25)
        m, nt = divmod(rem, 5)
        if j % 5 == 0:
            a(f"s_waitcnt vmcnt({max(0, 50-(j+5)) })")
        B = f"v[{OF+4*(4*Q+m)}:{OF+4*(4*Q+m)+3}]" if m < 4 else f"v[{RF+4*Q}:{RF+4*Q+3}]"
        d = ACC + 16*nt
        a(mf32(f"v[{d}:{d+15}]", wreg(j), B, f"v[{d}:{d+15}]"))
    a("s_waitcnt vmcnt(0)")
    stamp(a, 5)
    a("s_barrier")
    a.nop(12)
    a(f"s_mul_i32 s50, s{S_WAVE}, {4*5*1024}")
    a("v_add_u32 v8, s50, v2")
    for dst in range(4):
        lb = a.label("red")
        a(f"s_cmp_eq_u32 s{S_WAVE}, {dst}")
        a(f"s_cbranch_scc1 {lb}")
        for nt in range(5):
            r = ACC + 16*nt + 4*dst
            a(f"ds_write_b128 v8, v[{r}:{r+3}] offset:{(dst*5+nt)*1024}")
        a(f"{lb}:")
    OWN = 112
    for dst in range(4):
        lb = a.label("own")
        a(f"s_cmp_lg_u32 s{S_WAVE}, {dst}")
        a(f"s_cbranch_scc1 {lb}")
        for nt in range(5):
            for e in range(4):
                a(f"v_mov_b32 v{OWN+4*nt+e}, v{ACC+16*nt+4*dst+e}")
        a(f"{lb}:")
    a("s_waitcnt lgkmcnt(0)")
    a("s_barrier")
    a(f"s_mul_i32 s50, s{S_WAVE}, {5*1024}")
    a("v_add_u32 v8, s50, v2")
    for src in range(4):
        lb = a.label("rd")
        a(f"s_cmp_eq_u32 s{S_WAVE}, {src}")
        a(f"s_cbranch_scc1 {lb}")
        a(f"v_add_u32 v9, {src*20*1024}, v8")
        for nt in range(5):
            a(f"ds_read_b128 v[{ACC+4*nt}:{ACC+4*nt+3}], v9 offset:{nt*1024}")
        a("s_waitcnt lgkmcnt(0)")
        for i in range(10):
            a(f"v_pk_add_f32 v[{OWN+2*i}:{OWN+2*i+1}], v[{OWN+2*i}:{OWN+2*i+1}], v[{ACC+2*i}:{ACC+2*i+1}]")
        a(f"{lb}:")
    stamp(a, 6)
    a("v_mul_u32_u24 v8, 320, v3")
    a("v_lshlrev_b32 v9, 3, v4")
    a("v_add_u32 v8, v8, v9")
    a(f"s_lshl_b32 s50, s{S_WAVE}, 4")
    a(f"s_add_u32 s50, s50, {LDS_XT}")
    a("v_add_u32 v8, s50, v8")
    for nt in range(5):
        a(f"ds_read_b64 v[{ACC+2*nt}:{ACC+2*nt+1}], v8 offset:{64*nt}")
    a("s_waitcnt lgkmcnt(0)")
    HB = 40
    for nt in range(5):
        for p in range(2):
            x = ACC + 2*nt + p
            a(f"v_lshlrev_b32 v60, 16, v{x}")
            a(f"v_and_b32 v61, 0xffff0000, v{x}")
            a(f"v_pk_add_f32 v[60:61], v[60:61], v[{OWN+4*nt+2*p}:{OWN+4*nt+2*p+1}]")
            a(f"v_cvt_pk_bf16_f32 v{HB+2*nt+p}, v60, v61")
    a("v_lshlrev_b32 v8, 4, v3")
    a("v_lshlrev_b32 v9, 3, v4")
    a("v_add_u32 v8, v8, v9")
    a(f"s_mul_i32 s50, s{S_TB}, 40")
    a(f"s_mul_i32 s51, s{S_NB}, 10")
    a("s_add_u32 s50, s50, s51")
    a(f"s_lshr_b32 s51, s{S_WAVE}, 1")
    a("s_add_u32 s50, s50, s51")
    a("s_lshl_b32 s50, s50, 10")
    a(f"s_and_b32 s51, s{S_WAVE}, 1")
    a("s_lshl_b32 s51, s51, 9")
    a("s_add_u32 s50, s50, s51")
    a(f"s_add_u32 s50, s50, {WS_H}")
    for nt in range(5):
        a(f"buffer_store_dwordx2 v[{HB+2*nt}:{HB+2*nt+1}], v8, s[{SRD_WS}:{SRD_WS+3}], s50 offen offset:{(2*nt%2)*0}")
        a("s_add_u32 s50, s50, 2048")
    a("v_mov_b32 v62, 0\nv_mov_b32 v63, 0\nv_mov_b32 v64, 0\nv_mov_b32 v65, 0")
    for i in range(10):
        a(f"v_lshlrev_b32 v60, 16, v{HB+i}")
        a(f"v_and_b32 v61, 0xffff0000, v{HB+i}")
        a("v_pk_add_f32 v[62:63], v[62:63], v[60:61]")
        a("v_pk_fma_f32 v[64:65], v[60:61], v[60:61], v[64:65]")
    a("v_add_f32 v66, v62, v63")
    a("v_add_f32 v67, v64, v65")
    a(f"s_lshl_b32 s50, s{S_WAVE}, 9")
    a(f"s_add_u32 s50, s50, {LDS_ST}")
    a("v_lshlrev_b32 v8, 3, v1")
    a("v_add_u32 v8, s50, v8")
    a("ds_write_b64 v8, v[66:67]")
    a("s_waitcnt lgkmcnt(0)")
    a("s_barrier")
    a(f"s_cmp_lg_u32 s{S_WAVE}, 0")
    a("s_cbranch_scc1 Lp2_end")
    a("s_mov_b64 exec, s[48:49]")
    a("v_lshlrev_b32 v8, 3, v3")
    a(f"v_add_u32 v8, {LDS_ST}, v8")
    for i in range(8):
        a(f"ds_read_b64 v[{70+2*i}:{71+2*i}], v8 offset:{256*i}")
    a("s_waitcnt lgkmcnt(0)")
    for i in range(1, 8):
        a(f"v_pk_add_f32 v[70:71], v[70:71], v[{70+2*i}:{71+2*i}]")
    a("v_lshlrev_b32 v8, 5, v3")
    a(f"s_lshl_b32 s50, s{S_TB}, 10")
    a(f"s_lshl_b32 s51, s{S_NB}, 3")
    a("s_add_u32 s50, s50, s51")
    a(f"s_add_u32 s50, s50, {WS_STAT}")
    a(f"buffer_store_dwordx2 v[70:71], v8, s[{SRD_WS}:{SRD_WS+3}], s50 offen")
    a("s_mov_b64 exec, -1")
    a("Lp2_end:")
    stamp_store(a, 1)
    a("Lp2_exit:")
    a("s_endpgm")
```

```python
from common import *

S_WAVE, S_XCD, S_SLOT, S_RB, S_T0 = 26, 27, 28, 29, 30
SRD_WS = 32
NST = 7
STG = 22528
NSTAGE = 21

def mf32(d, A, B, c=None):
    c = c or d
    return f"v_mfma_f32_32x32x16_bf16 {d}, {A}, {B}, {c}"

def emit_loader(a, part):
    nW = 4 if part == 0 else 3
    t0 = 0 if part == 0 else 4
    n = nW + 2
    a("v_and_b32 v1, 63, v0")
    a("v_lshlrev_b32 v2, 4, v1")
    for j in range(nW):
        a(f"v_add_u32 v{4+j}, {(t0+j)*41*1024 - j*1024}, v2")
    a(f"s_and_b32 s40, s{S_WAVE}, 1")
    a(f"s_mul_i32 s41, s{S_T0}, {41*1024}")
    a("s_lshl_b32 s42, s40, 10")
    a("s_add_u32 s41, s41, s42")
    a(f"s_add_u32 s41, s41, {WS_WGU}")
    for i in range(2):
        a(f"v_add_u32 v{10+i}, {i*40*1024 - i*1024}, v2")
    a(f"s_lshl_b32 s43, s{S_RB}, 2")
    a(f"s_lshr_b32 s44, s{S_WAVE}, 1")
    a("s_lshl_b32 s45, s44, 1")
    a("s_add_u32 s43, s43, s45")
    a(f"s_mul_i32 s43, s43, {40*1024}")
    a("s_add_u32 s43, s43, s42")
    a(f"s_add_u32 s43, s43, {WS_H}")
    a(f"s_mul_i32 s46, s40, {7*1024}")
    a(f"s_add_u32 s46, s46, {t0*1024}")
    a("s_lshl_b32 s47, s40, 12")
    a("s_lshl_b32 s45, s45, 10")
    a("s_add_u32 s47, s47, s45")
    a("s_add_u32 s47, s47, 14336")
    a("s_mov_b32 s48, 0")
    def loads(with_h=True):
        if with_h:
            a("s_add_u32 m0, s48, s47")
            a("s_nop 0")
            for i in range(2):
                a(f"buffer_load_dwordx4 v{10+i}, s[{SRD_WS}:{SRD_WS+3}], s43 offen offset:{i*1024} lds")
        a("s_add_u32 m0, s48, s46")
        a("s_nop 0")
        for j in range(nW):
            a(f"buffer_load_dwordx4 v{4+j}, s[{SRD_WS}:{SRD_WS+3}], s41 offen offset:{j*1024} lds")
        a("s_add_u32 s41, s41, 2048")
        a("s_add_u32 s43, s43, 2048")
        a(f"s_add_u32 s48, s48, {STG}")
        a(f"s_cmp_ge_u32 s48, {NST*STG}")
        a("s_cselect_b32 s48, 0, s48")
    for st in range(NST):
        loads()
    a(f"s_waitcnt vmcnt({(NST-1)*n})")
    a("s_barrier")
    lp = a.label("p3ld")
    a("s_mov_b32 s49, 0")
    a(f"{lp}:")
    a(f"s_waitcnt vmcnt({5*n})")
    a("s_barrier")
    loads()
    a("s_add_u32 s49, s49, 1")
    a("s_cmp_lt_u32 s49, 13")
    a(f"s_cbranch_scc1 {lp}")
    a(f"s_waitcnt vmcnt({5*n})")
    a("s_barrier")
    lb = a.label("p3x")
    a(f"s_cmp_lg_u32 s40, 0")
    a(f"s_cbranch_scc1 {lb}")
    loads(with_h=False)
    a(f"{lb}:")
    for i in range(14, 19):
        a(f"s_waitcnt vmcnt({(18-i)*n})") if i < 18 else a("s_waitcnt vmcnt(0)")
        a("s_barrier")
    a("s_barrier")
    a("s_barrier")
    a("s_branch Lp3_exit")

def emit_p3(a):
    kernel_begin(a, "p3_kernel")
    a("s_cmp_ge_u32 s2, 256")
    a("s_cbranch_scc1 Lp3_exit")
    stamp_init(a)
    a("s_load_dwordx2 s[24:25], s[0:1], 80")
    a("v_lshrrev_b32 v1, 6, v0")
    a(f"s_and_b32 s{S_XCD}, s2, 7")
    a(f"s_lshr_b32 s{S_SLOT}, s2, 3")
    a(f"v_readfirstlane_b32 s{S_WAVE}, v1")
    a(f"s_lshr_b32 s{S_RB}, s{S_XCD}, 2")
    a(f"s_lshl_b32 s{S_RB}, s{S_RB}, 3")
    a(f"s_lshr_b32 s31, s{S_SLOT}, 2")
    a(f"s_add_u32 s{S_RB}, s{S_RB}, s31")
    a(f"s_and_b32 s{S_T0}, s{S_XCD}, 3")
    a(f"s_lshl_b32 s{S_T0}, s{S_T0}, 2")
    a(f"s_and_b32 s31, s{S_SLOT}, 3")
    a(f"s_add_u32 s{S_T0}, s{S_T0}, s31")
    a(f"s_mul_i32 s{S_T0}, s{S_T0}, 27")
    a(f"s_lshr_b32 s{S_T0}, s{S_T0}, 2")
    a("s_waitcnt lgkmcnt(0)")
    stamp(a, 1)
    srd(a, SRD_WS, 24, WS_END)
    a(f"s_cmp_lt_u32 s{S_WAVE}, 4")
    a("s_cbranch_scc1 Lp3_cons")
    a(f"s_sub_u32 s{S_WAVE}, s{S_WAVE}, 4")
    a(f"s_cmp_lt_u32 s{S_WAVE}, 2")
    a("s_cbranch_scc0 Lp3_ld1")
    emit_loader(a, 0)
    a("Lp3_ld1:")
    emit_loader(a, 1)
    a("Lp3_cons:")
    ACC = 16
    A0, A1 = 128, 156
    B0, B1 = 184, 188
    MB = 192
    VW, VH = 4, 5
    a("v_and_b32 v1, 63, v0")
    a("v_lshlrev_b32 v2, 4, v1")
    a("v_and_b32 v3, 31, v1")
    a(f"s_lshl_b32 s40, s{S_RB}, 7")
    a(f"s_lshl_b32 s41, s{S_WAVE}, 5")
    a("s_add_u32 s40, s40, s41")
    a("s_lshl_b32 s40, s40, 5")
    a(f"s_add_u32 s40, s40, {WS_STAT}")
    a("v_lshlrev_b32 v6, 5, v3")
    a(f"buffer_load_dwordx4 v[200:203], v6, s[{SRD_WS}:{SRD_WS+3}], s40 offen")
    a(f"buffer_load_dwordx4 v[204:207], v6, s[{SRD_WS}:{SRD_WS+3}], s40 offen offset:16")
    a(f"v_mov_b32 v{VW}, v2")
    a(f"s_lshl_b32 s41, s{S_WAVE}, 10")
    a("s_add_u32 s41, s41, 14336")
    a(f"v_add_u32 v{VH}, s41, v2")
    for r in range(ACC, ACC+112): a(f"v_mov_b32 v{r}, 0")
    a("s_mov_b32 s42, 0")
    a(f"s_mov_b32 s44, {STG}")
    a(f"s_mov_b32 s45, {(-(NST-1)*STG) & 0xffffffff}")
    def reads(setA, setB, ks, withB=True):
        R = []
        if withB: R.append(f"ds_read_b128 v[{setB}:{setB+3}], v{VH} offset:{ks*4096}")
        for t in range(7):
            R.append(f"ds_read_b128 v[{setA+4*t}:{setA+4*t+3}], v{VW} offset:{(ks*7+t)*1024}")
        return R
    def half(curA, curB, R):
        ri = 0
        for t in range(7):
            d = ACC + 16*t
            a(mf32(f"v[{d}:{d+15}]", f"v[{curA+4*t}:{curA+4*t+3}]", f"v[{curB}:{curB+3}]"))
            for _ in range(2 if t < 1 else 1):
                if ri < len(R): a(R[ri]); ri += 1
        while ri < len(R): a(R[ri]); ri += 1
    def adv():
        a(f"s_add_u32 s42, s42, {STG}")
        a(f"s_cmp_ge_u32 s42, {NST*STG}")
        a("s_cselect_b32 s43, s45, s44")
        a("s_cselect_b32 s42, 0, s42")
        a(f"v_add_u32 v{VW}, s43, v{VW}")
        a(f"v_add_u32 v{VH}, s43, v{VH}")
    stamp(a, 2)
    a("s_barrier")
    stamp(a, 3)
    for r in reads(A0, B0, 0): a(r)
    a("s_waitcnt vmcnt(0)")
    a("v_add_f32 v200, v200, v202\nv_add_f32 v201, v201, v203\nv_add_f32 v204, v204, v206\nv_add_f32 v205, v205, v207")
    a("v_add_f32 v200, v200, v204\nv_add_f32 v201, v201, v205")
    a("s_mov_b32 s46, 0x3acccccd")
    a("v_mul_f32 v200, s46, v200")
    a("v_mul_f32 v201, s46, v201")
    a("v_fma_f32 v201, -v200, v200, v201")
    a("v_max_f32 v201, 0, v201")
    a("v_add_f32 v201, 0x3727c5ac, v201")
    a("v_rsq_f32 v208, v201")
    a("v_sub_f32 v200, 0, v200")
    a("v_cvt_pk_bf16_f32 v202, v200, v200")
    a("v_lshlrev_b32 v203, 16, v202")
    a("v_sub_f32 v203, v200, v203")
    a("v_cvt_pk_bf16_f32 v203, v203, v203")
    a("v_cmp_gt_u32 vcc, 32, v1")
    a.nop(2)
    a(f"v_cndmask_b32 v{MB}, 0, v202, vcc")
    a(f"v_cndmask_b32 v{MB+1}, 0, v203, vcc")
    a(f"v_mov_b32 v{MB+2}, 0")
    a(f"v_mov_b32 v{MB+3}, 0")
    a("s_waitcnt lgkmcnt(0)")
    lp = a.label("p3main")
    a("s_mov_b32 s47, 0")
    a(f"{lp}:")
    half(A0, B0, reads(A1, B1, 1))
    adv()
    a("s_waitcnt lgkmcnt(0)")
    a("s_barrier")
    half(A1, B1, reads(A0, B0, 0))
    a("s_waitcnt lgkmcnt(0)")
    a("s_add_u32 s47, s47, 1")
    a("s_cmp_lt_u32 s47, 20")
    a(f"s_cbranch_scc1 {lp}")
    half(A0, MB, [])
    a("s_barrier")
    stamp(a, 4)
    a("v_lshrrev_b32 v6, 4, v3")
    a(f"v_mul_u32_u24 v6, {54*1024}, v6")
    a("v_and_b32 v7, 15, v3")
    a("v_lshrrev_b32 v8, 5, v1")
    a("v_lshlrev_b32 v8, 4, v8")
    a("v_add_u32 v7, v7, v8")
    a("v_lshlrev_b32 v7, 4, v7")
    a("v_add_u32 v6, v6, v7")
    a(f"s_lshl_b32 s40, s{S_RB}, 3")
    a(f"s_lshl_b32 s41, s{S_WAVE}, 1")
    a("s_add_u32 s40, s40, s41")
    a(f"s_mul_i32 s40, s40, {54*1024}")
    a(f"s_add_u32 s40, s40, {WS_ACT}")
    a(f"s_lshl_b32 s41, s{S_T0}, 9")
    a("s_add_u32 s40, s40, s41")
    import math
    c1 = -2*math.sqrt(2/math.pi)*math.log2(math.e)
    c2 = c1*0.044715
    import struct
    f2u = lambda f: struct.unpack("<I", struct.pack("<f", f))[0]
    a(f"s_mov_b32 s50, 0x{f2u(c1):08x}\ns_mov_b32 s51, 0x{f2u(c1):08x}")
    a(f"s_mov_b32 s52, 0x{f2u(c2):08x}\ns_mov_b32 s53, 0x{f2u(c2):08x}")
    a("v_mov_b32 v210, s50\nv_mov_b32 v211, s51")
    a.nop(8)
    for t in range(7):
        d = ACC + 16*t
        T = 128
        for i in range(8):
            a(f"v_pk_mul_f32 v[{d+2*i}:{d+2*i+1}], v[{d+2*i}:{d+2*i+1}], v[208:209] op_sel_hi:[1,0]")
        for i in range(4):
            g = d + 2*i
            a(f"v_pk_mul_f32 v[{T+2*i}:{T+2*i+1}], v[{g}:{g+1}], v[{g}:{g+1}]")
            a(f"v_pk_fma_f32 v[{T+2*i}:{T+2*i+1}], v[{T+2*i}:{T+2*i+1}], s[52:53], v[210:211]")
            a(f"v_pk_mul_f32 v[{T+2*i}:{T+2*i+1}], v[{T+2*i}:{T+2*i+1}], v[{g}:{g+1}]")
        for i in range(8):
            a(f"v_exp_f32 v{T+i}, v{T+i}")
        a.nop(1)
        for i in range(4):
            a(f"v_pk_add_f32 v[{T+2*i}:{T+2*i+1}], v[{T+2*i}:{T+2*i+1}], 1.0 op_sel_hi:[1,0]")
        for i in range(8):
            a(f"v_rcp_f32 v{T+i}, v{T+i}")
        for i in range(4):
            g = d + 2*i
            a(f"v_pk_mul_f32 v[{g}:{g+1}], v[{g}:{g+1}], v[{g+8}:{g+9}]")
        for i in range(4):
            g = d + 2*i
            a(f"v_pk_mul_f32 v[{g}:{g+1}], v[{g}:{g+1}], v[{T+2*i}:{T+2*i+1}]")
        for i in range(4):
            a(f"v_cvt_pk_bf16_f32 v{T+8+i}, v{d+2*i}, v{d+2*i+1}")
        a(f"buffer_store_dwordx4 v[{T+8}:{T+11}], v6, s[{SRD_WS}:{SRD_WS+3}], s40 offen")
        a("s_add_u32 s40, s40, 512")
        a.nop(2)
    stamp_store(a, 2)
    a("Lp3_exit:")
    a("s_endpgm")
```

```python
from common import *

S_WAVE, S_XCD, S_SLOT, S_RB, S_NB = 26, 27, 28, 29, 30
SRD_WS, SRD_OUT = 32, 36
NST = 8
STG = 18432
NSTAGE = 27
LDS_OT = NST*STG

def mf16(d, A, B):
    return f"v_mfma_f32_16x16x32_bf16 v[{d}:{d+3}], v[{A}:{A+3}], v[{B}:{B+3}], v[{d}:{d+3}]"

def emit_loader(a, part):
    n = 5 if part == 0 else 4
    a("v_and_b32 v1, 63, v0")
    a("v_lshlrev_b32 v2, 4, v1")
    a(f"s_and_b32 s40, s{S_WAVE}, 1")
    if part == 0:
        a(f"s_mul_i32 s41, s{S_NB}, {54*5*1024}")
        a(f"s_mul_i32 s42, s40, 5120")
        a("s_add_u32 s41, s41, s42")
        a(f"s_add_u32 s41, s41, {WS_WD}")
        a(f"s_mul_i32 s46, s40, 5120")
        step = 10240
    else:
        for i in range(4):
            a(f"v_add_u32 v{4+i}, {i*54*1024 - i*1024}, v2")
        a(f"s_mul_i32 s41, s{S_RB}, {4*54*1024}")
        a("s_lshl_b32 s42, s40, 10")
        a("s_add_u32 s41, s41, s42")
        a(f"s_add_u32 s41, s41, {WS_ACT}")
        a("s_lshl_b32 s46, s40, 12")
        a("s_add_u32 s46, s46, 10240")
        step = 2048
    a("s_mov_b32 s48, 0")
    def loads():
        a("s_add_u32 m0, s48, s46")
        a("s_nop 0")
        if part == 0:
            for j in range(4):
                a(f"buffer_load_dwordx4 v2, s[{SRD_WS}:{SRD_WS+3}], s41 offen offset:{j*1024} lds")
            a("s_add_u32 m0, m0, 4096")
            a("s_add_u32 s43, s41, 4096")
            a(f"buffer_load_dwordx4 v2, s[{SRD_WS}:{SRD_WS+3}], s43 offen lds")
        else:
            for j in range(4):
                a(f"buffer_load_dwordx4 v{4+j}, s[{SRD_WS}:{SRD_WS+3}], s41 offen offset:{j*1024} lds")
        a(f"s_add_u32 s41, s41, {step}")
        a(f"s_add_u32 s48, s48, {STG}")
        a(f"s_cmp_ge_u32 s48, {NST*STG}")
        a("s_cselect_b32 s48, 0, s48")
    for st in range(NST): loads()
    a(f"s_waitcnt vmcnt({(NST-1)*n})")
    a("s_barrier")
    lp = a.label("p4ld")
    a("s_mov_b32 s49, 0")
    a(f"{lp}:")
    a(f"s_waitcnt vmcnt({6*n})")
    a("s_barrier")
    loads()
    a("s_add_u32 s49, s49, 1")
    a(f"s_cmp_lt_u32 s49, {NSTAGE-NST}")
    a(f"s_cbranch_scc1 {lp}")
    for i in range(NSTAGE-NST, NSTAGE):
        rem = max(0, 26 - (i+1))
        a(f"s_waitcnt vmcnt({rem*n})")
        a("s_barrier")
    a("s_branch Lp4_exit")

def emit_p4(a):
    kernel_begin(a, "p4_kernel")
    a("s_cmp_ge_u32 s2, 256")
    a("s_cbranch_scc1 Lp4_exit")
    stamp_init(a)
    a("s_load_dwordx2 s[20:21], s[0:1], 64")
    a("s_load_dwordx2 s[24:25], s[0:1], 80")
    a("v_lshrrev_b32 v1, 6, v0")
    a(f"s_and_b32 s{S_XCD}, s2, 7")
    a(f"s_lshr_b32 s{S_SLOT}, s2, 3")
    a(f"v_readfirstlane_b32 s{S_WAVE}, v1")
    a(f"s_lshr_b32 s{S_RB}, s{S_XCD}, 1")
    a(f"s_lshl_b32 s{S_RB}, s{S_RB}, 3")
    a(f"s_lshr_b32 s31, s{S_SLOT}, 2")
    a(f"s_add_u32 s{S_RB}, s{S_RB}, s31")
    a(f"s_and_b32 s{S_NB}, s{S_XCD}, 1")
    a(f"s_lshl_b32 s{S_NB}, s{S_NB}, 2")
    a(f"s_and_b32 s31, s{S_SLOT}, 3")
    a(f"s_add_u32 s{S_NB}, s{S_NB}, s31")
    a("s_waitcnt lgkmcnt(0)")
    stamp(a, 1)
    srd(a, SRD_WS, 24, WS_END)
    srd(a, SRD_OUT, 20, S*D*2)
    a(f"s_cmp_lt_u32 s{S_WAVE}, 4")
    a("s_cbranch_scc1 Lp4_cons")
    a(f"s_sub_u32 s{S_WAVE}, s{S_WAVE}, 4")
    a(f"s_cmp_lt_u32 s{S_WAVE}, 2")
    a("s_cbranch_scc0 Lp4_ld1")
    emit_loader(a, 0)
    a("Lp4_ld1:")
    emit_loader(a, 1)
    a("Lp4_cons:")
    ACC = 16
    A0, A1 = 40, 60
    B0, B1 = 80, 84
    HR = 88
    VW, VH = 4, 5
    a("v_and_b32 v1, 63, v0")
    a("v_lshlrev_b32 v2, 4, v1")
    a("v_and_b32 v3, 15, v1")
    a("v_lshrrev_b32 v7, 4, v1")
    a("v_lshrrev_b32 v8, 1, v7")
    a("v_lshlrev_b32 v8, 5, v8")
    a("v_add_u32 v8, v8, v3")
    a("v_lshlrev_b32 v8, 4, v8")
    a("v_and_b32 v9, 1, v7")
    a("v_lshlrev_b32 v9, 3, v9")
    a("v_add_u32 v8, v8, v9")
    a(f"s_lshl_b32 s40, s{S_RB}, 1")
    a(f"s_lshr_b32 s41, s{S_WAVE}, 1")
    a("s_add_u32 s40, s40, s41")
    a("s_mul_i32 s40, s40, 40")
    a(f"s_mul_i32 s41, s{S_NB}, 5")
    a("s_add_u32 s40, s40, s41")
    a("s_lshl_b32 s40, s40, 10")
    a(f"s_and_b32 s41, s{S_WAVE}, 1")
    a("s_lshl_b32 s41, s41, 8")
    a("s_add_u32 s40, s40, s41")
    a(f"s_add_u32 s40, s40, {WS_H}")
    for t in range(5):
        if t == 4: a("s_add_u32 s40, s40, 4096")
        a(f"buffer_load_dwordx2 v[{HR+2*t}:{HR+2*t+1}], v8, s[{SRD_WS}:{SRD_WS+3}], s40 offen offset:{(t%4)*1024}")
    a(f"v_mov_b32 v{VW}, v2")
    a(f"s_lshl_b32 s41, s{S_WAVE}, 10")
    a("s_add_u32 s41, s41, 10240")
    a(f"v_add_u32 v{VH}, s41, v2")
    for r in range(ACC, ACC+20): a(f"v_mov_b32 v{r}, 0")
    a("s_mov_b32 s42, 0")
    a(f"s_mov_b32 s44, {STG}")
    a(f"s_mov_b32 s45, {(-(NST-1)*STG) & 0xffffffff}")
    def reads(setA, setB, ks):
        R = [f"ds_read_b128 v[{setB}:{setB+3}], v{VH} offset:{ks*4096}"]
        for t in range(5):
            R.append(f"ds_read_b128 v[{setA+4*t}:{setA+4*t+3}], v{VW} offset:{(ks*5+t)*1024}")
        return R
    def half(curA, curB, R):
        ri = 0
        for t in range(5):
            a(mf16(ACC+4*t, curA+4*t, curB))
            for _ in range(2):
                if ri < len(R): a(R[ri]); ri += 1
    def adv():
        a(f"s_add_u32 s42, s42, {STG}")
        a(f"s_cmp_ge_u32 s42, {NST*STG}")
        a("s_cselect_b32 s43, s45, s44")
        a("s_cselect_b32 s42, 0, s42")
        a(f"v_add_u32 v{VW}, s43, v{VW}")
        a(f"v_add_u32 v{VH}, s43, v{VH}")
    stamp(a, 2)
    a("s_barrier")
    stamp(a, 3)
    for r in reads(A0, B0, 0): a(r)
    a("s_waitcnt lgkmcnt(0)")
    lp = a.label("p4main")
    a("s_mov_b32 s47, 0")
    a(f"{lp}:")
    half(A0, B0, reads(A1, B1, 1))
    adv()
    a("s_waitcnt lgkmcnt(0)")
    a("s_barrier")
    half(A1, B1, reads(A0, B0, 0))
    a("s_waitcnt lgkmcnt(0)")
    a("s_add_u32 s47, s47, 1")
    a(f"s_cmp_lt_u32 s47, {NSTAGE}")
    a(f"s_cbranch_scc1 {lp}")
    stamp(a, 4)
    a("s_waitcnt vmcnt(0)")
    a.nop(8)
    OB = 100
    for t in range(5):
        for p in range(2):
            x = HR + 2*t + p
            a(f"v_lshlrev_b32 v60, 16, v{x}")
            a(f"v_and_b32 v61, 0xffff0000, v{x}")
            a(f"v_pk_add_f32 v[60:61], v[60:61], v[{ACC+4*t+2*p}:{ACC+4*t+2*p+1}]")
            a(f"v_cvt_pk_bf16_f32 v{OB+2*t+p}, v60, v61")
    a("v_mul_u32_u24 v8, 176, v3")
    a("v_lshlrev_b32 v9, 3, v7")
    a("v_add_u32 v8, v8, v9")
    a(f"s_mul_i32 s40, s{S_WAVE}, 2816")
    a(f"s_add_u32 s40, s40, {LDS_OT}")
    a("v_add_u32 v8, s40, v8")
    for t in range(5):
        a(f"ds_write_b64 v8, v[{OB+2*t}:{OB+2*t+1}] offset:{32*t}")
    for j in range(3):
        a(f"v_add_u32 v10, {64*j}, v1")
        a("v_mul_u32_u24 v11, 205, v10")
        a("v_lshrrev_b32 v11, 11, v11")
        a("v_mul_u32_u24 v12, 10, v11")
        a("v_sub_u32 v12, v10, v12")
        a("v_lshlrev_b32 v12, 4, v12")
        a("v_mul_u32_u24 v13, 176, v11")
        a("v_add_u32 v13, v13, v12")
        a(f"v_add_u32 v{20+j}, s40, v13")
        a("v_mul_u32_u24 v13, 1280, v11")
        a(f"v_add_u32 v{24+j}, v13, v12")
    a("s_waitcnt lgkmcnt(0)")
    for j in range(3):
        a(f"ds_read_b128 v[{40+4*j}:{43+4*j}], v{20+j}")
    a(f"s_lshl_b32 s41, s{S_RB}, 6")
    a(f"s_lshl_b32 s42, s{S_WAVE}, 4")
    a("s_add_u32 s41, s41, s42")
    a("s_mul_i32 s41, s41, 1280")
    a(f"s_mul_i32 s42, s{S_NB}, 160")
    a("s_add_u32 s41, s41, s42")
    a("s_waitcnt lgkmcnt(0)")
    for j in range(3):
        if j == 2: a("s_mov_b32 exec_hi, 0")
        a(f"buffer_store_dwordx4 v[{40+4*j}:{43+4*j}], v{24+j}, s[{SRD_OUT}:{SRD_OUT+3}], s41 offen")
    a("s_mov_b64 exec, -1")
    stamp_store(a, 3)
    a("Lp4_exit:")
    a("s_endpgm")
```

```python
import sys
from common import *
import p1

NAME = "sequential_preLN__linear_kernel_hedgehog__geglu_ffn__prompt"

def build(kernels):
    a = Asm()
    hdr = open("cdna_kernels/" + NAME + ".s.ref").read().split("\n")
    for line in hdr:
        if line.startswith("; Override launch") : break
        a(line)
    for (name, grid, block, lds, fn, vg, acc) in kernels:
        a(f"; @launch kernel={name} grid=({grid},1,1) block=({block},1,1) lds={lds}")
    a('.amdgcn_target "amdgcn-amd-amdhsa--gfx950"')
    a(".text")
    for (name, grid, block, lds, fn, vg, acc) in kernels:
        fn(a)
    a("Lcode_end:")
    a("s_endpgm")
    a('.section .rodata,"a"')
    for (name, grid, block, lds, fn, vg, acc) in kernels:
        kernel_desc(a, name, vg, acc)
    return a.text()

KERNELS = [
    ("p1_kernel", 256, 512, 163840, p1.emit_p1, 256, 256),
]
try:
    import p2
    KERNELS.append(("p2_kernel", 256, 256, 163840, p2.emit_p2, 512, 256))
    import p3
    KERNELS.append(("p3_kernel", 256, 512, 163840, p3.emit_p3, 256, 256))
    import p4
    KERNELS.append(("p4_kernel", 256, 512, 163840, p4.emit_p4, 256, 256))
except ImportError:
    pass

if __name__ == "__main__":
    out = sys.argv[1] if len(sys.argv) > 1 else "cdna_kernels/" + NAME + ".s"
    open(out, "w").write(build(KERNELS))
    print("wrote", out)
```

```python
import sys
from common import *
import gen
def emit_nop(a):
    kernel_begin(a, "nop_kernel")
    a("s_endpgm")
base = list(gen.KERNELS)
nop = ("nop_kernel", 256, 64, 0, emit_nop, 8, 8)
def build(kernels):
    a = Asm()
    hdr = open("cdna_kernels/" + gen.NAME + ".s.ref").read().split("\n")
    for line in hdr:
        if line.startswith("; Override launch") : break
        a(line)
    for (name, grid, block, lds, fn, vg, acc) in kernels:
        a(f"; @launch kernel={name} grid=({grid},1,1) block=({block},1,1) lds={lds}")
    a('.amdgcn_target "amdgcn-amd-amdhsa--gfx950"')
    a(".text")
    seen = []
    for k in kernels:
        if k[0] not in [s[0] for s in seen]: seen.append(k)
    for k in seen: k[4](a)
    a('.section .rodata,"a"')
    for k in seen: kernel_desc(a, k[0], k[5], k[6])
    return a.text()
open("varA.s","w").write(build(base))
open("varB.s","w").write(build(base + [nop]*4))
open("varC.s","w").write(build([nop]*4 + base))
```

```python
from common import *
import os
EXP = os.environ.get("EXP", "")
ST = os.environ.get("ST", "")
ST = (" " + ST) if ST else ""

S_WAVE, S_XCD, S_SLOT = 26, 27, 28
SRD_WS, SRD_A, SRD_B, SRD_PHI, SRD_DBG = 32, 36, 40, 44, 48

def emit_pack_dma(a, srd_reg, nins_per_wave, pitch, s_off_reg, lds_base_expr_reg, v_off):
    lp = a.label("pdma")
    a(f"s_mov_b32 s60, {nins_per_wave}")
    a(f"{lp}:")
    a(f"s_mov_b32 m0, s{lds_base_expr_reg}")
    a(f"s_add_u32 s{lds_base_expr_reg}, s{lds_base_expr_reg}, 1024")
    a(f"buffer_load_dwordx4 v{v_off}, s[{srd_reg}:{srd_reg+3}], s{s_off_reg} offen lds")
    a(f"s_add_u32 s{s_off_reg}, s{s_off_reg}, {8*pitch}")
    a(f"s_sub_u32 s60, s60, 1")
    a(f"s_cmp_lg_u32 s60, 0")
    a(f"s_cbranch_scc1 {lp}")

def emit_pack(a):
    a(f"s_sub_u32 s52, s{S_SLOT}, 24")
    a(f"s_lshl_b32 s52, s52, 3")
    a(f"s_add_u32 s52, s52, s{S_XCD}")
    a("s_cmp_ge_u32 s52, %d" % (0 if "nopack" in EXP else 57))
    a("s_cbranch_scc1 Lp1_end")
    a(f"s_cmp_ge_u32 s{S_WAVE}, 4")
    a("s_cbranch_scc1 Lp1_exit")
    a("v_and_b32 v1, 63, v0")
    a("v_lshlrev_b32 v2, 4, v1")
    a("v_lshrrev_b32 v3, 3, v1")
    a("v_and_b32 v4, 7, v1")
    a("v_lshlrev_b32 v4, 4, v4")
    a("v_lshrrev_b32 v5, 4, v1")
    a("v_bfe_u32 v6, v1, 2, 2")
    a("v_and_b32 v7, 3, v1")
    a("s_cmp_lt_u32 s52, 27")
    a("s_cbranch_scc0 Lp1_pack_not_gu")
    srd(a, SRD_A, 14, D*F*2)
    srd(a, SRD_B, 16, D*F*2)
    a("v_mul_u32_u24 v8, 3456, v3")
    a("v_add_u32 v8, v8, v4")
    a(f"s_mul_i32 s53, s{S_WAVE}, {20*8*3456}")
    a("s_lshl_b32 s54, s52, 7")
    a("s_add_u32 s53, s53, s54")
    a("s_mov_b32 s55, s53")
    a(f"s_mul_i32 s56, s{S_WAVE}, {20*1024}")
    a(f"s_add_u32 s57, s56, 81920")
    emit_pack_dma(a, SRD_A, 20, 3456, 53, 56, 8)
    emit_pack_dma(a, SRD_B, 20, 3456, 55, 57, 8)
    a("v_and_b32 v9, 1, v5")
    a("v_mul_u32_u24 v9, 81920, v9")
    a("v_lshrrev_b32 v10, 1, v5")
    a("v_lshlrev_b32 v10, 3, v10")
    a("v_add_u32 v10, v10, v6")
    a("v_lshlrev_b32 v10, 7, v10")
    a("v_add_u32 v9, v9, v10")
    a("v_and_b32 v10, 1, v7")
    a("v_lshlrev_b32 v10, 4, v10")
    a("v_add_u32 v9, v9, v10")
    a("v_lshrrev_b32 v10, 1, v7")
    a("v_lshlrev_b32 v10, 3, v10")
    a("v_add_u32 v9, v9, v10")
    a(f"s_lshl_b32 s53, s{S_WAVE}, 5")
    a("v_add_u32 v9, s53, v9")
    for i in range(4): a(f"v_mov_b32 v{12+i}, 0x3f803f80")
    for i in range(16): a(f"v_mov_b32 v{16+i}, 0")
    a("s_lshl_b32 s53, s52, 2")
    a(f"s_add_u32 s53, s53, s{S_WAVE}")
    a(f"s_mul_i32 s53, s53, {41*1024}")
    a(f"s_add_u32 s53, s53, {WS_WGU}")
    a("s_waitcnt vmcnt(0)")
    a("s_barrier")
    lp = a.label("gu")
    a("s_mov_b32 s60, 10")
    a(f"{lp}:")
    for u in range(4):
        a(f"ds_read_b64_tr_b16 v[{32+4*u}:{33+4*u}], v9 offset:{u*2048}")
        a(f"ds_read_b64_tr_b16 v[{34+4*u}:{35+4*u}], v9 offset:{u*2048+512}")
    a("v_add_u32 v9, 8192, v9")
    for u in range(4):
        a(f"s_waitcnt lgkmcnt({6-2*u})")
        a(f"v_mfma_f32_32x32x16_bf16 v[16:31], v[12:15], v[{32+4*u}:{35+4*u}], v[16:31]")
        a(f"buffer_store_dwordx4 v[{32+4*u}:{35+4*u}], v2, s[{SRD_WS}:{SRD_WS+3}], s53 offen{ST}")
        a("s_add_u32 s53, s53, 1024")
    a("s_sub_u32 s60, s60, 1")
    a("s_cmp_lg_u32 s60, 0")
    a(f"s_cbranch_scc1 {lp}")
    a.nop(14)
    a("v_cvt_pk_bf16_f32 v32, v16, v16")
    a("v_lshlrev_b32 v33, 16, v32")
    a("v_sub_f32 v34, v16, v33")
    a("v_cvt_pk_bf16_f32 v36, v33, v34")
    a("v_cmp_gt_u32 vcc, 32, v1")
    a.nop(2)
    a("v_cndmask_b32 v36, 0, v36, vcc")
    a("v_mov_b32 v37, v36")
    a("v_mov_b32 v38, 0")
    a("v_mov_b32 v39, 0")
    a(f"buffer_store_dwordx4 v[36:39], v2, s[{SRD_WS}:{SRD_WS+3}], s53 offen{ST}")
    a("s_branch Lp1_end")
    a("Lp1_pack_not_gu:")
    a("s_cmp_lt_u32 s52, 47")
    a("s_cbranch_scc0 Lp1_pack_wo")
    srd(a, SRD_A, 18, F*D*2)
    a("s_sub_u32 s52, s52, 27")
    a("s_lshr_b32 s58, s52, 1")
    a("s_and_b32 s59, s52, 1")
    a("v_mul_u32_u24 v8, 1280, v3")
    a("v_add_u32 v8, v8, v4")
    a(f"s_mul_i32 s53, s59, {864*1280}")
    a(f"s_mul_i32 s54, s{S_WAVE}, {27*8*1280}")
    a("s_add_u32 s53, s53, s54")
    a("s_lshl_b32 s54, s58, 7")
    a("s_add_u32 s53, s53, s54")
    a(f"s_mul_i32 s56, s{S_WAVE}, {27*1024}")
    emit_pack_dma(a, SRD_A, 27, 1280, 53, 56, 8)
    a("v_lshlrev_b32 v9, 3, v5")
    a("v_add_u32 v9, v9, v6")
    a("v_lshlrev_b32 v9, 7, v9")
    a("v_lshlrev_b32 v10, 3, v7")
    a("v_add_u32 v9, v9, v10")
    a(f"s_lshl_b32 s53, s{S_WAVE}, 5")
    a("v_add_u32 v9, s53, v9")
    a("s_lshl_b32 s53, s58, 2")
    a(f"s_add_u32 s53, s53, s{S_WAVE}")
    a("s_mul_i32 s54, s53, 52429")
    a("s_lshr_b32 s54, s54, 18")
    a("s_mul_i32 s55, s54, 5")
    a("s_sub_u32 s55, s53, s55")
    a("s_mul_i32 s54, s54, 54")
    a("s_mul_i32 s56, s59, 27")
    a("s_add_u32 s54, s54, s56")
    a("s_mul_i32 s54, s54, 5")
    a("s_add_u32 s54, s54, s55")
    a("s_lshl_b32 s53, s54, 10")
    a(f"s_add_u32 s53, s53, {WS_WD}")
    a("s_waitcnt vmcnt(0)")
    a("s_barrier")
    lp = a.label("wd")
    a("s_mov_b32 s60, 9")
    a(f"{lp}:")
    for u in range(3):
        a(f"ds_read_b64_tr_b16 v[{32+4*u}:{33+4*u}], v9 offset:{u*4096}")
        a(f"ds_read_b64_tr_b16 v[{34+4*u}:{35+4*u}], v9 offset:{u*4096+512}")
    a("v_add_u32 v9, 12288, v9")
    for u in range(3):
        a(f"s_waitcnt lgkmcnt({4-2*u})")
        a(f"buffer_store_dwordx4 v[{32+4*u}:{35+4*u}], v2, s[{SRD_WS}:{SRD_WS+3}], s53 offen{ST}")
        a("s_add_u32 s53, s53, 5120")
    a("s_sub_u32 s60, s60, 1")
    a("s_cmp_lg_u32 s60, 0")
    a(f"s_cbranch_scc1 {lp}")
    a("s_branch Lp1_end")
    a("Lp1_pack_wo:")
    srd(a, SRD_A, 10, D*D*2)
    a("s_sub_u32 s58, s52, 47")
    a("v_mul_u32_u24 v8, 1280, v3")
    a("v_add_u32 v8, v8, v4")
    a(f"s_mul_i32 s53, s{S_WAVE}, {20*8*1280}")
    a("s_lshl_b32 s54, s58, 7")
    a("s_add_u32 s53, s53, s54")
    a(f"s_mul_i32 s56, s{S_WAVE}, {20*1024}")
    emit_pack_dma(a, SRD_A, 20, 1280, 53, 56, 8)
    a("v_and_b32 v10, 1, v5")
    a("v_lshlrev_b32 v10, 5, v10")
    a("v_lshlrev_b32 v11, 3, v7")
    a("v_add_u32 v10, v10, v11")
    a(f"s_and_b32 s53, s{S_WAVE}, 1")
    a("s_lshl_b32 s53, s53, 6")
    a(f"s_lshr_b32 s54, s{S_WAVE}, 1")
    a("s_mul_i32 s54, s54, 40960")
    a("s_add_u32 s53, s53, s54")
    a("v_add_u32 v10, s53, v10")
    a("v_lshrrev_b32 v11, 1, v5")
    a("v_lshlrev_b32 v9, 2, v11")
    a("v_add_u32 v9, v9, v6")
    a("v_lshlrev_b32 v9, 7, v9")
    a("v_add_u32 v9, v9, v10")
    a("v_mul_u32_u24 v11, 20, v11")
    a("v_add_u32 v11, v11, v6")
    a("v_add_u32 v11, 16, v11")
    a("v_lshlrev_b32 v11, 7, v11")
    a("v_add_u32 v11, v11, v10")
    a("s_lshl_b32 s53, s58, 1")
    a(f"s_and_b32 s54, s{S_WAVE}, 1")
    a("s_add_u32 s53, s53, s54")
    a("s_mul_i32 s54, s53, 52429")
    a("s_lshr_b32 s54, s54, 18")
    a("s_mul_i32 s55, s54, 5")
    a("s_sub_u32 s55, s53, s55")
    a("s_lshl_b32 s54, s54, 3")
    a(f"s_lshr_b32 s56, s{S_WAVE}, 1")
    a("s_lshl_b32 s56, s56, 2")
    a("s_add_u32 s54, s54, s56")
    a("s_mul_i32 s54, s54, 25")
    a("s_add_u32 s54, s54, s55")
    a("s_lshl_b32 s53, s54, 10")
    a(f"s_add_u32 s53, s53, {WS_WOP}")
    a("s_waitcnt vmcnt(0)")
    a("s_barrier")
    for Qi in range(4):
        for m in range(5):
            b = 32 + 4*m
            if m < 4:
                o = (4*Qi+m)*2560
                a(f"ds_read_b64_tr_b16 v[{b}:{b+1}], v9 offset:{o}")
                a(f"ds_read_b64_tr_b16 v[{b+2}:{b+3}], v9 offset:{o+1024}")
            else:
                o = Qi*10240
                a(f"ds_read_b64_tr_b16 v[{b}:{b+1}], v11 offset:{o}")
                a(f"ds_read_b64_tr_b16 v[{b+2}:{b+3}], v11 offset:{o+5120}")
        for m in range(5):
            b = 32 + 4*m
            a(f"s_waitcnt lgkmcnt({8-2*m})")
            a(f"buffer_store_dwordx4 v[{b}:{b+3}], v2, s[{SRD_WS}:{SRD_WS+3}], s53 offen{ST}")
            a("s_add_u32 s53, s53, 5120")
        a.nop(2)
    a("s_branch Lp1_end")

LDS_WPHI = 0
LDS_ZERO = 8192
LDS_CS   = 9216
LDS_STAT = 10496
XR_BASE, XR_STG, XR_N = 12288, 16384, 4
WR_BASE, WR_STG, WR_N = 77824, 12288, 7
LDS_PHI = 12288
PHI_P = 352
LDS_V = 57344
V_P = 224
LDS_KVO = 86016
LDS_ACCX = 100352

V_WR = 2
V_XR0, V_XR1 = 12, 13
V_ONES = 16
V_ACC = 20
V_CS = 100
V_A0, V_A1 = 120, 160
V_B0, V_B1 = 200, 208
V_SX, V_SQ = 216, 224

S_ROLE, S_RB, S_HG, S_ZERO = 59, 61, 62, 63
S_L2E = 64

def acc(mt, T): return V_ACC + (mt*10 + T)*4

def mf16(d, A, B, c=None):
    c = d if c is None else c
    return f"v_mfma_f32_16x16x32_bf16 v[{d}:{d+3}], v[{A}:{A+3}], v[{B}:{B+3}], v[{c}:{c+3}]"

def frag_reads(setA, setB, vx):
    R = []
    for mt in range(2):
        R.append(f"ds_read_b128 v[{setB+4*mt}:{setB+4*mt+3}], v{vx} offset:{mt*2048}")
    for T in range(10):
        arr, t = divmod(T, 5)
        off = arr*6144
        R.append(f"ds_read_b64_tr_b16 v[{setA+4*T}:{setA+4*T+1}], v{V_WR+5*arr+t} offset:{off}")
        R.append(f"ds_read_b64_tr_b16 v[{setA+4*T+2}:{setA+4*T+3}], v{V_WR+5*arr+t} offset:{off+8*192}")
    return R

def emit_step(a, curA, curB, reads, cs_waves, fill=()):
    fill = list(fill)
    M = []
    for T in range(10):
        for mt in range(2):
            M.append(mf16(acc(mt, T), curA+4*T, curB+4*mt))
        if T == 4:
            for mt in range(2):
                M.append(mf16(V_SX+4*mt, V_ONES, curB+4*mt))
    for mt in range(2):
        M.append(mf16(V_SQ+4*mt, curB+4*mt, curB+4*mt))
    ri = 0
    for k, m in enumerate(M):
        if "nomfma" not in EXP: a(m)
        for _ in range(2):
            if ri < len(reads):
                a(reads[ri]); ri += 1
            elif fill:
                a(fill.pop(0))
    assert ri == len(reads)
    for f in fill: a(f)
    for wv in cs_waves:
        lb = a.label("cs")
        a(f"s_cmp_lg_u32 s{S_WAVE}, {wv}")
        a(f"s_cbranch_scc1 {lb}")
        arr = wv >> 1
        for t in range(5):
            a(mf16(V_CS+4*t, curA+4*(arr*5+t), V_ONES))
        a(f"{lb}:")

def adv_w():
    L = [f"s_add_u32 s54, s54, {WR_STG}\ns_cmp_ge_u32 s54, {WR_N*WR_STG}\ns_cselect_b32 s58, s77, s76\ns_cselect_b32 s54, 0, s54"]
    for i in range(10): L.append(f"v_add_u32 v{V_WR+i}, s58, v{V_WR+i}")
    return L
def adv_x():
    return [f"s_add_u32 s55, s55, {XR_STG}\ns_cmp_ge_u32 s55, {XR_N*XR_STG}\ns_cselect_b32 s56, s79, s78\ns_cselect_b32 s55, 0, s55",
            f"v_add_u32 v{V_XR0}, s56, v{V_XR0}", f"v_add_u32 v{V_XR1}, s56, v{V_XR1}"]

def emit_delta(a):
    a(f"s_mul_i32 s68, s{S_HG}, 160")
    a("s_add_u32 s69, s68, 2560")
    a("s_add_u32 s68, s68, 1280")
    a(f"s_mul_i32 s70, s{S_HG}, 320")
    a("s_add_u32 s71, s70, 160")
    a(f"s_cmp_eq_u32 s{S_ROLE}, 0")
    a("s_cselect_b32 s68, s68, s70")
    a("s_cselect_b32 s69, s69, s71")
    a("s_and_b32 s66, s68, 63")
    a("s_and_b32 s67, s69, 63")
    a("s_sub_u32 s68, s68, s66")
    a("s_sub_u32 s69, s69, s67")

def emit_loader(a):
    srd(a, SRD_A, 4, S*D*2)
    srd(a, SRD_B, 6, D*3*D*2)
    a("v_and_b32 v1, 63, v0")
    a("v_lshrrev_b32 v14, 3, v1")
    a("v_and_b32 v32, 7, v1")
    a("v_xor_b32 v32, v32, v14")
    a("v_lshlrev_b32 v32, 4, v32")
    a("v_mul_u32_u24 v14, 1280, v14")
    a("v_add_u32 v2, v14, v32")
    a(f"s_lshl_b32 s60, s{S_RB}, 7")
    a(f"s_lshl_b32 s52, s{S_WAVE}, 5")
    a("s_add_u32 s60, s60, s52")
    a("s_mul_i32 s52, s60, 1280")
    a(f"s_lshl_b32 s55, s{S_WAVE}, 12")
    a(f"s_add_u32 s55, s55, {XR_BASE}")
    for i in range(1, 4):
        a(f"v_add_u32 v{2+i}, {i*(10240-1024)}, v2")
    q = []
    xs = [0]; ws = [0]
    def issue_x():
        s = xs[0]
        a(f"s_add_u32 m0, s55, {(s % XR_N)*XR_STG}")
        a("s_nop 0")
        for i in range(4):
            a(f"buffer_load_dwordx4 v{2+i}, s[{SRD_A}:{SRD_A+3}], s52 offen offset:{i*1024} lds")
        a("s_add_u32 s52, s52, 128")
        q.append((f"X{s}", 4)); xs[0] += 1
    def issue_w():
        s = ws[0]
        a(f"s_add_u32 m0, s56, {(s % WR_N)*WR_STG}")
        a("s_nop 0")
        for j in range(3):
            a(f"buffer_load_dwordx4 v{6+j}, s[{SRD_B}:{SRD_B+3}], s53 offen offset:{j*1024} lds")
        a(f"s_add_u32 s53, s53, {32*3840}")
        q.append((f"W{s}", 3)); ws[0] += 1
    done = [-1]
    def need(names):
        last = max(i for i, (n, c) in enumerate(q) if n in names)
        if last <= done[0]: return
        done[0] = last
        a(f"s_waitcnt vmcnt({sum(c for n, c in q[last+1:])})")
    issue_x()
    emit_delta(a)
    a(f"s_and_b32 s70, s{S_WAVE}, 1")
    a("s_mul_i32 s71, s70, 192")
    for j in range(3):
        a(f"s_add_u32 s72, s71, {64*j}")
        a("v_add_u32 v32, s72, v1")
        a("v_mul_u32_u24 v33, 5462, v32")
        a("v_lshrrev_b32 v33, 16, v33")
        a("v_mul_u32_u24 v34, 12, v33")
        a("v_sub_u32 v34, v32, v34")
        a("v_bfe_u32 v36, v33, 2, 1")
        a("v_lshlrev_b32 v36, 1, v36")
        a("v_xor_b32 v34, v34, v36")
        a("v_and_b32 v35, 0x13, v33")
        a("v_and_b32 v36, 4, v33")
        a("v_lshlrev_b32 v36, 1, v36")
        a("v_or_b32 v35, v35, v36")
        a("v_and_b32 v36, 8, v33")
        a("v_lshrrev_b32 v36, 1, v36")
        a("v_or_b32 v35, v35, v36")
        a("v_mul_u32_u24 v35, 3840, v35")
        a("v_lshlrev_b32 v34, 4, v34")
        a(f"v_add_u32 v{6+j}, v35, v34")
        if j: a(f"v_subrev_u32 v{6+j}, {1024*j}, v{6+j}")
    a(f"s_lshr_b32 s71, s{S_WAVE}, 1")
    a("s_cmp_eq_u32 s71, 0")
    a("s_cselect_b32 s53, s68, s69")
    a("s_mul_i32 s56, s71, 6144")
    a("s_mul_i32 s72, s70, 3072")
    a("s_add_u32 s56, s56, s72")
    a(f"s_add_u32 s56, s56, {WR_BASE}")
    issue_w(); issue_w()
    srd(a, SRD_PHI, 8, H*DH*DH*2)
    a(f"s_mul_i32 s68, s{S_HG}, 3200")
    a(f"s_mul_i32 s69, s{S_HG}, 6400")
    a(f"s_cmp_eq_u32 s{S_ROLE}, 0")
    a("s_cselect_b32 s68, s68, s69")
    a(f"s_lshl_b32 s69, s{S_WAVE}, 11")
    a("s_add_u32 s68, s68, s69")
    a(f"s_add_u32 m0, s69, {LDS_WPHI}")
    a("v_lshlrev_b32 v14, 4, v1")
    a(f"buffer_load_dwordx4 v14, s[{SRD_PHI}:{SRD_PHI+3}], s68 offen lds")
    a(f"buffer_load_dwordx4 v14, s[{SRD_PHI}:{SRD_PHI+3}], s68 offen offset:1024 lds")
    q.append(("PHI", 2))
    issue_x(); issue_w(); issue_w(); issue_x(); issue_w(); issue_w(); issue_x(); issue_w()
    need(["X0", "W0", "W1"])
    stamp(a, 2)
    a("s_barrier")
    for i in range(10):
        names = []
        if i + 1 < 10: names = [f"W{2*i+2}", f"W{2*i+3}", f"X{i+1}"]
        if names: need(names)
        a("s_barrier")
        if 2*i + 7 < 20: issue_w()
        if i + 4 < 10: issue_x()
        if 2*i + 8 < 20: issue_w()
    need(["PHI"])
    a("s_barrier")
    emit_epi_loader(a)

def emit_main(a):
    srd(a, SRD_DBG, 22, 256)
    a("v_and_b32 v1, 63, v0")
    a(f"s_mov_b32 s{S_ZERO}, 0")
    lb_not = a.label("noticket")
    a(f"s_cmp_lg_u32 s{S_ROLE}, 0")
    a(f"s_cbranch_scc1 {lb_not}")
    a(f"s_cmp_lg_u32 s{S_WAVE}, 0")
    a(f"s_cbranch_scc1 {lb_not}")
    a(f"s_lshl_b32 s60, s{S_HG}, 2")
    a("v_mov_b32 v14, s60")
    a("v_mov_b32 v15, 1")
    a("s_mov_b64 exec, 1")
    a(f"buffer_atomic_add v15, v14, s[{SRD_DBG}:{SRD_DBG+3}], 0 offen sc0")
    a("s_mov_b64 exec, -1")
    a(f"{lb_not}:")
    a("v_and_b32 v232, 15, v1")
    a("v_lshrrev_b32 v233, 4, v1")
    a("v_and_b32 v234, 7, v232")
    a("v_xor_b32 v234, v234, v233")
    a("v_lshlrev_b32 v234, 4, v234")
    a("v_lshlrev_b32 v235, 7, v232")
    a("v_add_u32 v234, v234, v235")
    a(f"s_lshl_b32 s60, s{S_WAVE}, 12")
    a(f"s_add_u32 s60, s60, {XR_BASE}")
    a(f"v_add_u32 v{V_XR0}, s60, v234")
    a(f"v_xor_b32 v{V_XR1}, 64, v{V_XR0}")
    emit_delta(a)
    a("v_bfe_u32 v234, v1, 2, 2")
    a("v_and_b32 v235, 1, v233")
    a("v_lshlrev_b32 v236, 2, v235")
    a("v_add_u32 v234, v234, v236")
    a("v_lshrrev_b32 v236, 1, v233")
    a("v_lshlrev_b32 v236, 4, v236")
    a("v_add_u32 v234, v234, v236")
    a("v_mul_u32_u24 v234, 192, v234")
    a(f"v_add_u32 v234, {WR_BASE}, v234")
    a("v_lshlrev_b32 v235, 5, v235")
    a("v_and_b32 v236, 3, v1")
    a("v_mul_u32_u24 v236, 40, v236")
    for arr in range(2):
        a(f"v_add_u32 v237, s{66+arr}, v236")
        for t in range(5):
            a(f"v_add_u32 v238, {8*t}, v237")
            a("v_xor_b32 v238, v238, v235")
            a(f"v_add_u32 v{V_WR+5*arr+t}, v238, v234")
    for i in range(4): a(f"v_mov_b32 v{V_ONES+i}, 0x3f803f80")
    for r in range(V_ACC, V_CS+20): a(f"v_mov_b32 v{r}, 0")
    for r in range(V_SX, V_SX+16): a(f"v_mov_b32 v{r}, 0")
    a("v_lshlrev_b32 v232, 2, v0")
    a("v_mov_b32 v233, 0")
    a(f"ds_write_b32 v232, v233 offset:{LDS_ZERO}")
    a("s_mov_b32 s57, 0")
    a("s_mov_b32 s54, 0")
    a("s_mov_b32 s55, 0")
    a(f"s_mov_b32 s76, {WR_STG}")
    a(f"s_mov_b32 s77, {(-(WR_N-1)*WR_STG) & 0xffffffff}")
    a(f"s_mov_b32 s78, {XR_STG}")
    a(f"s_mov_b32 s79, {(-(XR_N-1)*XR_STG) & 0xffffffff}")
    lb_nz = a.label("nozero")
    a(f"s_cmp_lg_u32 s{S_ROLE}, 0")
    a(f"s_cbranch_scc1 {lb_nz}")
    a(f"s_cmp_lg_u32 s{S_WAVE}, 0")
    a(f"s_cbranch_scc1 {lb_nz}")
    a("s_waitcnt vmcnt(0)")
    a("v_readfirstlane_b32 s60, v15")
    a("s_nop 3")
    a("s_cmp_lg_u32 s60, 0")
    a(f"s_cbranch_scc1 {lb_nz}")
    a(f"s_mov_b32 s{S_ZERO}, 1")
    a("s_mov_b32 s72, s24\ns_mov_b32 s73, s25")
    a(f"s_add_u32 s74, s{S_HG}, 1")
    a(f"s_mul_i32 s74, s74, 13440")
    a("s_mov_b32 s75, 0x00020000")
    a(f"s_mul_i32 s60, s{S_HG}, 13440")
    a("v_lshlrev_b32 v232, 4, v1")
    for i in range(4): a(f"v_mov_b32 v{236+i}, 0")
    for i in range(14):
        a(f"buffer_store_dwordx4 v[236:239], v232, s[72:75], s60 offen sc1")
        a("s_add_u32 s60, s60, 1024")
    a(f"{lb_nz}:")
    a("s_waitcnt lgkmcnt(0)")
    stamp(a, 2)
    a("s_barrier")
    stamp(a, 3)
    for r in frag_reads(V_A0, V_B0, V_XR0): a(r)
    for f in adv_w(): a(f)
    a("s_waitcnt lgkmcnt(0)")
    lp = a.label("main")
    a(f"{lp}:")
    emit_step(a, V_A0, V_B0, frag_reads(V_A1, V_B1, V_XR1), [0, 2], adv_w() + adv_x())
    if "bw" in EXP: a("s_memtime s[64:65]")
    a("s_waitcnt lgkmcnt(0)")
    if "bw" in EXP: a("s_memtime s[66:67]")
    a("s_barrier")
    if "bw" in EXP:
        a("s_memtime s[68:69]")
        a("s_waitcnt lgkmcnt(0)")
        a("s_sub_u32 s70, s66, s64\ns_add_u32 s92, s92, s70")
        a("s_sub_u32 s70, s68, s66\ns_add_u32 s94, s94, s70")
    emit_step(a, V_A1, V_B1, frag_reads(V_A0, V_B0, V_XR0), [1, 3], adv_w())
    lb_f = a.label("noflag")
    a(f"s_cmp_lg_u32 s{S_ZERO}, 1")
    a(f"s_cbranch_scc1 {lb_f}")
    a(f"s_cmp_lg_u32 s57, 1")
    a(f"s_cbranch_scc1 {lb_f}")
    a("s_waitcnt vmcnt(0)")
    a(f"s_lshl_b32 s60, s{S_HG}, 2")
    a("s_add_u32 s60, s60, 32")
    a("v_mov_b32 v14, s60")
    a("v_mov_b32 v15, 1")
    a("s_mov_b64 exec, 1")
    a(f"buffer_store_dword v15, v14, s[{SRD_DBG}:{SRD_DBG+3}], 0 offen sc1")
    a("s_mov_b64 exec, -1")
    a(f"{lb_f}:")
    a("s_waitcnt lgkmcnt(0)")
    a("s_add_u32 s57, s57, 1")
    a("s_cmp_lt_u32 s57, 10")
    a(f"s_cbranch_scc1 {lp}")

def emit_softmax(a, P, E, OUT, T0):
    mx, mn = T0, T0+2
    a(f"v_max3_f32 v{mx}, v{P}, v{P+1}, v{P+2}")
    a(f"v_min3_f32 v{mn}, v{P}, v{P+1}, v{P+2}")
    for i in range(3, 19, 2):
        a(f"v_max3_f32 v{mx}, v{mx}, v{P+i}, v{P+i+1}")
        a(f"v_min3_f32 v{mn}, v{mn}, v{P+i}, v{P+i+1}")
    a(f"v_max_f32 v{mx}, v{mx}, v{P+19}")
    a(f"v_min_f32 v{mn}, v{mn}, v{P+19}")
    a(f"v_mul_f32 v{mx}, s{S_L2E+1}, v{mx}")
    a(f"v_mul_f32 v{mn}, s{S_L2E}, v{mn}")
    for i in range(10):
        a(f"v_pk_fma_f32 v[{E+2*i}:{E+2*i+1}], v[{P+2*i}:{P+2*i+1}], s[70:71], v[{mx}:{mx+1}] op_sel_hi:[1,1,0]")
        a(f"v_pk_fma_f32 v[{P+2*i}:{P+2*i+1}], v[{P+2*i}:{P+2*i+1}], s[70:71], v[{mn}:{mn+1}] op_sel_hi:[1,1,0] neg_lo:[1,0,0] neg_hi:[1,0,0]")
    for i in range(20):
        a(f"v_exp_f32 v{E+i}, v{E+i}")
        a(f"v_exp_f32 v{P+i}, v{P+i}")
    a.nop(1)
    sp, sm = T0, T0+2
    a(f"v_pk_add_f32 v[{sp}:{sp+1}], v[{E}:{E+1}], v[{E+2}:{E+3}]")
    a(f"v_pk_add_f32 v[{sm}:{sm+1}], v[{P}:{P+1}], v[{P+2}:{P+3}]")
    for i in range(2, 10):
        a(f"v_pk_add_f32 v[{sp}:{sp+1}], v[{sp}:{sp+1}], v[{E+2*i}:{E+2*i+1}]")
        a(f"v_pk_add_f32 v[{sm}:{sm+1}], v[{sm}:{sm+1}], v[{P+2*i}:{P+2*i+1}]")
    a(f"v_add_f32 v{sp}, v{sp}, v{sp+1}")
    a(f"v_add_f32 v{sm}, v{sm}, v{sm+1}")
    a(f"v_rcp_f32 v{sp}, v{sp}")
    a(f"v_rcp_f32 v{sm}, v{sm}")
    a.nop(1)
    for i in range(10):
        a(f"v_pk_mul_f32 v[{E+2*i}:{E+2*i+1}], v[{E+2*i}:{E+2*i+1}], v[{sp}:{sp+1}] op_sel_hi:[1,0]")
        a(f"v_pk_mul_f32 v[{P+2*i}:{P+2*i+1}], v[{P+2*i}:{P+2*i+1}], v[{sm}:{sm+1}] op_sel_hi:[1,0]")
    for i in range(10):
        a(f"v_cvt_pk_bf16_f32 v{OUT+i}, v{E+2*i}, v{E+2*i+1}")
        a(f"v_cvt_pk_bf16_f32 v{OUT+10+i}, v{P+2*i}, v{P+2*i+1}")

def mf16k16(d, A, B):
    return f"v_mfma_f32_16x16x16_bf16 v[{d}:{d+3}], v[{A}:{A+1}], v[{B}:{B+1}], v[{d}:{d+3}]"

def emit_phi_frags(a, dst, vaddr):
    for t in range(5):
        b = dst + 10*t
        for kk in range(2):
            for q in range(2):
                a(f"ds_read_b64_tr_b16 v[{b+4*kk+2*q}:{b+4*kk+2*q+1}], v{vaddr} offset:{(8*kk+4*q)*40+8*t}")
        a(f"ds_read_b64_tr_b16 v[{b+8}:{b+9}], v{vaddr} offset:{16*40+8*t}")

def emit_phi_mfma(a, PF, KB, P):
    for t in range(5):
        b = PF + 10*t
        d = P + 4*t
        a(f"v_mfma_f32_16x16x32_bf16 v[{d}:{d+3}], v[{b}:{b+3}], v[{KB}:{KB+3}], 0")
    for t in range(5):
        b = PF + 10*t
        d = P + 4*t
        a(f"v_mfma_f32_16x16x32_bf16 v[{d}:{d+3}], v[{b+4}:{b+7}], v[{KB+4}:{KB+7}], v[{d}:{d+3}]")
    for t in range(5):
        b = PF + 10*t
        d = P + 4*t
        a(mf16k16(d, b+8, KB+8))

def emit_phi_addr(a, dst, hh):
    a("v_lshrrev_b32 v232, 4, v1")
    a("v_and_b32 v233, 3, v1")
    a("v_bfe_u32 v234, v1, 2, 2")
    a("v_mul_u32_u24 v234, 40, v234")
    a("v_mul_u32_u24 v235, 800, v232")
    a(f"v_add_u32 v235, {LDS_WPHI+hh*3200}, v235")
    a("v_cmp_eq_u32 vcc, v232, v233")
    a(f"v_mov_b32 v236, {LDS_ZERO}")
    a.nop(1)
    a("v_cndmask_b32 v235, v236, v235, vcc")
    a(f"v_add_u32 v{dst}, v235, v234")

def emit_consts(a):
    a(f"s_mov_b32 s{S_L2E}, 0x3fb8aa3b")
    a(f"s_mov_b32 s{S_L2E+1}, 0xbfb8aa3b")
    a("s_mov_b32 s70, 0x3fb8aa3b")
    a("s_mov_b32 s71, 0x3fb8aa3b")

PF = 120
CSR = 170
KB = 190
PP = 100
EE = 210

def emit_cs_read(a, arr):
    a("v_lshrrev_b32 v233, 4, v1")
    a("v_lshlrev_b32 v234, 4, v233")
    for t in range(5):
        a(f"ds_read_b128 v[{CSR+4*t}:{CSR+4*t+3}], v234 offset:{LDS_CS+(2*arr)*320+64*t}")
        a(f"ds_read_b128 v[{CSR+20+4*t}:{CSR+20+4*t+3}], v234 offset:{LDS_CS+(2*arr+1)*320+64*t}")
    a("s_waitcnt lgkmcnt(0)")
    for i in range(10):
        a(f"v_pk_add_f32 v[{CSR+2*i}:{CSR+2*i+1}], v[{CSR+2*i}:{CSR+2*i+1}], v[{CSR+20+2*i}:{CSR+20+2*i+1}]")

def emit_stat_read(a, cw_reg):
    a("v_and_b32 v232, 15, v1")
    a("v_lshlrev_b32 v232, 3, v232")
    a(f"s_lshl_b32 s60, s{cw_reg}, 8")
    a("v_add_u32 v232, s60, v232")
    a(f"ds_read_b64 v[230:231], v232 offset:{LDS_STAT}")
    a(f"ds_read_b64 v[240:241], v232 offset:{LDS_STAT+128}")

def emit_ln(a, R, st):
    for i in range(10):
        r = R + 2*i
        a(f"v_pk_mul_f32 v[206:207], v[{CSR+2*i}:{CSR+2*i+1}], v[{st}:{st+1}] op_sel:[0,1] op_sel_hi:[1,1]")
        a(f"v_pk_fma_f32 v[{r}:{r+1}], v[{r}:{r+1}], v[{st}:{st+1}], v[206:207] op_sel_hi:[1,0,1]")

def emit_unit(a, R):
    for t in range(5):
        r = R + 4*t
        a(f"v_cvt_pk_bf16_f32 v{KB+2*t}, v{r}, v{r+1}")
        a(f"v_cvt_pk_bf16_f32 v{KB+2*t+1}, v{r+2}, v{r+3}")
    a.nop(2)
    emit_phi_mfma(a, PF, KB, PP)
    a.nop(8)
    emit_softmax(a, PP, EE, R, 250)

def phi_write_addr(a, cw_reg):
    a("v_and_b32 v232, 15, v1")
    a("v_lshrrev_b32 v233, 4, v1")
    a(f"s_lshl_b32 s60, s{cw_reg}, 5")
    a("v_add_u32 v232, s60, v232")
    a(f"v_mul_u32_u24 v234, {PHI_P}, v232")
    a("v_mul_u32_u24 v235, 80, v233")
    a("v_add_u32 v248, v234, v235")
    a(f"v_mul_u32_u24 v234, {V_P}, v232")
    a("v_mul_u32_u24 v235, 48, v233")
    a("v_add_u32 v249, v234, v235")
    a(f"v_add_u32 v249, {LDS_V}, v249")

def q_store_addr(a, cw_reg, hh):
    a("v_and_b32 v232, 15, v1")
    a("v_lshrrev_b32 v233, 4, v1")
    a("v_mul_u32_u24 v233, 2560, v233")
    a("v_lshlrev_b32 v232, 4, v232")
    a("v_add_u32 v248, v232, v233")
    a(f"s_lshl_b32 s60, s{S_RB}, 2")
    a(f"s_add_u32 s60, s60, s{cw_reg}")
    a("s_lshl_b32 s60, s60, 5")
    a(f"s_lshl_b32 s68, s{S_HG}, 3")
    a("s_add_u32 s60, s60, s68")
    if hh: a("s_add_u32 s60, s60, 4")
    a("s_mul_i32 s60, s60, 2560")
    a(f"s_add_u32 s69, s60, {WS_PHIQ}")

def emit_epi_loader(a):
    emit_consts(a)
    RX = 20
    a("v_lshlrev_b32 v2, 4, v1")
    a(f"s_mul_i32 s60, s{S_WAVE}, 10240")
    a(f"s_add_u32 s60, s60, {LDS_ACCX}")
    a("v_add_u32 v2, s60, v2")
    a(f"s_cmp_eq_u32 s{S_ROLE}, 0")
    a("s_cbranch_scc0 Lp1_ld_q")
    for t in range(5):
        a(f"ds_read_b128 v[{RX+4*t}:{RX+4*t+3}], v2 offset:{t*1024}")
    emit_stat_read(a, S_WAVE)
    emit_phi_addr(a, 14, 0)
    emit_phi_frags(a, PF, 14)
    emit_cs_read(a, 0)
    emit_ln(a, RX, 240)
    emit_unit(a, RX)
    phi_write_addr(a, S_WAVE)
    for i in range(5):
        a(f"ds_write_b128 v248, v[{RX+4*i}:{RX+4*i+3}] offset:{LDS_PHI+16*PHI_P+16*i}")
    a("s_waitcnt lgkmcnt(0)")
    a("s_barrier")
    a("s_branch Lp1_exit")
    a("Lp1_ld_q:")
    for t in range(10):
        a(f"ds_read_b128 v[{RX+4*t}:{RX+4*t+3}], v2 offset:{t*1024}")
    emit_stat_read(a, S_WAVE)
    emit_phi_addr(a, 14, 1)
    emit_phi_frags(a, PF, 14)
    emit_cs_read(a, 1)
    q_store_addr(a, S_WAVE, 1)
    for mt in range(2):
        R = RX + 20*mt
        emit_ln(a, R, 230 if mt == 0 else 240)
        emit_unit(a, R)
        for p in range(5):
            a(f"buffer_store_dwordx4 v[{R+4*p}:{R+4*p+3}], v248, s[{SRD_WS}:{SRD_WS+3}], s69 offen offset:{p*512+mt*256}{ST}")
    a("s_branch Lp1_exit")

def emit_epi_common(a):
    a.nop(8)
    a("v_and_b32 v232, 15, v1")
    a("v_lshrrev_b32 v233, 4, v1")
    a("v_lshlrev_b32 v234, 4, v233")
    a(f"s_mul_i32 s60, s{S_WAVE}, 320")
    a(f"v_add_u32 v234, s60, v234")
    a("v_lshlrev_b32 v2, 4, v1")
    a(f"s_mul_i32 s60, s{S_WAVE}, 10240")
    a(f"s_add_u32 s60, s60, {LDS_ACCX}")
    a("v_add_u32 v2, s60, v2")
    lbq = a.label("xq"); lbd = a.label("xd")
    a(f"s_cmp_eq_u32 s{S_ROLE}, 0")
    a(f"s_cbranch_scc0 {lbq}")
    for t in range(5):
        a(f"ds_write_b128 v2, v[{acc(1,t)}:{acc(1,t)+3}] offset:{t*1024}")
    a(f"s_branch {lbd}")
    a(f"{lbq}:")
    for mt in range(2):
        for t in range(5):
            a(f"ds_write_b128 v2, v[{acc(mt,5+t)}:{acc(mt,5+t)+3}] offset:{(mt*5+t)*1024}")
    a(f"{lbd}:")
    a("v_cmp_eq_u32 vcc, 0, v232")
    a("s_and_saveexec_b64 s[68:69], vcc")
    for t in range(5):
        a(f"ds_write_b128 v234, v[{V_CS+4*t}:{V_CS+4*t+3}] offset:{LDS_CS+64*t}")
    a("s_mov_b64 exec, s[68:69]")
    a("v_and_b32 v234, 3, v1")
    a("v_cmp_eq_u32 s[68:69], 1, v234")
    a("v_cmp_eq_u32 s[70:71], 2, v234")
    a("v_cmp_eq_u32 s[72:73], 3, v234")
    a("v_lshrrev_b32 v235, 2, v232")
    a("v_lshlrev_b32 v235, 4, v235")
    a("v_add_u32 v235, v235, v232")
    a("v_lshlrev_b32 v235, 2, v235")
    for mt in range(2):
        q = V_SQ+4*mt
        a(f"v_cndmask_b32 v{236+mt}, v{q}, v{q+1}, s[68:69]")
        a(f"v_cndmask_b32 v{236+mt}, v{236+mt}, v{q+2}, s[70:71]")
        a(f"v_cndmask_b32 v{236+mt}, v{236+mt}, v{q+3}, s[72:73]")
    for mt in range(2):
        a(f"ds_bpermute_b32 v{238+mt}, v235, v{236+mt}")
    a("s_mov_b32 s60, 0x3acccccd")
    a("s_waitcnt lgkmcnt(0)")
    for mt in range(2):
        st = 240 + 2*mt
        a(f"v_mul_f32 v{236+mt}, s60, v{V_SX+4*mt}")
        a(f"v_mul_f32 v{238+mt}, s60, v{238+mt}")
        a(f"v_fma_f32 v{238+mt}, -v{236+mt}, v{236+mt}, v{238+mt}")
        a(f"v_max_f32 v{238+mt}, 0, v{238+mt}")
        a(f"v_add_f32 v{238+mt}, 0x3727c5ac, v{238+mt}")
        a(f"v_rsq_f32 v{st}, v{238+mt}")
        a.nop(1)
        a(f"v_mul_f32 v{st+1}, v{236+mt}, v{st}")
        a(f"v_sub_f32 v{st+1}, 0, v{st+1}")
    a("v_lshlrev_b32 v232, 3, v232")
    a(f"s_lshl_b32 s60, s{S_WAVE}, 8")
    a("v_add_u32 v232, s60, v232")
    a("s_mov_b64 exec, 0xffff")
    for mt in range(2):
        a(f"ds_write_b64 v232, v[{240+2*mt}:{241+2*mt}] offset:{LDS_STAT+128*mt}")
    a("s_mov_b64 exec, -1")
    a("s_waitcnt lgkmcnt(0)")
    a("s_barrier")

def emit_epi_kv(a):
    emit_consts(a)
    emit_stat_read(a, S_WAVE)
    emit_phi_addr(a, 14, 0)
    emit_phi_frags(a, PF, 14)
    phi_write_addr(a, S_WAVE)
    emit_cs_read(a, 1)
    for mt in range(2):
        emit_ln(a, acc(mt, 5), 230 if mt == 0 else 240)
        vb = 210
        for t in range(5):
            r = acc(mt, 5+t)
            a(f"v_cvt_pk_bf16_f32 v{vb+2*t}, v{r}, v{r+1}")
            a(f"v_cvt_pk_bf16_f32 v{vb+2*t+1}, v{r+2}, v{r+3}")
        a(f"v_mov_b32 v{vb+10}, 0x3f80")
        a(f"v_mov_b32 v{vb+11}, 0")
        for i in range(3):
            a(f"ds_write_b128 v249, v[{vb+4*i}:{vb+4*i+3}] offset:{mt*16*V_P+16*i}")
        a.nop(2)
    emit_cs_read(a, 0)
    emit_ln(a, acc(0, 0), 230)
    emit_unit(a, acc(0, 0))
    o = acc(0, 0)
    for i in range(5):
        a(f"ds_write_b128 v248, v[{o+4*i}:{o+4*i+3}] offset:{LDS_PHI+16*i}")
    a("s_waitcnt lgkmcnt(0)")
    a("s_barrier")
    if "bw" not in EXP: stamp(a, 6)
    a("v_lshrrev_b32 v232, 4, v1")
    a("v_lshlrev_b32 v232, 2, v232")
    a("v_bfe_u32 v233, v1, 2, 2")
    a("v_add_u32 v232, v232, v233")
    a("v_and_b32 v233, 3, v1")
    a("v_lshlrev_b32 v233, 3, v233")
    a(f"v_mul_u32_u24 v234, {PHI_P}, v232")
    a("v_add_u32 v234, v234, v233")
    a(f"s_mul_i32 s60, s{S_WAVE}, 80")
    a("v_add_u32 v234, s60, v234")
    a(f"v_mul_u32_u24 v235, {V_P}, v232")
    a("v_add_u32 v235, v235, v233")
    a(f"s_mul_i32 s60, s{S_WAVE}, 48")
    a("v_add_u32 v235, s60, v235")
    a(f"v_add_u32 v235, {LDS_V}, v235")
    KD = 100
    FA, FB = 136, 184
    for s in range(4):
        for ft in range(3):
            for q in range(2):
                a(f"ds_read_b64_tr_b16 v[{FA+12*s+4*ft+2*q}:{FA+12*s+4*ft+2*q+1}], v234 offset:{LDS_PHI+(32*s+16*q)*PHI_P+32*ft}")
        for dt in range(2):
            for q in range(2):
                a(f"ds_read_b64_tr_b16 v[{FB+8*s+4*dt+2*q}:{FB+8*s+4*dt+2*q+1}], v235 offset:{(32*s+16*q)*V_P+32*dt}")
    for s in range(4):
        a(f"s_waitcnt lgkmcnt({min(15, 10*(3-s))})")
        for ft in range(3):
            for dt in range(2):
                d = KD+4*(ft*2+dt)
                if s == 0:
                    a(f"v_mfma_f32_16x16x32_bf16 v[{d}:{d+3}], v[{FA+4*ft}:{FA+4*ft+3}], v[{FB+4*dt}:{FB+4*dt+3}], 0")
                else:
                    a(mf16(d, FA+12*s+4*ft, FB+8*s+4*dt))
    a("v_and_b32 v232, 15, v1")
    a("v_lshrrev_b32 v233, 4, v1")
    a("v_and_b32 v234, 1, v233")
    a("v_lshrrev_b32 v235, 1, v233")
    a("v_lshlrev_b32 v236, 1, v234")
    a("v_add_u32 v236, v236, v235")
    a("v_mul_u32_u24 v236, 336, v236")
    a("v_lshlrev_b32 v237, 4, v232")
    a("v_add_u32 v236, v236, v237")
    a(f"s_mul_i32 s60, s{S_WAVE}, 3360")
    a(f"s_add_u32 s61, s60, {LDS_KVO}")
    a("v_add_u32 v236, s61, v236")
    a("v_mul_u32_u24 v238, 336, v234")
    a("v_add_u32 v238, v238, v237")
    a("v_add_u32 v238, s61, v238")
    a("v_cmp_gt_u32 s[68:69], 5, v232")
    a("v_cmp_eq_u32 s[70:71], 0, v235")
    a("s_and_b64 s[72:73], s[68:69], s[70:71]")
    for ft in range(2):
        a(f"ds_write_b128 v236, v[{KD+4*(ft*2)}:{KD+4*(ft*2)+3}] offset:{ft*4*336}")
    a("s_mov_b64 exec, s[68:69]")
    for ft in range(2):
        a(f"ds_write_b128 v236, v[{KD+4*(ft*2+1)}:{KD+4*(ft*2+1)+3}] offset:{ft*4*336+256}")
    a("s_mov_b64 exec, s[70:71]")
    a(f"ds_write_b128 v238, v[{KD+16}:{KD+19}] offset:{8*336}")
    a("s_mov_b64 exec, s[72:73]")
    a(f"ds_write_b128 v238, v[{KD+20}:{KD+23}] offset:{8*336+256}")
    a("s_mov_b64 exec, -1")
    a("v_lshlrev_b32 v232, 2, v1")
    a("v_add_u32 v233, s61, v232")
    a(f"s_lshl_b32 s68, s{S_HG}, 2")
    a("s_add_u32 s68, s68, 32")
    a("v_mov_b32 v234, s68")
    a(f"buffer_load_dword v235, v234, s[{SRD_DBG}:{SRD_DBG+3}], 0 offen sc1")
    a("s_waitcnt lgkmcnt(0)")
    for i in range(14):
        a(f"ds_read_b32 v{136+i}, v233 offset:{256*i}")
    lp = a.label("poll"); lpd = a.label("polld")
    a(f"{lp}:")
    a("s_waitcnt vmcnt(0)")
    a("v_readfirstlane_b32 s69, v235")
    a("s_nop 3")
    a("s_cmp_lg_u32 s69, 0")
    a(f"s_cbranch_scc1 {lpd}")
    a(f"buffer_load_dword v235, v234, s[{SRD_DBG}:{SRD_DBG+3}], 0 offen sc1")
    a(f"s_branch {lp}")
    a(f"{lpd}:")
    if "bw" not in EXP: stamp(a, 7)
    a(f"s_mul_i32 s68, s{S_HG}, 13440")
    a("s_add_u32 s68, s68, s60")
    a("s_waitcnt lgkmcnt(0)")
    for i in range(13):
        a(f"buffer_atomic_add_f32 v{136+i}, v232, s[{SRD_WS}:{SRD_WS+3}], s68 offen offset:{256*i}")
    a("s_mov_b64 exec, 0xff")
    a(f"buffer_atomic_add_f32 v{136+13}, v232, s[{SRD_WS}:{SRD_WS+3}], s68 offen offset:{256*13}")
    a("s_mov_b64 exec, -1")
    a("s_branch Lp1_end")

def emit_epi_q(a):
    emit_consts(a)
    emit_stat_read(a, S_WAVE)
    emit_phi_addr(a, 14, 0)
    emit_phi_frags(a, PF, 14)
    emit_cs_read(a, 0)
    q_store_addr(a, S_WAVE, 0)
    for mt in range(2):
        R = acc(mt, 0)
        emit_ln(a, R, 230 if mt == 0 else 240)
        emit_unit(a, R)
        for p in range(5):
            a(f"buffer_store_dwordx4 v[{R+4*p}:{R+4*p+3}], v248, s[{SRD_WS}:{SRD_WS+3}], s69 offen offset:{p*512+mt*256}{ST}")
    a("s_branch Lp1_end")

def emit_p1(a):
    kernel_begin(a, "p1_kernel")
    a("s_cmp_ge_u32 s2, 256")
    a("s_cbranch_scc1 Lp1_exit")
    stamp_init(a)
    a("s_load_dwordx8 s[4:11], s[0:1], 0")
    a("s_load_dwordx8 s[12:19], s[0:1], 32")
    a("s_load_dwordx4 s[20:23], s[0:1], 64")
    a("s_load_dwordx2 s[24:25], s[0:1], 80")
    a("v_lshrrev_b32 v1, 6, v0")
    a(f"s_and_b32 s{S_XCD}, s2, 7")
    a(f"s_lshr_b32 s{S_SLOT}, s2, 3")
    a(f"v_readfirstlane_b32 s{S_WAVE}, v1")
    a("s_waitcnt lgkmcnt(0)")
    stamp(a, 1)
    srd(a, SRD_WS, 24, WS_END)
    a(f"s_cmp_ge_u32 s{S_SLOT}, 24")
    a("s_cbranch_scc1 Lp1_pack")
    a(f"s_lshr_b32 s60, s{S_XCD}, 1")
    a(f"s_and_b32 s66, s{S_XCD}, 1")
    a(f"s_cmp_ge_u32 s{S_SLOT}, 16")
    a("s_cbranch_scc1 Lp1_q")
    a(f"s_mov_b32 s{S_ROLE}, 0")
    a(f"s_lshl_b32 s{S_RB}, s60, 2")
    a(f"s_lshr_b32 s67, s{S_SLOT}, 2")
    a(f"s_add_u32 s{S_RB}, s{S_RB}, s67")
    a(f"s_lshl_b32 s{S_HG}, s66, 2")
    a(f"s_and_b32 s67, s{S_SLOT}, 3")
    a(f"s_add_u32 s{S_HG}, s{S_HG}, s67")
    a("s_branch Lp1_main")
    a("Lp1_q:")
    a(f"s_mov_b32 s{S_ROLE}, 1")
    a(f"s_sub_u32 s67, s{S_SLOT}, 16")
    a(f"s_lshl_b32 s{S_RB}, s60, 2")
    a(f"s_lshr_b32 s68, s67, 1")
    a(f"s_add_u32 s{S_RB}, s{S_RB}, s68")
    a(f"s_lshl_b32 s{S_HG}, s66, 1")
    a(f"s_and_b32 s68, s67, 1")
    a(f"s_add_u32 s{S_HG}, s{S_HG}, s68")
    a("Lp1_main:")
    a(f"s_cmp_ge_u32 s{S_WAVE}, 4")
    a("s_cbranch_scc0 Lp1_cons")
    a(f"s_sub_u32 s{S_WAVE}, s{S_WAVE}, 4")
    emit_loader(a)
    a("Lp1_cons:")
    emit_main(a)
    stamp(a, 4)
    emit_epi_common(a)
    stamp(a, 5)
    a(f"s_cmp_eq_u32 s{S_ROLE}, 0")
    a("s_cbranch_scc0 Lp1_epi_q")
    emit_epi_kv(a)
    a("Lp1_epi_q:")
    emit_epi_q(a)
    a("Lp1_pack:")
    emit_pack(a)
    a("Lp1_end:")
    stamp_store(a, 0)
    a("Lp1_exit:")
    a("s_endpgm")
```

```python
from common import *
import os
ST2 = os.environ.get('ST2', '')
ST2 = (' ' + ST2) if ST2 else ''

S_WAVE, S_XCD, S_SLOT, S_TB, S_NB = 26, 27, 28, 29, 30
SRD_WS, SRD_X = 32, 36
KVL_W = 27648
LDS_XT = 110592
LDS_ST = 120832
LDS_RED = 0

def mf32(d, A, B, c):
    return f"v_mfma_f32_32x32x16_bf16 {d}, {A}, {B}, {c}"

def emit_p2(a):
    kernel_begin(a, "p2_kernel")
    a("s_cmp_ge_u32 s2, 256")
    a("s_cbranch_scc1 Lp2_exit")
    stamp_init(a)
    a("s_load_dwordx2 s[4:5], s[0:1], 0")
    a("s_load_dwordx2 s[24:25], s[0:1], 80")
    a("v_lshrrev_b32 v1, 6, v0")
    a(f"s_and_b32 s{S_XCD}, s2, 7")
    a(f"s_lshr_b32 s{S_SLOT}, s2, 3")
    a(f"v_readfirstlane_b32 s{S_WAVE}, v1")
    a(f"s_lshl_b32 s{S_TB}, s{S_XCD}, 3")
    a(f"s_lshr_b32 s31, s{S_SLOT}, 2")
    a(f"s_add_u32 s{S_TB}, s{S_TB}, s31")
    a(f"s_and_b32 s{S_NB}, s{S_SLOT}, 3")
    a("v_and_b32 v1, 63, v0")
    a("v_lshlrev_b32 v2, 4, v1")
    a("s_waitcnt lgkmcnt(0)")
    stamp(a, 1)
    srd(a, SRD_WS, 24, WS_END)
    srd(a, SRD_X, 4, S*D*2)
    a(f"s_mul_i32 s40, s{S_WAVE}, 26880")
    if WS_KV: a(f"s_add_u32 s40, s40, {WS_KV}")
    a(f"s_mul_i32 s41, s{S_WAVE}, {KVL_W}")
    for i in range(27):
        if i % 4 == 0:
            a(f"s_add_u32 m0, s41, {i*1024}")
            a("s_nop 0")
        a(f"buffer_load_dwordx4 v2, s[{SRD_WS}:{SRD_WS+3}], s40 offen offset:{(i%4)*1024} lds")
        if i % 4 == 3: a("s_add_u32 s40, s40, 4096")
    for h in range(8):
        for r in range(4): a(f"v_accvgpr_write_b32 a{12*h+8+r}, 0")
    a(f"s_lshl_b32 s42, s{S_TB}, 5")
    a(f"s_lshl_b32 s43, s{S_WAVE}, 3")
    a("s_add_u32 s42, s42, s43")
    a("s_mul_i32 s42, s42, 2560")
    a(f"s_add_u32 s42, s42, {WS_PHIQ}")
    a("s_mov_b32 s44, -1")
    a("s_mov_b32 s45, 0")
    for h in range(8):
        a(f"buffer_load_dwordx4 a[{12*h}:{12*h+3}], v2, s[{SRD_WS}:{SRD_WS+3}], s42 offen")
        a(f"buffer_load_dwordx4 a[{12*h+4}:{12*h+7}], v2, s[{SRD_WS}:{SRD_WS+3}], s42 offen offset:1024")
        a("s_mov_b64 exec, s[44:45]")
        a(f"buffer_load_dwordx4 a[{12*h+8}:{12*h+11}], v2, s[{SRD_WS}:{SRD_WS+3}], s42 offen offset:2048")
        a("s_mov_b64 exec, -1")
        a("s_add_u32 s42, s42, 2560")
    def wreg(j): return f"a[{96+4*j}:{96+4*j+3}]" if j < 40 else f"v[{200+4*(j-40)}:{200+4*(j-40)+3}]"
    a(f"s_lshl_b32 s46, s{S_NB}, 3")
    a(f"s_lshl_b32 s47, s{S_WAVE}, 1")
    a("s_add_u32 s46, s46, s47")
    a(f"s_mul_i32 s46, s46, {25*1024}")
    a(f"s_add_u32 s46, s46, {WS_WOP}")
    wo_issued = [0]
    def issue_wo(n):
        for _ in range(n):
            j = wo_issued[0]
            if j >= 50: return
            a(f"buffer_load_dwordx4 {wreg(j)}, v2, s[{SRD_WS}:{SRD_WS+3}], s46 offen offset:{(j%4)*1024}")
            if j % 4 == 3: a("s_add_u32 s46, s46, 4096")
            wo_issued[0] += 1
    issue_wo(12)
    a("v_and_b32 v3, 31, v1")
    a("v_lshrrev_b32 v4, 5, v1")
    a("v_min_u32 v5, 20, v3")
    a("v_subrev_u32 v6, 4, v3")
    a("v_min_u32 v6, 20, v6")
    a("v_cmp_gt_u32 vcc, 16, v3")
    a.nop(1)
    a("v_cndmask_b32 v6, v6, v3, vcc")
    a("v_mul_u32_u24 v7, 336, v4")
    a(f"v_add_u32 v7, s41, v7")
    a("v_lshlrev_b32 v5, 4, v5")
    a("v_lshlrev_b32 v6, 4, v6")
    a("v_add_u32 v5, v5, v7")
    a("v_add_u32 v6, v6, v7")
    a("v_cmp_gt_u32 s[48:49], 32, v1")
    for jj in range(3):
        lb = a.label("xt")
        if jj == 2:
            a(f"s_cmp_ge_u32 s{S_WAVE}, 2")
            a(f"s_cbranch_scc1 {lb}")
        a(f"s_lshl_b32 s50, s{S_WAVE}, 6")
        a(f"s_add_u32 s50, s50, {256*jj}")
        a("v_add_u32 v8, s50, v1")
        a("v_mul_u32_u24 v9, 3277, v8")
        a("v_lshrrev_b32 v9, 16, v9")
        a("v_mul_u32_u24 v10, 20, v9")
        a("v_sub_u32 v10, v8, v10")
        a("v_mul_u32_u24 v9, 1280, v9")
        a("v_lshlrev_b32 v10, 4, v10")
        a("v_add_u32 v9, v9, v10")
        a(f"s_mul_i32 s51, s{S_TB}, {32*1280}")
        a(f"s_mul_i32 s52, s{S_NB}, 320")
        a("s_add_u32 s51, s51, s52")
        a("s_lshl_b32 s50, s50, 4")
        a(f"s_add_u32 m0, s50, {LDS_XT}")
        a("s_nop 0")
        a(f"buffer_load_dwordx4 v9, s[{SRD_X}:{SRD_X+3}], s51 offen lds")
        a(f"{lb}:")
    XN = 2
    ACC = 16
    DD = 96
    KF = 112
    AF = 136
    OF = 148
    RF = 180
    for r in range(ACC, ACC+80): a(f"v_mov_b32 v{r}, 0")
    stamp(a, 2)
    for h in range(8):
        va = 5 if h % 2 == 0 else 6
        n = 3*(7-h) + wo_issued[0] + XN
        a(f"s_waitcnt vmcnt({min(n,63)})")
        if h == 0: stamp(a, 3)
        for s in range(3):
            for q in range(2):
                blk = (4*s + 2*q) if s < 2 else (8 + q)
                r = KF + 8*s + 4*q
                a(f"ds_read_b128 v[{r}:{r+3}], v{va} offset:{h*3360 + blk*336}")
        issue_wo(5)
        a("s_waitcnt lgkmcnt(0)")
        for s in range(3):
            for i in range(4):
                a(f"v_cvt_pk_bf16_f32 v{AF+4*s+i}, v{KF+8*s+2*i}, v{KF+8*s+2*i+1}")
        for i in range(4):
            a(f"v_cndmask_b32 v{AF+8+i}, 0, v{AF+8+i}, s[48:49]")
        a.nop(2)
        a(mf32(f"v[{DD}:{DD+15}]", f"v[{AF}:{AF+3}]", f"a[{12*h}:{12*h+3}]", "0"))
        a(mf32(f"v[{DD}:{DD+15}]", f"v[{AF+4}:{AF+7}]", f"a[{12*h+4}:{12*h+7}]", f"v[{DD}:{DD+15}]"))
        a(mf32(f"v[{DD}:{DD+15}]", f"v[{AF+8}:{AF+11}]", f"a[{12*h+8}:{12*h+11}]", f"v[{DD}:{DD+15}]"))
        a.nop(13)
        a(f"v_add_f32 v188, 0x358637bd, v{DD+12}")
        a("v_rcp_f32 v188, v188")
        a.nop(1)
        for i in range(6):
            a(f"v_pk_mul_f32 v[{DD+2*i}:{DD+2*i+1}], v[{DD+2*i}:{DD+2*i+1}], v[188:189] op_sel_hi:[1,0]")
        for i in range(4):
            a(f"v_cvt_pk_bf16_f32 v{OF+4*h+i}, v{DD+2*i}, v{DD+2*i+1}")
        Q, m = divmod(h, 4)
        rr = RF + 4*Q + 2*(m >> 1)
        a("s_mov_b64 exec, s[48:49]" if m % 2 == 0 else "s_not_b64 exec, s[48:49]")
        a(f"v_cvt_pk_bf16_f32 v{rr}, v{DD+8}, v{DD+9}")
        a(f"v_cvt_pk_bf16_f32 v{rr+1}, v{DD+10}, v{DD+11}")
        a("s_mov_b64 exec, -1")
    assert wo_issued[0] == 50
    stamp(a, 4)
    for j in range(50):
        Q, rem = divmod(j, 25)
        m, nt = divmod(rem, 5)
        if j % 5 == 0:
            a(f"s_waitcnt vmcnt({max(0, 50-(j+5)) })")
        B = f"v[{OF+4*(4*Q+m)}:{OF+4*(4*Q+m)+3}]" if m < 4 else f"v[{RF+4*Q}:{RF+4*Q+3}]"
        d = ACC + 16*nt
        a(mf32(f"v[{d}:{d+15}]", wreg(j), B, f"v[{d}:{d+15}]"))
    a("s_waitcnt vmcnt(0)")
    stamp(a, 5)
    a("s_barrier")
    a.nop(12)
    a(f"s_mul_i32 s50, s{S_WAVE}, {4*5*1024}")
    a("v_add_u32 v8, s50, v2")
    for dst in range(4):
        lb = a.label("red")
        a(f"s_cmp_eq_u32 s{S_WAVE}, {dst}")
        a(f"s_cbranch_scc1 {lb}")
        for nt in range(5):
            r = ACC + 16*nt + 4*dst
            a(f"ds_write_b128 v8, v[{r}:{r+3}] offset:{(dst*5+nt)*1024}")
        a(f"{lb}:")
    OWN = 112
    for dst in range(4):
        lb = a.label("own")
        a(f"s_cmp_lg_u32 s{S_WAVE}, {dst}")
        a(f"s_cbranch_scc1 {lb}")
        for nt in range(5):
            for e in range(4):
                a(f"v_mov_b32 v{OWN+4*nt+e}, v{ACC+16*nt+4*dst+e}")
        a(f"{lb}:")
    a("s_waitcnt lgkmcnt(0)")
    a("s_barrier")
    a(f"s_mul_i32 s50, s{S_WAVE}, {5*1024}")
    a("v_add_u32 v8, s50, v2")
    for src in range(4):
        lb = a.label("rd")
        a(f"s_cmp_eq_u32 s{S_WAVE}, {src}")
        a(f"s_cbranch_scc1 {lb}")
        a(f"v_add_u32 v9, {src*20*1024}, v8")
        for nt in range(5):
            a(f"ds_read_b128 v[{ACC+4*nt}:{ACC+4*nt+3}], v9 offset:{nt*1024}")
        a("s_waitcnt lgkmcnt(0)")
        for i in range(10):
            a(f"v_pk_add_f32 v[{OWN+2*i}:{OWN+2*i+1}], v[{OWN+2*i}:{OWN+2*i+1}], v[{ACC+2*i}:{ACC+2*i+1}]")
        a(f"{lb}:")
    stamp(a, 6)
    a("v_mul_u32_u24 v8, 320, v3")
    a("v_lshlrev_b32 v9, 3, v4")
    a("v_add_u32 v8, v8, v9")
    a(f"s_lshl_b32 s50, s{S_WAVE}, 4")
    a(f"s_add_u32 s50, s50, {LDS_XT}")
    a("v_add_u32 v8, s50, v8")
    for nt in range(5):
        a(f"ds_read_b64 v[{ACC+2*nt}:{ACC+2*nt+1}], v8 offset:{64*nt}")
    a("s_waitcnt lgkmcnt(0)")
    HB = 40
    for nt in range(5):
        for p in range(2):
            x = ACC + 2*nt + p
            a(f"v_lshlrev_b32 v60, 16, v{x}")
            a(f"v_and_b32 v61, 0xffff0000, v{x}")
            a(f"v_pk_add_f32 v[60:61], v[60:61], v[{OWN+4*nt+2*p}:{OWN+4*nt+2*p+1}]")
            a(f"v_cvt_pk_bf16_f32 v{HB+2*nt+p}, v60, v61")
    a("v_lshlrev_b32 v8, 4, v3")
    a("v_lshlrev_b32 v9, 3, v4")
    a("v_add_u32 v8, v8, v9")
    a(f"s_mul_i32 s50, s{S_TB}, 40")
    a(f"s_mul_i32 s51, s{S_NB}, 10")
    a("s_add_u32 s50, s50, s51")
    a(f"s_lshr_b32 s51, s{S_WAVE}, 1")
    a("s_add_u32 s50, s50, s51")
    a("s_lshl_b32 s50, s50, 10")
    a(f"s_and_b32 s51, s{S_WAVE}, 1")
    a("s_lshl_b32 s51, s51, 9")
    a("s_add_u32 s50, s50, s51")
    a(f"s_add_u32 s50, s50, {WS_H}")
    for nt in range(5):
        a(f"buffer_store_dwordx2 v[{HB+2*nt}:{HB+2*nt+1}], v8, s[{SRD_WS}:{SRD_WS+3}], s50 offen{ST2}")
        a("s_add_u32 s50, s50, 2048")
    a("v_mov_b32 v62, 0\nv_mov_b32 v63, 0\nv_mov_b32 v64, 0\nv_mov_b32 v65, 0")
    for i in range(10):
        a(f"v_lshlrev_b32 v60, 16, v{HB+i}")
        a(f"v_and_b32 v61, 0xffff0000, v{HB+i}")
        a("v_pk_add_f32 v[62:63], v[62:63], v[60:61]")
        a("v_pk_fma_f32 v[64:65], v[60:61], v[60:61], v[64:65]")
    a("v_add_f32 v66, v62, v63")
    a("v_add_f32 v67, v64, v65")
    a(f"s_lshl_b32 s50, s{S_WAVE}, 9")
    a(f"s_add_u32 s50, s50, {LDS_ST}")
    a("v_lshlrev_b32 v8, 3, v1")
    a("v_add_u32 v8, s50, v8")
    a("ds_write_b64 v8, v[66:67]")
    a("s_waitcnt lgkmcnt(0)")
    a("s_barrier")
    a(f"s_cmp_lg_u32 s{S_WAVE}, 0")
    a("s_cbranch_scc1 Lp2_end")
    a("s_mov_b64 exec, s[48:49]")
    a("v_lshlrev_b32 v8, 3, v3")
    a(f"v_add_u32 v8, {LDS_ST}, v8")
    for i in range(8):
        a(f"ds_read_b64 v[{70+2*i}:{71+2*i}], v8 offset:{256*i}")
    a("s_waitcnt lgkmcnt(0)")
    for i in range(1, 8):
        a(f"v_pk_add_f32 v[70:71], v[70:71], v[{70+2*i}:{71+2*i}]")
    a("v_lshlrev_b32 v8, 5, v3")
    a(f"s_lshl_b32 s50, s{S_TB}, 10")
    a(f"s_lshl_b32 s51, s{S_NB}, 3")
    a("s_add_u32 s50, s50, s51")
    a(f"s_add_u32 s50, s50, {WS_STAT}")
    a(f"buffer_store_dwordx2 v[70:71], v8, s[{SRD_WS}:{SRD_WS+3}], s50 offen")
    a("s_mov_b64 exec, -1")
    a("Lp2_end:")
    stamp_store(a, 1)
    a("Lp2_exit:")
    a("s_endpgm")
```

```python
from common import *
import os
ST3 = os.environ.get('ST3', '')
ST3 = (' ' + ST3) if ST3 else ''

S_WAVE, S_XCD, S_SLOT, S_RB, S_T0 = 26, 27, 28, 29, 30
SRD_WS = 32
NST = 7
STG = 22528
NSTAGE = 21

def mf32(d, A, B, c=None):
    c = c or d
    return f"v_mfma_f32_32x32x16_bf16 {d}, {A}, {B}, {c}"

def emit_loader(a, part):
    nW = 4 if part == 0 else 3
    t0 = 0 if part == 0 else 4
    n = nW + 2
    a("v_and_b32 v1, 63, v0")
    a("v_lshlrev_b32 v2, 4, v1")
    for j in range(nW):
        a(f"v_add_u32 v{4+j}, {(t0+j)*41*1024 - j*1024}, v2")
    a(f"s_and_b32 s40, s{S_WAVE}, 1")
    a(f"s_mul_i32 s41, s{S_T0}, {41*1024}")
    a("s_lshl_b32 s42, s40, 10")
    a("s_add_u32 s41, s41, s42")
    a(f"s_add_u32 s41, s41, {WS_WGU}")
    for i in range(2):
        a(f"v_add_u32 v{10+i}, {i*40*1024 - i*1024}, v2")
    a(f"s_lshl_b32 s43, s{S_RB}, 2")
    a(f"s_lshr_b32 s44, s{S_WAVE}, 1")
    a("s_lshl_b32 s45, s44, 1")
    a("s_add_u32 s43, s43, s45")
    a(f"s_mul_i32 s43, s43, {40*1024}")
    a("s_add_u32 s43, s43, s42")
    a(f"s_add_u32 s43, s43, {WS_H}")
    a(f"s_mul_i32 s46, s40, {7*1024}")
    a(f"s_add_u32 s46, s46, {t0*1024}")
    a("s_lshl_b32 s47, s40, 12")
    a("s_lshl_b32 s45, s45, 10")
    a("s_add_u32 s47, s47, s45")
    a("s_add_u32 s47, s47, 14336")
    a("s_mov_b32 s48, 0")
    def loads(with_h=True):
        if with_h:
            a("s_add_u32 m0, s48, s47")
            a("s_nop 0")
            for i in range(2):
                a(f"buffer_load_dwordx4 v{10+i}, s[{SRD_WS}:{SRD_WS+3}], s43 offen offset:{i*1024} lds")
        a("s_add_u32 m0, s48, s46")
        a("s_nop 0")
        for j in range(nW):
            a(f"buffer_load_dwordx4 v{4+j}, s[{SRD_WS}:{SRD_WS+3}], s41 offen offset:{j*1024} lds")
        a("s_add_u32 s41, s41, 2048")
        a("s_add_u32 s43, s43, 2048")
        a(f"s_add_u32 s48, s48, {STG}")
        a(f"s_cmp_ge_u32 s48, {NST*STG}")
        a("s_cselect_b32 s48, 0, s48")
    for st in range(NST):
        loads()
    a(f"s_waitcnt vmcnt({(NST-1)*n})")
    a("s_barrier")
    lp = a.label("p3ld")
    a("s_mov_b32 s49, 0")
    a(f"{lp}:")
    a(f"s_waitcnt vmcnt({5*n})")
    a("s_barrier")
    loads()
    a("s_add_u32 s49, s49, 1")
    a("s_cmp_lt_u32 s49, 13")
    a(f"s_cbranch_scc1 {lp}")
    a(f"s_waitcnt vmcnt({5*n})")
    a("s_barrier")
    lb = a.label("p3x")
    a(f"s_cmp_lg_u32 s40, 0")
    a(f"s_cbranch_scc1 {lb}")
    loads(with_h=False)
    a(f"{lb}:")
    for i in range(14, 19):
        a(f"s_waitcnt vmcnt({(18-i)*n})") if i < 18 else a("s_waitcnt vmcnt(0)")
        a("s_barrier")
    a("s_barrier")
    a("s_barrier")
    a("s_branch Lp3_exit")

def emit_p3(a):
    kernel_begin(a, "p3_kernel")
    a("s_cmp_ge_u32 s2, 256")
    a("s_cbranch_scc1 Lp3_exit")
    stamp_init(a)
    a("s_load_dwordx2 s[24:25], s[0:1], 80")
    a("v_lshrrev_b32 v1, 6, v0")
    a(f"s_and_b32 s{S_XCD}, s2, 7")
    a(f"s_lshr_b32 s{S_SLOT}, s2, 3")
    a(f"v_readfirstlane_b32 s{S_WAVE}, v1")
    a(f"s_lshr_b32 s{S_RB}, s{S_XCD}, 2")
    a(f"s_lshl_b32 s{S_RB}, s{S_RB}, 3")
    a(f"s_lshr_b32 s31, s{S_SLOT}, 2")
    a(f"s_add_u32 s{S_RB}, s{S_RB}, s31")
    a(f"s_and_b32 s{S_T0}, s{S_XCD}, 3")
    a(f"s_lshl_b32 s{S_T0}, s{S_T0}, 2")
    a(f"s_and_b32 s31, s{S_SLOT}, 3")
    a(f"s_add_u32 s{S_T0}, s{S_T0}, s31")
    a(f"s_mul_i32 s{S_T0}, s{S_T0}, 27")
    a(f"s_lshr_b32 s{S_T0}, s{S_T0}, 2")
    a("s_waitcnt lgkmcnt(0)")
    stamp(a, 1)
    srd(a, SRD_WS, 24, WS_END)
    a(f"s_cmp_lt_u32 s{S_WAVE}, 4")
    a("s_cbranch_scc1 Lp3_cons")
    a(f"s_sub_u32 s{S_WAVE}, s{S_WAVE}, 4")
    a(f"s_cmp_lt_u32 s{S_WAVE}, 2")
    a("s_cbranch_scc0 Lp3_ld1")
    emit_loader(a, 0)
    a("Lp3_ld1:")
    emit_loader(a, 1)
    a("Lp3_cons:")
    ACC = 16
    A0, A1 = 128, 156
    B0, B1 = 184, 188
    MB = 192
    VW, VH = 4, 5
    a("v_and_b32 v1, 63, v0")
    a("v_lshlrev_b32 v2, 4, v1")
    a("v_and_b32 v3, 31, v1")
    a(f"s_lshl_b32 s40, s{S_RB}, 7")
    a(f"s_lshl_b32 s41, s{S_WAVE}, 5")
    a("s_add_u32 s40, s40, s41")
    a("s_lshl_b32 s40, s40, 5")
    a(f"s_add_u32 s40, s40, {WS_STAT}")
    a("v_lshlrev_b32 v6, 5, v3")
    a(f"buffer_load_dwordx4 v[200:203], v6, s[{SRD_WS}:{SRD_WS+3}], s40 offen")
    a(f"buffer_load_dwordx4 v[204:207], v6, s[{SRD_WS}:{SRD_WS+3}], s40 offen offset:16")
    a(f"v_mov_b32 v{VW}, v2")
    a(f"s_lshl_b32 s41, s{S_WAVE}, 10")
    a("s_add_u32 s41, s41, 14336")
    a(f"v_add_u32 v{VH}, s41, v2")
    for r in range(ACC, ACC+112): a(f"v_mov_b32 v{r}, 0")
    a("s_mov_b32 s42, 0")
    a(f"s_mov_b32 s44, {STG}")
    a(f"s_mov_b32 s45, {(-(NST-1)*STG) & 0xffffffff}")
    def reads(setA, setB, ks, withB=True):
        R = []
        if withB: R.append(f"ds_read_b128 v[{setB}:{setB+3}], v{VH} offset:{ks*4096}")
        for t in range(7):
            R.append(f"ds_read_b128 v[{setA+4*t}:{setA+4*t+3}], v{VW} offset:{(ks*7+t)*1024}")
        return R
    def half(curA, curB, R):
        ri = 0
        for t in range(7):
            d = ACC + 16*t
            a(mf32(f"v[{d}:{d+15}]", f"v[{curA+4*t}:{curA+4*t+3}]", f"v[{curB}:{curB+3}]"))
            for _ in range(2):
                if ri < len(R): a(R[ri]); ri += 1
        while ri < len(R): a(R[ri]); ri += 1
    def adv():
        a(f"s_add_u32 s42, s42, {STG}")
        a(f"s_cmp_ge_u32 s42, {NST*STG}")
        a("s_cselect_b32 s43, s45, s44")
        a("s_cselect_b32 s42, 0, s42")
        a(f"v_add_u32 v{VW}, s43, v{VW}")
        a(f"v_add_u32 v{VH}, s43, v{VH}")
    stamp(a, 2)
    a("s_barrier")
    stamp(a, 3)
    for r in reads(A0, B0, 0): a(r)
    a("s_waitcnt vmcnt(0)")
    a("v_add_f32 v200, v200, v202\nv_add_f32 v201, v201, v203\nv_add_f32 v204, v204, v206\nv_add_f32 v205, v205, v207")
    a("v_add_f32 v200, v200, v204\nv_add_f32 v201, v201, v205")
    a("s_mov_b32 s46, 0x3acccccd")
    a("v_mul_f32 v200, s46, v200")
    a("v_mul_f32 v201, s46, v201")
    a("v_fma_f32 v201, -v200, v200, v201")
    a("v_max_f32 v201, 0, v201")
    a("v_add_f32 v201, 0x3727c5ac, v201")
    a("v_rsq_f32 v208, v201")
    a("v_sub_f32 v200, 0, v200")
    a("v_cvt_pk_bf16_f32 v202, v200, v200")
    a("v_lshlrev_b32 v203, 16, v202")
    a("v_sub_f32 v203, v200, v203")
    a("v_cvt_pk_bf16_f32 v203, v203, v203")
    a("v_cmp_gt_u32 vcc, 32, v1")
    a.nop(2)
    a(f"v_cndmask_b32 v{MB}, 0, v202, vcc")
    a(f"v_cndmask_b32 v{MB+1}, 0, v203, vcc")
    a(f"v_mov_b32 v{MB+2}, 0")
    a(f"v_mov_b32 v{MB+3}, 0")
    a("s_waitcnt lgkmcnt(0)")
    lp = a.label("p3main")
    a("s_mov_b32 s47, 0")
    a(f"{lp}:")
    half(A0, B0, reads(A1, B1, 1))
    adv()
    a("s_waitcnt lgkmcnt(0)")
    a("s_barrier")
    half(A1, B1, reads(A0, B0, 0))
    a("s_waitcnt lgkmcnt(0)")
    a("s_add_u32 s47, s47, 1")
    a("s_cmp_lt_u32 s47, 20")
    a(f"s_cbranch_scc1 {lp}")
    half(A0, MB, [])
    a("s_barrier")
    stamp(a, 4)
    a("v_lshrrev_b32 v6, 4, v3")
    a(f"v_mul_u32_u24 v6, {54*1024}, v6")
    a("v_and_b32 v7, 15, v3")
    a("v_lshrrev_b32 v8, 5, v1")
    a("v_lshlrev_b32 v8, 4, v8")
    a("v_add_u32 v7, v7, v8")
    a("v_lshlrev_b32 v7, 4, v7")
    a("v_add_u32 v6, v6, v7")
    a(f"s_lshl_b32 s40, s{S_RB}, 3")
    a(f"s_lshl_b32 s41, s{S_WAVE}, 1")
    a("s_add_u32 s40, s40, s41")
    a(f"s_mul_i32 s40, s40, {54*1024}")
    a(f"s_add_u32 s40, s40, {WS_ACT}")
    a(f"s_lshl_b32 s41, s{S_T0}, 9")
    a("s_add_u32 s40, s40, s41")
    import math
    c1 = -2*math.sqrt(2/math.pi)*math.log2(math.e)
    c2 = c1*0.044715
    import struct
    f2u = lambda f: struct.unpack("<I", struct.pack("<f", f))[0]
    a(f"s_mov_b32 s50, 0x{f2u(c1):08x}\ns_mov_b32 s51, 0x{f2u(c1):08x}")
    a(f"s_mov_b32 s52, 0x{f2u(c2):08x}\ns_mov_b32 s53, 0x{f2u(c2):08x}")
    a("v_mov_b32 v210, s50\nv_mov_b32 v211, s51")
    a.nop(8)
    for t in range(7):
        d = ACC + 16*t
        T = 128
        for i in range(8):
            a(f"v_pk_mul_f32 v[{d+2*i}:{d+2*i+1}], v[{d+2*i}:{d+2*i+1}], v[208:209] op_sel_hi:[1,0]")
        for i in range(4):
            g = d + 2*i
            a(f"v_pk_mul_f32 v[{T+2*i}:{T+2*i+1}], v[{g}:{g+1}], v[{g}:{g+1}]")
            a(f"v_pk_fma_f32 v[{T+2*i}:{T+2*i+1}], v[{T+2*i}:{T+2*i+1}], s[52:53], v[210:211]")
            a(f"v_pk_mul_f32 v[{T+2*i}:{T+2*i+1}], v[{T+2*i}:{T+2*i+1}], v[{g}:{g+1}]")
        for i in range(8):
            a(f"v_exp_f32 v{T+i}, v{T+i}")
        a.nop(1)
        for i in range(4):
            a(f"v_pk_add_f32 v[{T+2*i}:{T+2*i+1}], v[{T+2*i}:{T+2*i+1}], 1.0 op_sel_hi:[1,0]")
        for i in range(8):
            a(f"v_rcp_f32 v{T+i}, v{T+i}")
        for i in range(4):
            g = d + 2*i
            a(f"v_pk_mul_f32 v[{g}:{g+1}], v[{g}:{g+1}], v[{g+8}:{g+9}]")
        for i in range(4):
            g = d + 2*i
            a(f"v_pk_mul_f32 v[{g}:{g+1}], v[{g}:{g+1}], v[{T+2*i}:{T+2*i+1}]")
        for i in range(4):
            a(f"v_cvt_pk_bf16_f32 v{T+8+i}, v{d+2*i}, v{d+2*i+1}")
        a(f"buffer_store_dwordx4 v[{T+8}:{T+11}], v6, s[{SRD_WS}:{SRD_WS+3}], s40 offen{ST3}")
        a("s_add_u32 s40, s40, 512")
        a.nop(2)
    stamp_store(a, 2)
    a("Lp3_exit:")
    a("s_endpgm")
```

```python
S, D, H, DH, F = 2048, 640, 32, 20, 1728

WS_KV   = 0x0
KV_HEAD = 3360
WS_PHIQ = 0x20000
WS_WOP  = 0x520000
WS_WGU  = 0x5F0000
WS_WD   = 0xA50000
WS_H    = 0xC70000
WS_STAT = 0xEF0000
WS_ACT  = 0xF00000
WS_CS   = 0x15C0000
WS_ST1  = 0x15C4000
WS_END  = 0x1600000
WS_BYTES = 268435456

class Asm:
    def __init__(self):
        self.L = []
        self.uid = 0
    def __call__(self, s):
        for line in s.split("\n"):
            self.L.append(line)
    def label(self, base):
        self.uid += 1
        return f"L{base}_{self.uid}"
    def nop(self, n):
        while n > 0:
            k = min(n, 16)
            self(f"s_nop {k-1}")
            n -= k
    def text(self):
        return "\n".join(self.L) + "\n"

def vr(b, n=1):
    return f"v{b}" if n == 1 else f"v[{b}:{b+n-1}]"
def ar(b, n=1):
    return f"a{b}" if n == 1 else f"a[{b}:{b+n-1}]"
def sr(b, n=1):
    return f"s{b}" if n == 1 else f"s[{b}:{b+n-1}]"

def srd(a, dst, ptr, nbytes):
    a(f"s_mov_b32 s{dst}, s{ptr}")
    a(f"s_mov_b32 s{dst+1}, s{ptr+1}")
    a(f"s_mov_b32 s{dst+2}, 0x{nbytes:x}")
    a(f"s_mov_b32 s{dst+3}, 0x00020000")

def kernel_begin(a, name):
    a(f".globl {name}")
    a(".p2align 8")
    a(f".type {name},@function")
    a(f"{name}:")

def kernel_desc(a, name, vgpr, accum, sgpr=102):
    a(".p2align 6")
    a(f".amdhsa_kernel {name}")
    a(f"  .amdhsa_next_free_vgpr {vgpr}")
    a(f"  .amdhsa_next_free_sgpr {sgpr}")
    a(f"  .amdhsa_accum_offset {accum}")
    a("  .amdhsa_group_segment_fixed_size 0")
    a("  .amdhsa_kernarg_size 88")
    a("  .amdhsa_user_sgpr_count 2")
    a("  .amdhsa_user_sgpr_kernarg_segment_ptr 1")
    a("  .amdhsa_system_sgpr_workgroup_id_x 1")
    a(".end_amdhsa_kernel")

import os
STAMP = int(os.environ.get("STAMP", "0"))
WS_STAMPS = 0x1800000
def stamp(a, idx):
    if STAMP:
        a(f"s_memrealtime s[{80+2*idx}:{81+2*idx}]")
def stamp_init(a):
    if STAMP:
        for i in range(80, 100): a(f"s_mov_b32 s{i}, 0")
        stamp(a, 0)
def stamp_store(a, kidx, ws_ptr=24):
    if not STAMP: return
    stamp(a, 9)
    lb = a.label("nostamp")
    a("s_waitcnt lgkmcnt(0)")
    a("s_mov_b64 exec, -1")
    a("v_cmp_eq_u32 vcc, 0, v0")
    a("s_and_saveexec_b64 s[60:61], vcc")
    a(f"s_cbranch_execz {lb}")
    a(f"s_mov_b32 s60, s{ws_ptr}")
    a(f"s_mov_b32 s61, s{ws_ptr+1}")
    a(f"s_mov_b32 s62, 0x{WS_STAMPS+0x100000:x}")
    a(f"s_mov_b32 s63, 0x00020000")
    a(f"s_lshl_b32 s3, s2, 7")
    a(f"s_add_u32 s3, s3, {WS_STAMPS + kidx*512*128}")
    a("v_mov_b32 v1, s3")
    for i in range(10):
        a(f"v_mov_b32 v2, s{80+2*i}")
        a(f"v_mov_b32 v3, s{81+2*i}")
        a(f"buffer_store_dwordx2 v[2:3], v1, s[60:63], 0 offen offset:{8*i}")
        a("s_nop 1")
    a(f"{lb}:")

def code_prefetch(a, start_label, end_label, vtid, vtmp, vdst, sreg=70, maxlanes=64):
    lb = a.label("pc")
    a(f"s_getpc_b64 s[{sreg}:{sreg+1}]")
    a(f"{lb}:")
    a(f"s_sub_u32 s{sreg}, s{sreg}, {lb}-{start_label}")
    a(f"s_subb_u32 s{sreg+1}, s{sreg+1}, 0")
    a(f"v_lshlrev_b32 v{vtmp}, 7, v{vtid}")
    a(f"v_min_u32 v{vtmp}, {end_label}-{start_label}-4, v{vtmp}")
    a(f"global_load_dword v{vdst}, v{vtmp}, s[{sreg}:{sreg+1}]")
```

```python
from common import *
import os
EXP = os.environ.get("EXP", "")
ST = os.environ.get("ST", "sc0 sc1")
ST = (" " + ST) if ST else ""
STP = os.environ.get("STP", "sc0 sc1")
STP = (" " + STP) if STP else ""

S_WAVE, S_XCD, S_SLOT = 26, 27, 28
SRD_WS, SRD_A, SRD_B, SRD_PHI, SRD_DBG = 32, 36, 40, 44, 48

def emit_pack_dma(a, srd_reg, nins_per_wave, pitch, s_off_reg, lds_base_expr_reg, v_off):
    lp = a.label("pdma")
    a(f"s_mov_b32 s60, {nins_per_wave}")
    a(f"{lp}:")
    a(f"s_mov_b32 m0, s{lds_base_expr_reg}")
    a(f"s_add_u32 s{lds_base_expr_reg}, s{lds_base_expr_reg}, 1024")
    a(f"buffer_load_dwordx4 v{v_off}, s[{srd_reg}:{srd_reg+3}], s{s_off_reg} offen lds")
    a(f"s_add_u32 s{s_off_reg}, s{s_off_reg}, {8*pitch}")
    a(f"s_sub_u32 s60, s60, 1")
    a(f"s_cmp_lg_u32 s60, 0")
    a(f"s_cbranch_scc1 {lp}")

def emit_prefetch(a):
    srd(a, SRD_A, 4, S*D*2)
    srd(a, SRD_B, 6, D*3*D*2)
    a(f"s_sub_u32 s52, s{S_SLOT}, 24")
    a(f"s_lshr_b32 s66, s{S_XCD}, 1")
    a(f"s_mul_i32 s66, s66, {512*1280}")
    for j in range(2):
        a("s_mul_i32 s60, s52, 640")
        a(f"s_add_u32 s60, s60, {512*j}")
        a("v_add_u32 v232, s60, v0")
        a("v_lshlrev_b32 v232, 7, v232")
        if j == 1:
            a("v_cmp_gt_u32 vcc, 128, v0")
            a("s_and_saveexec_b64 s[68:69], vcc")
        a(f"buffer_load_dword v{250+j}, v232, s[{SRD_A}:{SRD_A+3}], s66 offen")
        if j == 1: a("s_mov_b64 exec, s[68:69]")
    a(f"s_and_b32 s66, s{S_XCD}, 1")
    a("s_mul_i32 s66, s66, 640")
    for j in range(3):
        a("s_mul_i32 s60, s52, 1200")
        a(f"s_add_u32 s60, s60, {512*j}")
        a("v_add_u32 v232, s60, v0")
        a("v_mul_u32_u24 v233, 17477, v232")
        a("v_lshrrev_b32 v233, 18, v233")
        a("v_mul_u32_u24 v234, 15, v233")
        a("v_sub_u32 v234, v232, v234")
        a("v_mul_u32_u24 v235, 205, v234")
        a("v_lshrrev_b32 v235, 10, v235")
        a("v_mul_u32_u24 v236, 5, v235")
        a("v_sub_u32 v236, v234, v236")
        a("v_mul_u32_u24 v233, 3840, v233")
        a("v_mul_u32_u24 v235, 1280, v235")
        a("v_lshlrev_b32 v236, 7, v236")
        a("v_add3_u32 v233, v233, v235, v236")
        if j == 2:
            a("v_cmp_gt_u32 vcc, 176, v0")
            a("s_and_saveexec_b64 s[68:69], vcc")
        a(f"buffer_load_dword v{252+j}, v233, s[{SRD_B}:{SRD_B+3}], s66 offen")
        if j == 2: a("s_mov_b64 exec, s[68:69]")
    if "nocp" not in EXP:
        code_prefetch(a, "p1_kernel", "Lcode_end", 0, 232, 255)
    if "tlb" in EXP:
        a("v_lshlrev_b32 v232, 16, v0")
        a(f"v_min_u32 v232, {WS_END-4}, v232")
        a(f"buffer_load_dword v249, v232, s[{SRD_WS}:{SRD_WS+3}], 0 offen")
    a("s_waitcnt vmcnt(0)")

def emit_pack(a):
    if "nopf" not in EXP: emit_prefetch(a)
    a(f"s_sub_u32 s52, s{S_SLOT}, 24")
    a(f"s_lshl_b32 s52, s52, 3")
    a(f"s_add_u32 s52, s52, s{S_XCD}")
    a("s_cmp_ge_u32 s52, %d" % (0 if "nopack" in EXP else 57))
    a("s_cbranch_scc1 Lp1_end")
    a(f"s_cmp_ge_u32 s{S_WAVE}, 4")
    a("s_cbranch_scc1 Lp1_exit")
    a("v_and_b32 v1, 63, v0")
    a("v_lshlrev_b32 v2, 4, v1")
    a("v_lshrrev_b32 v3, 3, v1")
    a("v_and_b32 v4, 7, v1")
    a("v_lshlrev_b32 v4, 4, v4")
    a("v_lshrrev_b32 v5, 4, v1")
    a("v_bfe_u32 v6, v1, 2, 2")
    a("v_and_b32 v7, 3, v1")
    a("s_cmp_lt_u32 s52, 27")
    a("s_cbranch_scc0 Lp1_pack_not_gu")
    srd(a, SRD_A, 14, D*F*2)
    srd(a, SRD_B, 16, D*F*2)
    a("v_mul_u32_u24 v8, 3456, v3")
    a("v_add_u32 v8, v8, v4")
    a(f"s_mul_i32 s53, s{S_WAVE}, {20*8*3456}")
    a("s_lshl_b32 s54, s52, 7")
    a("s_add_u32 s53, s53, s54")
    a("s_mov_b32 s55, s53")
    a(f"s_mul_i32 s56, s{S_WAVE}, {20*1024}")
    a(f"s_add_u32 s57, s56, 81920")
    emit_pack_dma(a, SRD_A, 20, 3456, 53, 56, 8)
    emit_pack_dma(a, SRD_B, 20, 3456, 55, 57, 8)
    a("v_and_b32 v9, 1, v5")
    a("v_mul_u32_u24 v9, 81920, v9")
    a("v_lshrrev_b32 v10, 1, v5")
    a("v_lshlrev_b32 v10, 3, v10")
    a("v_add_u32 v10, v10, v6")
    a("v_lshlrev_b32 v10, 7, v10")
    a("v_add_u32 v9, v9, v10")
    a("v_and_b32 v10, 1, v7")
    a("v_lshlrev_b32 v10, 4, v10")
    a("v_add_u32 v9, v9, v10")
    a("v_lshrrev_b32 v10, 1, v7")
    a("v_lshlrev_b32 v10, 3, v10")
    a("v_add_u32 v9, v9, v10")
    a(f"s_lshl_b32 s53, s{S_WAVE}, 5")
    a("v_add_u32 v9, s53, v9")
    for i in range(4): a(f"v_mov_b32 v{12+i}, 0x3f803f80")
    for i in range(16): a(f"v_mov_b32 v{16+i}, 0")
    a("s_lshl_b32 s53, s52, 2")
    a(f"s_add_u32 s53, s53, s{S_WAVE}")
    a(f"s_mul_i32 s53, s53, {41*1024}")
    a(f"s_add_u32 s53, s53, {WS_WGU}")
    a("s_waitcnt vmcnt(0)")
    a("s_barrier")
    lp = a.label("gu")
    a("s_mov_b32 s60, 10")
    a(f"{lp}:")
    for u in range(4):
        a(f"ds_read_b64_tr_b16 v[{32+4*u}:{33+4*u}], v9 offset:{u*2048}")
        a(f"ds_read_b64_tr_b16 v[{34+4*u}:{35+4*u}], v9 offset:{u*2048+512}")
    a("v_add_u32 v9, 8192, v9")
    for u in range(4):
        a(f"s_waitcnt lgkmcnt({6-2*u})")
        a(f"v_mfma_f32_32x32x16_bf16 v[16:31], v[12:15], v[{32+4*u}:{35+4*u}], v[16:31]")
        a(f"buffer_store_dwordx4 v[{32+4*u}:{35+4*u}], v2, s[{SRD_WS}:{SRD_WS+3}], s53 offen{STP}")
        a("s_add_u32 s53, s53, 1024")
    a("s_sub_u32 s60, s60, 1")
    a("s_cmp_lg_u32 s60, 0")
    a(f"s_cbranch_scc1 {lp}")
    a.nop(14)
    a("v_cvt_pk_bf16_f32 v32, v16, v16")
    a("v_lshlrev_b32 v33, 16, v32")
    a("v_sub_f32 v34, v16, v33")
    a("v_cvt_pk_bf16_f32 v36, v33, v34")
    a("v_cmp_gt_u32 vcc, 32, v1")
    a.nop(2)
    a("v_cndmask_b32 v36, 0, v36, vcc")
    a("v_mov_b32 v37, v36")
    a("v_mov_b32 v38, 0")
    a("v_mov_b32 v39, 0")
    a(f"buffer_store_dwordx4 v[36:39], v2, s[{SRD_WS}:{SRD_WS+3}], s53 offen{STP}")
    a("s_branch Lp1_end")
    a("Lp1_pack_not_gu:")
    a("s_cmp_lt_u32 s52, 47")
    a("s_cbranch_scc0 Lp1_pack_wo")
    srd(a, SRD_A, 18, F*D*2)
    a("s_sub_u32 s52, s52, 27")
    a("s_lshr_b32 s58, s52, 1")
    a("s_and_b32 s59, s52, 1")
    a("v_mul_u32_u24 v8, 1280, v3")
    a("v_add_u32 v8, v8, v4")
    a(f"s_mul_i32 s53, s59, {864*1280}")
    a(f"s_mul_i32 s54, s{S_WAVE}, {27*8*1280}")
    a("s_add_u32 s53, s53, s54")
    a("s_lshl_b32 s54, s58, 7")
    a("s_add_u32 s53, s53, s54")
    a(f"s_mul_i32 s56, s{S_WAVE}, {27*1024}")
    emit_pack_dma(a, SRD_A, 27, 1280, 53, 56, 8)
    a("v_lshlrev_b32 v9, 3, v5")
    a("v_add_u32 v9, v9, v6")
    a("v_lshlrev_b32 v9, 7, v9")
    a("v_lshlrev_b32 v10, 3, v7")
    a("v_add_u32 v9, v9, v10")
    a(f"s_lshl_b32 s53, s{S_WAVE}, 5")
    a("v_add_u32 v9, s53, v9")
    a("s_lshl_b32 s53, s58, 2")
    a(f"s_add_u32 s53, s53, s{S_WAVE}")
    a("s_mul_i32 s54, s53, 52429")
    a("s_lshr_b32 s54, s54, 18")
    a("s_mul_i32 s55, s54, 5")
    a("s_sub_u32 s55, s53, s55")
    a("s_mul_i32 s54, s54, 54")
    a("s_mul_i32 s56, s59, 27")
    a("s_add_u32 s54, s54, s56")
    a("s_mul_i32 s54, s54, 5")
    a("s_add_u32 s54, s54, s55")
    a("s_lshl_b32 s53, s54, 10")
    a(f"s_add_u32 s53, s53, {WS_WD}")
    a("s_waitcnt vmcnt(0)")
    a("s_barrier")
    lp = a.label("wd")
    a("s_mov_b32 s60, 9")
    a(f"{lp}:")
    for u in range(3):
        a(f"ds_read_b64_tr_b16 v[{32+4*u}:{33+4*u}], v9 offset:{u*4096}")
        a(f"ds_read_b64_tr_b16 v[{34+4*u}:{35+4*u}], v9 offset:{u*4096+512}")
    a("v_add_u32 v9, 12288, v9")
    for u in range(3):
        a(f"s_waitcnt lgkmcnt({4-2*u})")
        a(f"buffer_store_dwordx4 v[{32+4*u}:{35+4*u}], v2, s[{SRD_WS}:{SRD_WS+3}], s53 offen{STP}")
        a("s_add_u32 s53, s53, 5120")
    a("s_sub_u32 s60, s60, 1")
    a("s_cmp_lg_u32 s60, 0")
    a(f"s_cbranch_scc1 {lp}")
    a("s_branch Lp1_end")
    a("Lp1_pack_wo:")
    srd(a, SRD_A, 10, D*D*2)
    a("s_sub_u32 s58, s52, 47")
    a("v_mul_u32_u24 v8, 1280, v3")
    a("v_add_u32 v8, v8, v4")
    a(f"s_mul_i32 s53, s{S_WAVE}, {20*8*1280}")
    a("s_lshl_b32 s54, s58, 7")
    a("s_add_u32 s53, s53, s54")
    a(f"s_mul_i32 s56, s{S_WAVE}, {20*1024}")
    emit_pack_dma(a, SRD_A, 20, 1280, 53, 56, 8)
    a(f"s_and_b32 s53, s{S_WAVE}, 1")
    a("s_lshl_b32 s53, s53, 6")
    a(f"s_lshr_b32 s54, s{S_WAVE}, 1")
    a("s_mul_i32 s55, s54, 40960")
    a("s_add_u32 s53, s53, s55")
    a("s_lshl_b32 s54, s54, 4")
    a("v_and_b32 v10, 1, v5")
    a("v_lshlrev_b32 v10, 4, v10")
    a("v_lshlrev_b32 v11, 2, v7")
    a("v_add_u32 v10, v10, v11")
    a("v_add_u32 v10, s54, v10")
    a("v_lshrrev_b32 v11, 1, v5")
    a("v_lshlrev_b32 v12, 2, v11")
    a("v_add_u32 v12, v12, v6")
    a("v_lshlrev_b32 v12, 7, v12")
    a("v_mul_u32_u24 v13, 20, v11")
    a("v_add_u32 v13, v13, v6")
    a("v_add_u32 v13, 16, v13")
    a("v_lshlrev_b32 v13, 7, v13")
    for rr in range(2):
        a(f"v_add_u32 v14, {8*rr}, v10")
        a("v_and_b32 v14, 31, v14")
        a("v_lshlrev_b32 v14, 1, v14")
        a("v_add_u32 v14, s53, v14")
        a(f"v_add_u32 v{16+rr}, v12, v14")
        a(f"v_add_u32 v{18+rr}, v13, v14")
    a("s_lshl_b32 s53, s58, 1")
    a(f"s_and_b32 s54, s{S_WAVE}, 1")
    a("s_add_u32 s53, s53, s54")
    a("s_mul_i32 s54, s53, 52429")
    a("s_lshr_b32 s54, s54, 18")
    a("s_mul_i32 s55, s54, 5")
    a("s_sub_u32 s55, s53, s55")
    a("s_lshl_b32 s54, s54, 3")
    a(f"s_lshr_b32 s56, s{S_WAVE}, 1")
    a("s_lshl_b32 s56, s56, 2")
    a("s_add_u32 s54, s54, s56")
    a("s_mul_i32 s54, s54, 25")
    a("s_add_u32 s54, s54, s55")
    a("s_lshl_b32 s53, s54, 10")
    a(f"s_add_u32 s53, s53, {WS_WOP}")
    a("s_waitcnt vmcnt(0)")
    a("s_barrier")
    for Qi in range(4):
        for m in range(5):
            b = 32 + 4*m
            if m < 4:
                o = (4*Qi+m)*2560
                a(f"ds_read_b64_tr_b16 v[{b}:{b+1}], v{16+(Qi>>1)} offset:{o}")
                a(f"ds_read_b64_tr_b16 v[{b+2}:{b+3}], v{16+(Qi>>1)} offset:{o+1024}")
            else:
                o = Qi*10240
                a(f"ds_read_b64_tr_b16 v[{b}:{b+1}], v{18+(Qi>>1)} offset:{o}")
                a(f"ds_read_b64_tr_b16 v[{b+2}:{b+3}], v{18+(Qi>>1)} offset:{o+5120}")
        for m in range(5):
            b = 32 + 4*m
            a(f"s_waitcnt lgkmcnt({8-2*m})")
            a(f"buffer_store_dwordx4 v[{b}:{b+3}], v2, s[{SRD_WS}:{SRD_WS+3}], s53 offen{STP}")
            a("s_add_u32 s53, s53, 5120")
        a.nop(2)
    a("s_branch Lp1_end")

LDS_WPHI = 0
LDS_ZERO = 8192
LDS_CS   = 9216
LDS_STAT = 10496
XR_BASE, XR_STG, XR_N = 12288, 16384, 4
WR_BASE, WR_STG, WR_N = 77824, 12288, 7
LDS_PHI = 12288
PHI_P = 352
LDS_V = 57344
V_P = 224
LDS_KVO = 86016
LDS_ACCX = 100352

V_WR = 2
V_XR0, V_XR1 = 12, 13
V_ONES = 16
V_ACC = 20
V_CS = 100
V_A0, V_A1 = 120, 160
V_B0, V_B1 = 200, 208
V_SX, V_SQ = 216, 224

S_ROLE, S_RB, S_HG, S_ZERO = 59, 61, 62, 63
S_L2E = 64

def acc(mt, T): return V_ACC + (mt*10 + T)*4

def mf16(d, A, B, c=None):
    c = d if c is None else c
    return f"v_mfma_f32_16x16x32_bf16 v[{d}:{d+3}], v[{A}:{A+3}], v[{B}:{B+3}], v[{c}:{c+3}]"

def frag_reads(setA, setB, vx):
    R = []
    for mt in range(2):
        R.append(f"ds_read_b128 v[{setB+4*mt}:{setB+4*mt+3}], v{vx} offset:{mt*2048}")
    for T in range(10):
        arr, t = divmod(T, 5)
        off = arr*6144
        R.append(f"ds_read_b64_tr_b16 v[{setA+4*T}:{setA+4*T+1}], v{V_WR+5*arr+t} offset:{off}")
        R.append(f"ds_read_b64_tr_b16 v[{setA+4*T+2}:{setA+4*T+3}], v{V_WR+5*arr+t} offset:{off+8*192}")
    return R

def emit_step(a, curA, curB, reads, cs_waves, fill=()):
    fill = list(fill)
    M = []
    for T in range(10):
        for mt in range(2):
            M.append(mf16(acc(mt, T), curA+4*T, curB+4*mt))
    ri = 0
    for k, m in enumerate(M):
        if "nomfma" not in EXP: a(m)
        for _ in range(2):
            if ri < len(reads):
                a(reads[ri]); ri += 1
            elif fill:
                a(fill.pop(0))
    assert ri == len(reads)
    for f in fill: a(f)

def adv_w():
    L = [f"s_add_u32 s54, s54, {WR_STG}\ns_cmp_ge_u32 s54, {WR_N*WR_STG}\ns_cselect_b32 s58, s77, s76\ns_cselect_b32 s54, 0, s54"]
    for i in range(10): L.append(f"v_add_u32 v{V_WR+i}, s58, v{V_WR+i}")
    return L
def adv_x():
    return [f"s_add_u32 s55, s55, {XR_STG}\ns_cmp_ge_u32 s55, {XR_N*XR_STG}\ns_cselect_b32 s56, s79, s78\ns_cselect_b32 s55, 0, s55",
            f"v_add_u32 v{V_XR0}, s56, v{V_XR0}", f"v_add_u32 v{V_XR1}, s56, v{V_XR1}"]

def emit_delta(a):
    a(f"s_mul_i32 s68, s{S_HG}, 160")
    a("s_add_u32 s69, s68, 2560")
    a("s_add_u32 s68, s68, 1280")
    a(f"s_mul_i32 s70, s{S_HG}, 320")
    a("s_add_u32 s71, s70, 160")
    a(f"s_cmp_eq_u32 s{S_ROLE}, 0")
    a("s_cselect_b32 s68, s68, s70")
    a("s_cselect_b32 s69, s69, s71")
    a("s_and_b32 s66, s68, 63")
    a("s_and_b32 s67, s69, 63")
    a("s_sub_u32 s68, s68, s66")
    a("s_sub_u32 s69, s69, s67")

def emit_loader(a):
    srd(a, SRD_A, 4, S*D*2)
    srd(a, SRD_B, 6, D*3*D*2)
    a("v_and_b32 v1, 63, v0")
    a("v_lshrrev_b32 v14, 3, v1")
    a("v_and_b32 v32, 7, v1")
    a("v_xor_b32 v32, v32, v14")
    a("v_lshlrev_b32 v32, 4, v32")
    a("v_mul_u32_u24 v14, 1280, v14")
    a("v_add_u32 v2, v14, v32")
    a(f"s_lshl_b32 s60, s{S_RB}, 7")
    a(f"s_lshl_b32 s52, s{S_WAVE}, 5")
    a("s_add_u32 s60, s60, s52")
    a("s_mul_i32 s52, s60, 1280")
    a(f"s_lshl_b32 s55, s{S_WAVE}, 12")
    a(f"s_add_u32 s55, s55, {XR_BASE}")
    for i in range(1, 4):
        a(f"v_add_u32 v{2+i}, {i*(10240-1024)}, v2")
    q = []
    xs = [0]; ws = [0]
    def issue_x():
        s = xs[0]
        a(f"s_add_u32 m0, s55, {(s % XR_N)*XR_STG}")
        a("s_nop 0")
        for i in range(4):
            a(f"buffer_load_dwordx4 v{2+i}, s[{SRD_A}:{SRD_A+3}], s52 offen offset:{i*1024} lds")
        a("s_add_u32 s52, s52, 128")
        q.append((f"X{s}", 4)); xs[0] += 1
    def issue_w():
        s = ws[0]
        a(f"s_add_u32 m0, s56, {(s % WR_N)*WR_STG}")
        a("s_nop 0")
        for j in range(3):
            a(f"buffer_load_dwordx4 v{6+j}, s[{SRD_B}:{SRD_B+3}], s53 offen offset:{j*1024} lds")
        a(f"s_add_u32 s53, s53, {32*3840}")
        q.append((f"W{s}", 3)); ws[0] += 1
    done = [-1]
    def need(names):
        last = max(i for i, (n, c) in enumerate(q) if n in names)
        if last <= done[0]: return
        done[0] = last
        a(f"s_waitcnt vmcnt({sum(c for n, c in q[last+1:])})")
    issue_x()
    emit_delta(a)
    a(f"s_and_b32 s70, s{S_WAVE}, 1")
    a("s_mul_i32 s71, s70, 192")
    for j in range(3):
        a(f"s_add_u32 s72, s71, {64*j}")
        a("v_add_u32 v32, s72, v1")
        a("v_mul_u32_u24 v33, 5462, v32")
        a("v_lshrrev_b32 v33, 16, v33")
        a("v_mul_u32_u24 v34, 12, v33")
        a("v_sub_u32 v34, v32, v34")
        a("v_bfe_u32 v36, v33, 2, 1")
        a("v_lshlrev_b32 v36, 1, v36")
        a("v_xor_b32 v34, v34, v36")
        a("v_and_b32 v35, 0x13, v33")
        a("v_and_b32 v36, 4, v33")
        a("v_lshlrev_b32 v36, 1, v36")
        a("v_or_b32 v35, v35, v36")
        a("v_and_b32 v36, 8, v33")
        a("v_lshrrev_b32 v36, 1, v36")
        a("v_or_b32 v35, v35, v36")
        a("v_mul_u32_u24 v35, 3840, v35")
        a("v_lshlrev_b32 v34, 4, v34")
        a(f"v_add_u32 v{6+j}, v35, v34")
        if j: a(f"v_subrev_u32 v{6+j}, {1024*j}, v{6+j}")
    a(f"s_lshr_b32 s71, s{S_WAVE}, 1")
    a("s_cmp_eq_u32 s71, 0")
    a("s_cselect_b32 s53, s68, s69")
    a("s_mul_i32 s56, s71, 6144")
    a("s_mul_i32 s72, s70, 3072")
    a("s_add_u32 s56, s56, s72")
    a(f"s_add_u32 s56, s56, {WR_BASE}")
    issue_w(); issue_w()
    srd(a, SRD_PHI, 8, H*DH*DH*2)
    a(f"s_mul_i32 s68, s{S_HG}, 3200")
    a(f"s_mul_i32 s69, s{S_HG}, 6400")
    a(f"s_cmp_eq_u32 s{S_ROLE}, 0")
    a("s_cselect_b32 s68, s68, s69")
    a(f"s_lshl_b32 s69, s{S_WAVE}, 11")
    a("s_add_u32 s68, s68, s69")
    a(f"s_add_u32 m0, s69, {LDS_WPHI}")
    a("v_lshlrev_b32 v14, 4, v1")
    a(f"buffer_load_dwordx4 v14, s[{SRD_PHI}:{SRD_PHI+3}], s68 offen lds")
    a(f"buffer_load_dwordx4 v14, s[{SRD_PHI}:{SRD_PHI+3}], s68 offen offset:1024 lds")
    q.append(("PHI", 2))
    issue_x(); issue_w(); issue_w(); issue_x(); issue_w(); issue_w(); issue_x(); issue_w()
    a("v_and_b32 v232, 15, v1")
    a("v_lshrrev_b32 v233, 4, v1")
    a("v_and_b32 v234, 7, v232")
    a("v_xor_b32 v234, v234, v233")
    a("v_lshlrev_b32 v234, 4, v234")
    a("v_lshlrev_b32 v235, 7, v232")
    a("v_add_u32 v234, v234, v235")
    a("v_add_u32 v26, s55, v234")
    a("v_xor_b32 v27, 64, v26")
    emit_delta(a)
    a("s_cmp_eq_u32 s71, 0")
    a(f"s_lshr_b32 s72, s{S_WAVE}, 1")
    a("s_cmp_eq_u32 s72, 0")
    a("s_cselect_b32 s73, s66, s67")
    a("s_mul_i32 s72, s72, 6144")
    a(f"s_add_u32 s72, s72, {WR_BASE}")
    a("v_bfe_u32 v234, v1, 2, 2")
    a("v_and_b32 v235, 1, v233")
    a("v_lshlrev_b32 v236, 2, v235")
    a("v_add_u32 v234, v234, v236")
    a("v_lshrrev_b32 v236, 1, v233")
    a("v_lshlrev_b32 v236, 4, v236")
    a("v_add_u32 v234, v234, v236")
    a("v_mul_u32_u24 v234, 192, v234")
    a("v_add_u32 v234, s72, v234")
    a("v_lshlrev_b32 v235, 5, v235")
    a("v_and_b32 v236, 3, v1")
    a("v_mul_u32_u24 v236, 40, v236")
    a("v_add_u32 v237, s73, v236")
    for t in range(5):
        a(f"v_add_u32 v238, {8*t}, v237")
        a("v_xor_b32 v238, v238, v235")
        a(f"v_add_u32 v{16+t}, v238, v234")
    for i in range(4): a(f"v_mov_b32 v{28+i}, 0x3f803f80")
    for r in range(32, 68): a(f"v_mov_b32 v{r}, 0")
    a(f"s_and_b32 s74, s{S_WAVE}, 1")
    def side(st):
        c0, c1 = ((2*st) % WR_N)*WR_STG, ((2*st+1) % WR_N)*WR_STG
        a(f"s_mov_b32 s75, {c0}")
        a("s_cmp_eq_u32 s74, 0")
        a(f"s_cselect_b32 s75, s75, {c1}")
        xo = (st % XR_N)*XR_STG
        for ks in range(2):
            for mt in range(2):
                r = 88 + 8*ks + 4*mt
                a(f"ds_read_b128 v[{r}:{r+3}], v{26+ks} offset:{xo + mt*2048}")
        for t in range(5): a(f"v_add_u32 v{21+t}, s75, v{16+t}")
        for t in range(5):
            a(f"ds_read_b64_tr_b16 v[{68+4*t}:{69+4*t}], v{21+t}")
            a(f"ds_read_b64_tr_b16 v[{70+4*t}:{71+4*t}], v{21+t} offset:{8*192}")
        a("s_waitcnt lgkmcnt(10)")
        for ks in range(2):
            for mt in range(2):
                r = 88 + 8*ks + 4*mt
                a(mf16(52+4*mt, 28, r))
                a(mf16(60+4*mt, r, r))
        a("s_waitcnt lgkmcnt(0)")
        for t in range(5):
            a(mf16(32+4*t, 68+4*t, 28))
    need(["X0", "W0", "W1"])
    stamp(a, 2)
    a("s_barrier")
    side(0)
    for i in range(10):
        names = []
        if i + 1 < 10: names = [f"W{2*i+2}", f"W{2*i+3}", f"X{i+1}"]
        if names: need(names)
        a("s_barrier")
        if 2*i + 7 < 20: issue_w()
        if i + 4 < 10: issue_x()
        if 2*i + 8 < 20: issue_w()
        if i + 1 < 10: side(i+1)
    need(["PHI"])
    lbk = a.label("pk"); lbq = a.label("pq")
    a(f"s_cmp_eq_u32 s{S_ROLE}, 0")
    a(f"s_cbranch_scc0 {lbk}")
    emit_phi_addr(a, 14, 0)
    a(f"s_branch {lbq}")
    a(f"{lbk}:")
    emit_phi_addr(a, 14, 1)
    a(f"{lbq}:")
    emit_phi_frags(a, PF, 14)
    a.nop(8)
    a("v_and_b32 v232, 15, v1")
    a("v_lshrrev_b32 v233, 4, v1")
    a("v_lshlrev_b32 v234, 4, v233")
    a(f"s_mul_i32 s60, s{S_WAVE}, 320")
    a(f"v_add_u32 v234, s60, v234")
    a("v_cmp_eq_u32 vcc, 0, v232")
    a("s_and_saveexec_b64 s[68:69], vcc")
    for t in range(5):
        a(f"ds_write_b128 v234, v[{32+4*t}:{32+4*t+3}] offset:{LDS_CS+64*t}")
    a("s_mov_b64 exec, s[68:69]")
    a("v_and_b32 v234, 3, v1")
    a("v_cmp_eq_u32 s[68:69], 1, v234")
    a("v_cmp_eq_u32 s[70:71], 2, v234")
    a("v_cmp_eq_u32 s[72:73], 3, v234")
    a("v_lshrrev_b32 v235, 2, v232")
    a("v_lshlrev_b32 v235, 4, v235")
    a("v_add_u32 v235, v235, v232")
    a("v_lshlrev_b32 v235, 2, v235")
    for mt in range(2):
        qq = 60+4*mt
        a(f"v_cndmask_b32 v{236+mt}, v{qq}, v{qq+1}, s[68:69]")
        a(f"v_cndmask_b32 v{236+mt}, v{236+mt}, v{qq+2}, s[70:71]")
        a(f"v_cndmask_b32 v{236+mt}, v{236+mt}, v{qq+3}, s[72:73]")
    for mt in range(2):
        a(f"ds_bpermute_b32 v{238+mt}, v235, v{236+mt}")
    a("s_mov_b32 s60, 0x3acccccd")
    a("s_waitcnt lgkmcnt(0)")
    for mt in range(2):
        st = 240 + 2*mt
        a(f"v_mul_f32 v{236+mt}, s60, v{52+4*mt}")
        a(f"v_mul_f32 v{238+mt}, s60, v{238+mt}")
        a(f"v_fma_f32 v{238+mt}, -v{236+mt}, v{236+mt}, v{238+mt}")
        a(f"v_max_f32 v{238+mt}, 0, v{238+mt}")
        a(f"v_add_f32 v{238+mt}, 0x3727c5ac, v{238+mt}")
        a(f"v_rsq_f32 v{st}, v{238+mt}")
        a.nop(1)
        a(f"v_mul_f32 v{st+1}, v{236+mt}, v{st}")
        a(f"v_sub_f32 v{st+1}, 0, v{st+1}")
    a("v_lshlrev_b32 v232, 3, v232")
    a(f"s_lshl_b32 s60, s{S_WAVE}, 8")
    a("v_add_u32 v232, s60, v232")
    a("s_mov_b64 exec, 0xffff")
    for mt in range(2):
        a(f"ds_write_b64 v232, v[{240+2*mt}:{241+2*mt}] offset:{LDS_STAT+128*mt}")
    a("s_mov_b64 exec, -1")
    a("s_waitcnt lgkmcnt(0)")
    a("s_barrier")
    emit_epi_loader(a)

def emit_main(a):
    srd(a, SRD_DBG, 22, 256)
    a("v_and_b32 v1, 63, v0")
    a(f"s_mov_b32 s{S_ZERO}, 0")
    lb_not = a.label("noticket")
    a(f"s_cmp_lg_u32 s{S_ROLE}, 0")
    a(f"s_cbranch_scc1 {lb_not}")
    a(f"s_cmp_lg_u32 s{S_WAVE}, 0")
    a(f"s_cbranch_scc1 {lb_not}")
    a(f"s_lshl_b32 s60, s{S_HG}, 2")
    a("v_mov_b32 v14, s60")
    a("v_mov_b32 v15, 1")
    a("s_mov_b64 exec, 1")
    a(f"buffer_atomic_add v15, v14, s[{SRD_DBG}:{SRD_DBG+3}], 0 offen sc0")
    a("s_mov_b64 exec, -1")
    a(f"{lb_not}:")
    a("v_and_b32 v232, 15, v1")
    a("v_lshrrev_b32 v233, 4, v1")
    a("v_and_b32 v234, 7, v232")
    a("v_xor_b32 v234, v234, v233")
    a("v_lshlrev_b32 v234, 4, v234")
    a("v_lshlrev_b32 v235, 7, v232")
    a("v_add_u32 v234, v234, v235")
    a(f"s_lshl_b32 s60, s{S_WAVE}, 12")
    a(f"s_add_u32 s60, s60, {XR_BASE}")
    a(f"v_add_u32 v{V_XR0}, s60, v234")
    a(f"v_xor_b32 v{V_XR1}, 64, v{V_XR0}")
    emit_delta(a)
    a("v_bfe_u32 v234, v1, 2, 2")
    a("v_and_b32 v235, 1, v233")
    a("v_lshlrev_b32 v236, 2, v235")
    a("v_add_u32 v234, v234, v236")
    a("v_lshrrev_b32 v236, 1, v233")
    a("v_lshlrev_b32 v236, 4, v236")
    a("v_add_u32 v234, v234, v236")
    a("v_mul_u32_u24 v234, 192, v234")
    a(f"v_add_u32 v234, {WR_BASE}, v234")
    a("v_lshlrev_b32 v235, 5, v235")
    a("v_and_b32 v236, 3, v1")
    a("v_mul_u32_u24 v236, 40, v236")
    for arr in range(2):
        a(f"v_add_u32 v237, s{66+arr}, v236")
        for t in range(5):
            a(f"v_add_u32 v238, {8*t}, v237")
            a("v_xor_b32 v238, v238, v235")
            a(f"v_add_u32 v{V_WR+5*arr+t}, v238, v234")
    for r in range(V_ACC, V_ACC+80): a(f"v_mov_b32 v{r}, 0")
    a("v_lshlrev_b32 v232, 2, v0")
    a("v_mov_b32 v233, 0")
    a(f"ds_write_b32 v232, v233 offset:{LDS_ZERO}")
    a("s_mov_b32 s57, 0")
    a("s_mov_b32 s54, 0")
    a("s_mov_b32 s55, 0")
    a(f"s_mov_b32 s76, {WR_STG}")
    a(f"s_mov_b32 s77, {(-(WR_N-1)*WR_STG) & 0xffffffff}")
    a(f"s_mov_b32 s78, {XR_STG}")
    a(f"s_mov_b32 s79, {(-(XR_N-1)*XR_STG) & 0xffffffff}")
    lb_nz = a.label("nozero")
    a(f"s_cmp_lg_u32 s{S_ROLE}, 0")
    a(f"s_cbranch_scc1 {lb_nz}")
    a(f"s_cmp_lg_u32 s{S_WAVE}, 0")
    a(f"s_cbranch_scc1 {lb_nz}")
    a("s_waitcnt vmcnt(0)")
    a("v_readfirstlane_b32 s60, v15")
    a("s_nop 3")
    a("s_cmp_lg_u32 s60, 0")
    a(f"s_cbranch_scc1 {lb_nz}")
    a(f"s_mov_b32 s{S_ZERO}, 1")
    a("s_mov_b32 s72, s24\ns_mov_b32 s73, s25")
    a(f"s_add_u32 s74, s{S_HG}, 1")
    a(f"s_mul_i32 s74, s74, 13440")
    a("s_mov_b32 s75, 0x00020000")
    a(f"s_mul_i32 s60, s{S_HG}, 13440")
    a("v_lshlrev_b32 v232, 4, v1")
    for i in range(4): a(f"v_mov_b32 v{236+i}, 0")
    for i in range(14):
        a(f"buffer_store_dwordx4 v[236:239], v232, s[72:75], s60 offen sc1")
        a("s_add_u32 s60, s60, 1024")
    a(f"{lb_nz}:")
    a("s_waitcnt lgkmcnt(0)")
    stamp(a, 2)
    a("s_barrier")
    stamp(a, 3)
    for r in frag_reads(V_A0, V_B0, V_XR0): a(r)
    for f in adv_w(): a(f)
    a("s_waitcnt lgkmcnt(0)")
    lp = a.label("main")
    a(f"{lp}:")
    emit_step(a, V_A0, V_B0, frag_reads(V_A1, V_B1, V_XR1), [0, 2], adv_w() + adv_x())
    if "bw" in EXP: a("s_memtime s[64:65]")
    a("s_waitcnt lgkmcnt(0)")
    if "bw" in EXP: a("s_memtime s[66:67]")
    a("s_barrier")
    if "bw" in EXP:
        a("s_memtime s[68:69]")
        a("s_waitcnt lgkmcnt(0)")
        a("s_sub_u32 s70, s66, s64\ns_add_u32 s92, s92, s70")
        a("s_sub_u32 s70, s68, s66\ns_add_u32 s94, s94, s70")
    emit_step(a, V_A1, V_B1, frag_reads(V_A0, V_B0, V_XR0), [1, 3], adv_w())
    lb_f = a.label("noflag")
    a(f"s_cmp_lg_u32 s{S_ZERO}, 1")
    a(f"s_cbranch_scc1 {lb_f}")
    a(f"s_cmp_lg_u32 s57, 1")
    a(f"s_cbranch_scc1 {lb_f}")
    a("s_waitcnt vmcnt(0)")
    a(f"s_lshl_b32 s60, s{S_HG}, 2")
    a("s_add_u32 s60, s60, 32")
    a("v_mov_b32 v14, s60")
    a("v_mov_b32 v15, 1")
    a("s_mov_b64 exec, 1")
    a(f"buffer_store_dword v15, v14, s[{SRD_DBG}:{SRD_DBG+3}], 0 offen sc1")
    a("s_mov_b64 exec, -1")
    a(f"{lb_f}:")
    a("s_waitcnt lgkmcnt(0)")
    a("s_add_u32 s57, s57, 1")
    a("s_cmp_lt_u32 s57, 10")
    a(f"s_cbranch_scc1 {lp}")

def emit_softmax(a, P, E, OUT, T0):
    mx, mn = T0, T0+2
    a(f"v_max3_f32 v{mx}, v{P}, v{P+1}, v{P+2}")
    a(f"v_min3_f32 v{mn}, v{P}, v{P+1}, v{P+2}")
    for i in range(3, 19, 2):
        a(f"v_max3_f32 v{mx}, v{mx}, v{P+i}, v{P+i+1}")
        a(f"v_min3_f32 v{mn}, v{mn}, v{P+i}, v{P+i+1}")
    a(f"v_max_f32 v{mx}, v{mx}, v{P+19}")
    a(f"v_min_f32 v{mn}, v{mn}, v{P+19}")
    a(f"v_mul_f32 v{mx}, s{S_L2E+1}, v{mx}")
    a(f"v_mul_f32 v{mn}, s{S_L2E}, v{mn}")
    for i in range(10):
        a(f"v_pk_fma_f32 v[{E+2*i}:{E+2*i+1}], v[{P+2*i}:{P+2*i+1}], s[70:71], v[{mx}:{mx+1}] op_sel_hi:[1,1,0]")
        a(f"v_pk_fma_f32 v[{P+2*i}:{P+2*i+1}], v[{P+2*i}:{P+2*i+1}], s[70:71], v[{mn}:{mn+1}] op_sel_hi:[1,1,0] neg_lo:[1,0,0] neg_hi:[1,0,0]")
    for i in range(20):
        a(f"v_exp_f32 v{E+i}, v{E+i}")
        a(f"v_exp_f32 v{P+i}, v{P+i}")
    a.nop(1)
    sp, sm = T0, T0+2
    a(f"v_pk_add_f32 v[{sp}:{sp+1}], v[{E}:{E+1}], v[{E+2}:{E+3}]")
    a(f"v_pk_add_f32 v[{sm}:{sm+1}], v[{P}:{P+1}], v[{P+2}:{P+3}]")
    for i in range(2, 10):
        a(f"v_pk_add_f32 v[{sp}:{sp+1}], v[{sp}:{sp+1}], v[{E+2*i}:{E+2*i+1}]")
        a(f"v_pk_add_f32 v[{sm}:{sm+1}], v[{sm}:{sm+1}], v[{P+2*i}:{P+2*i+1}]")
    a(f"v_add_f32 v{sp}, v{sp}, v{sp+1}")
    a(f"v_add_f32 v{sm}, v{sm}, v{sm+1}")
    a(f"v_rcp_f32 v{sp}, v{sp}")
    a(f"v_rcp_f32 v{sm}, v{sm}")
    a.nop(1)
    for i in range(10):
        a(f"v_pk_mul_f32 v[{E+2*i}:{E+2*i+1}], v[{E+2*i}:{E+2*i+1}], v[{sp}:{sp+1}] op_sel_hi:[1,0]")
        a(f"v_pk_mul_f32 v[{P+2*i}:{P+2*i+1}], v[{P+2*i}:{P+2*i+1}], v[{sm}:{sm+1}] op_sel_hi:[1,0]")
    for i in range(10):
        a(f"v_cvt_pk_bf16_f32 v{OUT+i}, v{E+2*i}, v{E+2*i+1}")
        a(f"v_cvt_pk_bf16_f32 v{OUT+10+i}, v{P+2*i}, v{P+2*i+1}")

def mf16k16(d, A, B):
    return f"v_mfma_f32_16x16x16_bf16 v[{d}:{d+3}], v[{A}:{A+1}], v[{B}:{B+1}], v[{d}:{d+3}]"

def emit_phi_frags(a, dst, vaddr):
    for t in range(5):
        b = dst + 10*t
        for kk in range(2):
            for q in range(2):
                a(f"ds_read_b64_tr_b16 v[{b+4*kk+2*q}:{b+4*kk+2*q+1}], v{vaddr} offset:{(8*kk+4*q)*40+8*t}")
        a(f"ds_read_b64_tr_b16 v[{b+8}:{b+9}], v{vaddr} offset:{16*40+8*t}")

def emit_phi_mfma(a, PF, KB, P):
    for t in range(5):
        b = PF + 10*t
        d = P + 4*t
        a(f"v_mfma_f32_16x16x32_bf16 v[{d}:{d+3}], v[{b}:{b+3}], v[{KB}:{KB+3}], 0")
    for t in range(5):
        b = PF + 10*t
        d = P + 4*t
        a(f"v_mfma_f32_16x16x32_bf16 v[{d}:{d+3}], v[{b+4}:{b+7}], v[{KB+4}:{KB+7}], v[{d}:{d+3}]")
    for t in range(5):
        b = PF + 10*t
        d = P + 4*t
        a(mf16k16(d, b+8, KB+8))

def emit_phi_addr(a, dst, hh):
    a("v_lshrrev_b32 v232, 4, v1")
    a("v_and_b32 v233, 3, v1")
    a("v_bfe_u32 v234, v1, 2, 2")
    a("v_mul_u32_u24 v234, 40, v234")
    a("v_mul_u32_u24 v235, 800, v232")
    a(f"v_add_u32 v235, {LDS_WPHI+hh*3200}, v235")
    a("v_cmp_eq_u32 vcc, v232, v233")
    a(f"v_mov_b32 v236, {LDS_ZERO}")
    a.nop(1)
    a("v_cndmask_b32 v235, v236, v235, vcc")
    a(f"v_add_u32 v{dst}, v235, v234")

def emit_consts(a):
    a(f"s_mov_b32 s{S_L2E}, 0x3fb8aa3b")
    a(f"s_mov_b32 s{S_L2E+1}, 0xbfb8aa3b")
    a("s_mov_b32 s70, 0x3fb8aa3b")
    a("s_mov_b32 s71, 0x3fb8aa3b")

PF = 120
CSR = 170
KB = 190
PP = 100
EE = 210

def emit_cs_read(a, arr):
    a("v_lshrrev_b32 v233, 4, v1")
    a("v_lshlrev_b32 v234, 4, v233")
    for t in range(5):
        a(f"ds_read_b128 v[{CSR+4*t}:{CSR+4*t+3}], v234 offset:{LDS_CS+(2*arr)*320+64*t}")
        a(f"ds_read_b128 v[{CSR+20+4*t}:{CSR+20+4*t+3}], v234 offset:{LDS_CS+(2*arr+1)*320+64*t}")
    a("s_waitcnt lgkmcnt(0)")
    for i in range(10):
        a(f"v_pk_add_f32 v[{CSR+2*i}:{CSR+2*i+1}], v[{CSR+2*i}:{CSR+2*i+1}], v[{CSR+20+2*i}:{CSR+20+2*i+1}]")

def emit_stat_read(a, cw_reg):
    a("v_and_b32 v232, 15, v1")
    a("v_lshlrev_b32 v232, 3, v232")
    a(f"s_lshl_b32 s60, s{cw_reg}, 8")
    a("v_add_u32 v232, s60, v232")
    a(f"ds_read_b64 v[230:231], v232 offset:{LDS_STAT}")
    a(f"ds_read_b64 v[240:241], v232 offset:{LDS_STAT+128}")

def emit_ln(a, R, st):
    for i in range(10):
        r = R + 2*i
        a(f"v_pk_mul_f32 v[206:207], v[{CSR+2*i}:{CSR+2*i+1}], v[{st}:{st+1}] op_sel:[0,1] op_sel_hi:[1,1]")
        a(f"v_pk_fma_f32 v[{r}:{r+1}], v[{r}:{r+1}], v[{st}:{st+1}], v[206:207] op_sel_hi:[1,0,1]")

def emit_unit(a, R):
    for t in range(5):
        r = R + 4*t
        a(f"v_cvt_pk_bf16_f32 v{KB+2*t}, v{r}, v{r+1}")
        a(f"v_cvt_pk_bf16_f32 v{KB+2*t+1}, v{r+2}, v{r+3}")
    a.nop(2)
    emit_phi_mfma(a, PF, KB, PP)
    a.nop(8)
    emit_softmax(a, PP, EE, R, 250)

def phi_write_addr(a, cw_reg):
    a("v_and_b32 v232, 15, v1")
    a("v_lshrrev_b32 v233, 4, v1")
    a(f"s_lshl_b32 s60, s{cw_reg}, 5")
    a("v_add_u32 v232, s60, v232")
    a(f"v_mul_u32_u24 v234, {PHI_P}, v232")
    a("v_mul_u32_u24 v235, 80, v233")
    a("v_add_u32 v248, v234, v235")
    a(f"v_mul_u32_u24 v234, {V_P}, v232")
    a("v_mul_u32_u24 v235, 48, v233")
    a("v_add_u32 v249, v234, v235")
    a(f"v_add_u32 v249, {LDS_V}, v249")

def q_store_addr(a, cw_reg, hh):
    a("v_and_b32 v232, 15, v1")
    a("v_lshrrev_b32 v233, 4, v1")
    a("v_mul_u32_u24 v233, 2560, v233")
    a("v_lshlrev_b32 v232, 4, v232")
    a("v_add_u32 v248, v232, v233")
    a(f"s_lshl_b32 s60, s{S_RB}, 2")
    a(f"s_add_u32 s60, s60, s{cw_reg}")
    a("s_lshl_b32 s60, s60, 5")
    a(f"s_lshl_b32 s68, s{S_HG}, 3")
    a("s_add_u32 s60, s60, s68")
    if hh: a("s_add_u32 s60, s60, 4")
    a("s_mul_i32 s60, s60, 2560")
    a(f"s_add_u32 s69, s60, {WS_PHIQ}")

def emit_epi_loader(a):
    emit_consts(a)
    RX = 20
    a("v_lshlrev_b32 v2, 4, v1")
    a(f"s_mul_i32 s60, s{S_WAVE}, 10240")
    a(f"s_add_u32 s60, s60, {LDS_ACCX}")
    a("v_add_u32 v2, s60, v2")
    a(f"s_cmp_eq_u32 s{S_ROLE}, 0")
    a("s_cbranch_scc0 Lp1_ld_q")
    for t in range(5):
        a(f"ds_read_b128 v[{RX+4*t}:{RX+4*t+3}], v2 offset:{t*1024}")
    emit_stat_read(a, S_WAVE)
    emit_cs_read(a, 0)
    emit_ln(a, RX, 240)
    emit_unit(a, RX)
    phi_write_addr(a, S_WAVE)
    for i in range(5):
        a(f"ds_write_b128 v248, v[{RX+4*i}:{RX+4*i+3}] offset:{LDS_PHI+16*PHI_P+16*i}")
    a("s_waitcnt lgkmcnt(0)")
    a("s_barrier")
    a("s_branch Lp1_exit")
    a("Lp1_ld_q:")
    for t in range(10):
        a(f"ds_read_b128 v[{RX+4*t}:{RX+4*t+3}], v2 offset:{t*1024}")
    emit_stat_read(a, S_WAVE)
    emit_cs_read(a, 1)
    q_store_addr(a, S_WAVE, 1)
    for mt in range(2):
        R = RX + 20*mt
        emit_ln(a, R, 230 if mt == 0 else 240)
        emit_unit(a, R)
        for p in range(5):
            a(f"buffer_store_dwordx4 v[{R+4*p}:{R+4*p+3}], v248, s[{SRD_WS}:{SRD_WS+3}], s69 offen offset:{p*512+mt*256}{ST}")
    a("s_branch Lp1_exit")

def emit_epi_common(a):
    a("s_waitcnt vmcnt(0)")
    a.nop(8)
    a("v_and_b32 v232, 15, v1")
    a("v_lshrrev_b32 v233, 4, v1")
    a("v_lshlrev_b32 v234, 4, v233")
    a(f"s_mul_i32 s60, s{S_WAVE}, 320")
    a(f"v_add_u32 v234, s60, v234")
    a("v_lshlrev_b32 v2, 4, v1")
    a(f"s_mul_i32 s60, s{S_WAVE}, 10240")
    a(f"s_add_u32 s60, s60, {LDS_ACCX}")
    a("v_add_u32 v2, s60, v2")
    lbq = a.label("xq"); lbd = a.label("xd")
    a(f"s_cmp_eq_u32 s{S_ROLE}, 0")
    a(f"s_cbranch_scc0 {lbq}")
    for t in range(5):
        a(f"ds_write_b128 v2, v[{acc(1,t)}:{acc(1,t)+3}] offset:{t*1024}")
    a(f"s_branch {lbd}")
    a(f"{lbq}:")
    for mt in range(2):
        for t in range(5):
            a(f"ds_write_b128 v2, v[{acc(mt,5+t)}:{acc(mt,5+t)+3}] offset:{(mt*5+t)*1024}")
    a(f"{lbd}:")
    emit_consts(a)
    emit_phi_addr(a, 14, 0)
    emit_phi_frags(a, PF, 14)
    a("s_waitcnt lgkmcnt(0)")
    a("s_barrier")

def emit_epi_kv(a):
    emit_stat_read(a, S_WAVE)
    phi_write_addr(a, S_WAVE)
    emit_cs_read(a, 1)
    for mt in range(2):
        emit_ln(a, acc(mt, 5), 230 if mt == 0 else 240)
        vb = 210
        for t in range(5):
            r = acc(mt, 5+t)
            a(f"v_cvt_pk_bf16_f32 v{vb+2*t}, v{r}, v{r+1}")
            a(f"v_cvt_pk_bf16_f32 v{vb+2*t+1}, v{r+2}, v{r+3}")
        a(f"v_mov_b32 v{vb+10}, 0x3f80")
        a(f"v_mov_b32 v{vb+11}, 0")
        for i in range(3):
            a(f"ds_write_b128 v249, v[{vb+4*i}:{vb+4*i+3}] offset:{mt*16*V_P+16*i}")
        a.nop(2)
    emit_cs_read(a, 0)
    emit_ln(a, acc(0, 0), 230)
    emit_unit(a, acc(0, 0))
    o = acc(0, 0)
    for i in range(5):
        a(f"ds_write_b128 v248, v[{o+4*i}:{o+4*i+3}] offset:{LDS_PHI+16*i}")
    a("s_waitcnt lgkmcnt(0)")
    a("s_barrier")
    if "bw" not in EXP: stamp(a, 6)
    a("v_lshrrev_b32 v232, 4, v1")
    a("v_lshlrev_b32 v232, 2, v232")
    a("v_bfe_u32 v233, v1, 2, 2")
    a("v_add_u32 v232, v232, v233")
    a("v_and_b32 v233, 3, v1")
    a("v_lshlrev_b32 v233, 3, v233")
    a(f"v_mul_u32_u24 v234, {PHI_P}, v232")
    a("v_add_u32 v234, v234, v233")
    a(f"s_mul_i32 s60, s{S_WAVE}, 80")
    a("v_add_u32 v234, s60, v234")
    a(f"v_mul_u32_u24 v235, {V_P}, v232")
    a("v_add_u32 v235, v235, v233")
    a(f"s_mul_i32 s60, s{S_WAVE}, 48")
    a("v_add_u32 v235, s60, v235")
    a(f"v_add_u32 v235, {LDS_V}, v235")
    KD = 100
    FA, FB = 136, 184
    for s in range(4):
        for ft in range(3):
            for q in range(2):
                a(f"ds_read_b64_tr_b16 v[{FA+12*s+4*ft+2*q}:{FA+12*s+4*ft+2*q+1}], v234 offset:{LDS_PHI+(32*s+16*q)*PHI_P+32*ft}")
        for dt in range(2):
            for q in range(2):
                a(f"ds_read_b64_tr_b16 v[{FB+8*s+4*dt+2*q}:{FB+8*s+4*dt+2*q+1}], v235 offset:{(32*s+16*q)*V_P+32*dt}")
    for s in range(4):
        a(f"s_waitcnt lgkmcnt({min(15, 10*(3-s))})")
        for ft in range(3):
            for dt in range(2):
                d = KD+4*(ft*2+dt)
                if s == 0:
                    a(f"v_mfma_f32_16x16x32_bf16 v[{d}:{d+3}], v[{FA+4*ft}:{FA+4*ft+3}], v[{FB+4*dt}:{FB+4*dt+3}], 0")
                else:
                    a(mf16(d, FA+12*s+4*ft, FB+8*s+4*dt))
    a("v_and_b32 v232, 15, v1")
    a("v_lshrrev_b32 v233, 4, v1")
    a("v_and_b32 v234, 1, v233")
    a("v_lshrrev_b32 v235, 1, v233")
    a("v_lshlrev_b32 v236, 1, v234")
    a("v_add_u32 v236, v236, v235")
    a("v_mul_u32_u24 v236, 336, v236")
    a("v_lshlrev_b32 v237, 4, v232")
    a("v_add_u32 v236, v236, v237")
    a(f"s_mul_i32 s60, s{S_WAVE}, 3360")
    a(f"s_add_u32 s61, s60, {LDS_KVO}")
    a("v_add_u32 v236, s61, v236")
    a("v_mul_u32_u24 v238, 336, v234")
    a("v_add_u32 v238, v238, v237")
    a("v_add_u32 v238, s61, v238")
    a("v_cmp_gt_u32 s[68:69], 5, v232")
    a("v_cmp_eq_u32 s[70:71], 0, v235")
    a("s_and_b64 s[72:73], s[68:69], s[70:71]")
    for ft in range(2):
        a(f"ds_write_b128 v236, v[{KD+4*(ft*2)}:{KD+4*(ft*2)+3}] offset:{ft*4*336}")
    a("s_mov_b64 exec, s[68:69]")
    for ft in range(2):
        a(f"ds_write_b128 v236, v[{KD+4*(ft*2+1)}:{KD+4*(ft*2+1)+3}] offset:{ft*4*336+256}")
    a("s_mov_b64 exec, s[70:71]")
    a(f"ds_write_b128 v238, v[{KD+16}:{KD+19}] offset:{8*336}")
    a("s_mov_b64 exec, s[72:73]")
    a(f"ds_write_b128 v238, v[{KD+20}:{KD+23}] offset:{8*336+256}")
    a("s_mov_b64 exec, -1")
    a("v_lshlrev_b32 v232, 2, v1")
    a("v_add_u32 v233, s61, v232")
    a(f"s_lshl_b32 s68, s{S_HG}, 2")
    a("s_add_u32 s68, s68, 32")
    a("v_mov_b32 v234, s68")
    a(f"buffer_load_dword v235, v234, s[{SRD_DBG}:{SRD_DBG+3}], 0 offen sc1")
    a("s_waitcnt lgkmcnt(0)")
    for i in range(14):
        a(f"ds_read_b32 v{136+i}, v233 offset:{256*i}")
    lp = a.label("poll"); lpd = a.label("polld")
    a(f"{lp}:")
    a("s_waitcnt vmcnt(0)")
    a("v_readfirstlane_b32 s69, v235")
    a("s_nop 3")
    a("s_cmp_lg_u32 s69, 0")
    a(f"s_cbranch_scc1 {lpd}")
    a(f"buffer_load_dword v235, v234, s[{SRD_DBG}:{SRD_DBG+3}], 0 offen sc1")
    a(f"s_branch {lp}")
    a(f"{lpd}:")
    if "bw" not in EXP: stamp(a, 7)
    a(f"s_mul_i32 s68, s{S_HG}, 13440")
    a("s_add_u32 s68, s68, s60")
    a("s_waitcnt lgkmcnt(0)")
    for i in range(13):
        a(f"buffer_atomic_add_f32 v{136+i}, v232, s[{SRD_WS}:{SRD_WS+3}], s68 offen offset:{256*i}")
    a("s_mov_b64 exec, 0xff")
    a(f"buffer_atomic_add_f32 v{136+13}, v232, s[{SRD_WS}:{SRD_WS+3}], s68 offen offset:{256*13}")
    a("s_mov_b64 exec, -1")
    a("s_branch Lp1_end")

def emit_epi_q(a):
    emit_stat_read(a, S_WAVE)
    emit_cs_read(a, 0)
    q_store_addr(a, S_WAVE, 0)
    for mt in range(2):
        R = acc(mt, 0)
        emit_ln(a, R, 230 if mt == 0 else 240)
        emit_unit(a, R)
        for p in range(5):
            a(f"buffer_store_dwordx4 v[{R+4*p}:{R+4*p+3}], v248, s[{SRD_WS}:{SRD_WS+3}], s69 offen offset:{p*512+mt*256}{ST}")
    a("s_branch Lp1_end")

def emit_p1(a):
    kernel_begin(a, "p1_kernel")
    a("s_cmp_ge_u32 s2, 256")
    a("s_cbranch_scc1 Lp1_exit")
    stamp_init(a)
    a("s_load_dwordx8 s[4:11], s[0:1], 0")
    a("s_load_dwordx8 s[12:19], s[0:1], 32")
    a("s_load_dwordx4 s[20:23], s[0:1], 64")
    a("s_load_dwordx2 s[24:25], s[0:1], 80")
    a("v_lshrrev_b32 v1, 6, v0")
    a(f"s_and_b32 s{S_XCD}, s2, 7")
    a(f"s_lshr_b32 s{S_SLOT}, s2, 3")
    a(f"v_readfirstlane_b32 s{S_WAVE}, v1")
    a("s_waitcnt lgkmcnt(0)")
    stamp(a, 1)
    srd(a, SRD_WS, 24, WS_END)
    a(f"s_cmp_ge_u32 s{S_SLOT}, 24")
    a("s_cbranch_scc1 Lp1_pack")
    a(f"s_lshr_b32 s60, s{S_XCD}, 1")
    a(f"s_and_b32 s66, s{S_XCD}, 1")
    a(f"s_cmp_ge_u32 s{S_SLOT}, 16")
    a("s_cbranch_scc1 Lp1_q")
    a(f"s_mov_b32 s{S_ROLE}, 0")
    a(f"s_lshl_b32 s{S_RB}, s60, 2")
    a(f"s_lshr_b32 s67, s{S_SLOT}, 2")
    a(f"s_add_u32 s{S_RB}, s{S_RB}, s67")
    a(f"s_lshl_b32 s{S_HG}, s66, 2")
    a(f"s_and_b32 s67, s{S_SLOT}, 3")
    a(f"s_add_u32 s{S_HG}, s{S_HG}, s67")
    a("s_branch Lp1_main")
    a("Lp1_q:")
    a(f"s_mov_b32 s{S_ROLE}, 1")
    a(f"s_sub_u32 s67, s{S_SLOT}, 16")
    a(f"s_lshl_b32 s{S_RB}, s60, 2")
    a(f"s_lshr_b32 s68, s67, 1")
    a(f"s_add_u32 s{S_RB}, s{S_RB}, s68")
    a(f"s_lshl_b32 s{S_HG}, s66, 1")
    a(f"s_and_b32 s68, s67, 1")
    a(f"s_add_u32 s{S_HG}, s{S_HG}, s68")
    a("Lp1_main:")
    a(f"s_cmp_ge_u32 s{S_WAVE}, 4")
    a("s_cbranch_scc0 Lp1_cons")
    a(f"s_sub_u32 s{S_WAVE}, s{S_WAVE}, 4")
    emit_loader(a)
    a("Lp1_cons:")
    if os.environ.get("PRIO"): a("s_setprio " + os.environ["PRIO"])
    emit_main(a)
    stamp(a, 4)
    emit_epi_common(a)
    stamp(a, 5)
    a(f"s_cmp_eq_u32 s{S_ROLE}, 0")
    a("s_cbranch_scc0 Lp1_epi_q")
    emit_epi_kv(a)
    a("Lp1_epi_q:")
    emit_epi_q(a)
    a("Lp1_pack:")
    emit_pack(a)
    a("Lp1_end:")
    stamp_store(a, 0)
    a("Lp1_exit:")
    a("s_endpgm")
```

```python
from common import *
import os
CP1 = 'cp1' in os.environ.get('EXP', '')
CP = 'nocp' not in os.environ.get('EXP', '') and not CP1
import os
ST2 = os.environ.get('ST2', 'sc0 sc1')
ST2 = (' ' + ST2) if ST2 else ''

S_WAVE, S_XCD, S_SLOT, S_TB, S_NB = 26, 27, 28, 29, 30
SRD_WS, SRD_X = 32, 36
KVL_W = 27648
LDS_XT = 110592
LDS_ST = 120832
LDS_RED = 0

def mf32(d, A, B, c):
    return f"v_mfma_f32_32x32x16_bf16 {d}, {A}, {B}, {c}"

def emit_p2(a):
    kernel_begin(a, "p2_kernel")
    a("s_cmp_ge_u32 s2, 256")
    a("s_cbranch_scc1 Lp2_exit")
    stamp_init(a)
    if CP1: code_prefetch(a, "p2_kernel", "Lp2_exit", 0, 254, 255)
    a("s_load_dwordx2 s[4:5], s[0:1], 0")
    a("s_load_dwordx2 s[24:25], s[0:1], 80")
    a("v_lshrrev_b32 v1, 6, v0")
    a(f"s_and_b32 s{S_XCD}, s2, 7")
    a(f"s_lshr_b32 s{S_SLOT}, s2, 3")
    a(f"v_readfirstlane_b32 s{S_WAVE}, v1")
    a(f"s_lshl_b32 s{S_TB}, s{S_XCD}, 3")
    a(f"s_lshr_b32 s31, s{S_SLOT}, 2")
    a(f"s_add_u32 s{S_TB}, s{S_TB}, s31")
    a(f"s_and_b32 s{S_NB}, s{S_SLOT}, 3")
    a("v_and_b32 v1, 63, v0")
    a("v_lshlrev_b32 v2, 4, v1")
    if CP: code_prefetch(a, "p2_kernel", "Lp2_exit", 1, 3, 255)
    a("s_waitcnt lgkmcnt(0)")
    stamp(a, 1)
    srd(a, SRD_WS, 24, WS_END)
    srd(a, SRD_X, 4, S*D*2)
    a(f"s_mul_i32 s40, s{S_WAVE}, 26880")
    if WS_KV: a(f"s_add_u32 s40, s40, {WS_KV}")
    a(f"s_mul_i32 s41, s{S_WAVE}, {KVL_W}")
    a(f"s_lshl_b32 s42, s{S_TB}, 5")
    a(f"s_lshl_b32 s43, s{S_WAVE}, 3")
    a("s_add_u32 s42, s42, s43")
    a("s_mul_i32 s42, s42, 2560")
    a(f"s_add_u32 s42, s42, {WS_PHIQ}")
    a("v_and_b32 v3, 31, v1")
    a("v_lshlrev_b32 v11, 4, v3")
    QQ = []
    done = [-1]
    def need(name):
        last = max(i for i, n in enumerate(QQ) if n == name)
        if last <= done[0]: return
        done[0] = last
        a(f"s_waitcnt vmcnt({min(63, len(QQ)-1-last)})")
    kvi = [0]
    def issue_head(h):
        last = -(-((h+1)*3360) // 1024)
        while kvi[0] < last:
            i = kvi[0]
            a(f"s_add_u32 m0, s41, {(i//4)*4096}")
            a("s_nop 0")
            a(f"buffer_load_dwordx4 v2, s[{SRD_WS}:{SRD_WS+3}], s40 offen offset:{(i%4)*1024} lds")
            if i % 4 == 3: a("s_add_u32 s40, s40, 4096")
            kvi[0] += 1; QQ.append(f"H{h}")
        a(f"buffer_load_dwordx4 a[{12*h}:{12*h+3}], v2, s[{SRD_WS}:{SRD_WS+3}], s42 offen")
        a(f"buffer_load_dwordx4 a[{12*h+4}:{12*h+7}], v2, s[{SRD_WS}:{SRD_WS+3}], s42 offen offset:1024")
        a(f"buffer_load_dwordx4 a[{12*h+8}:{12*h+11}], v11, s[{SRD_WS}:{SRD_WS+3}], s42 offen offset:2048")
        a("s_add_u32 s42, s42, 2560")
        QQ.extend([f"H{h}"]*3)
    for h in range(3): issue_head(h)
    def wreg(j): return f"a[{96+4*j}:{96+4*j+3}]" if j < 40 else f"v[{200+4*(j-40)}:{200+4*(j-40)+3}]"
    a(f"s_lshl_b32 s46, s{S_NB}, 3")
    a(f"s_lshl_b32 s47, s{S_WAVE}, 1")
    a("s_add_u32 s46, s46, s47")
    a(f"s_mul_i32 s46, s46, {25*1024}")
    a(f"s_add_u32 s46, s46, {WS_WOP}")
    wo_issued = [0]
    def issue_wo(n):
        for _ in range(n):
            j = wo_issued[0]
            if j >= 50: return
            a(f"buffer_load_dwordx4 {wreg(j)}, v2, s[{SRD_WS}:{SRD_WS+3}], s46 offen offset:{(j%4)*1024}")
            if j % 4 == 3: a("s_add_u32 s46, s46, 4096")
            wo_issued[0] += 1; QQ.append(f"W{j}")
    a("v_lshrrev_b32 v4, 5, v1")
    a("v_min_u32 v5, 20, v3")
    a("v_subrev_u32 v6, 4, v3")
    a("v_min_u32 v6, 20, v6")
    a("v_cmp_gt_u32 vcc, 16, v3")
    a.nop(1)
    a("v_cndmask_b32 v6, v6, v3, vcc")
    a("v_mul_u32_u24 v7, 336, v4")
    a(f"v_add_u32 v7, s41, v7")
    a("v_lshlrev_b32 v5, 4, v5")
    a("v_lshlrev_b32 v6, 4, v6")
    a("v_add_u32 v5, v5, v7")
    a("v_add_u32 v6, v6, v7")
    a("v_cmp_gt_u32 s[48:49], 32, v1")
    for jj in range(3):
        lb = a.label("xt")
        if jj == 2:
            a(f"s_cmp_ge_u32 s{S_WAVE}, 2")
            a(f"s_cbranch_scc1 {lb}")
        a(f"s_lshl_b32 s50, s{S_WAVE}, 6")
        a(f"s_add_u32 s50, s50, {256*jj}")
        a("v_add_u32 v8, s50, v1")
        a("v_mul_u32_u24 v9, 3277, v8")
        a("v_lshrrev_b32 v9, 16, v9")
        a("v_mul_u32_u24 v10, 20, v9")
        a("v_sub_u32 v10, v8, v10")
        a("v_mul_u32_u24 v9, 1280, v9")
        a("v_lshlrev_b32 v10, 4, v10")
        a("v_add_u32 v9, v9, v10")
        a(f"s_mul_i32 s51, s{S_TB}, {32*1280}")
        a(f"s_mul_i32 s52, s{S_NB}, 320")
        a("s_add_u32 s51, s51, s52")
        a("s_lshl_b32 s50, s50, 4")
        a(f"s_add_u32 m0, s50, {LDS_XT}")
        a("s_nop 0")
        a(f"buffer_load_dwordx4 v9, s[{SRD_X}:{SRD_X+3}], s51 offen lds")
        a(f"{lb}:")
    QQ.extend(["X", "X"])
    ACC = 16
    DD = 96
    KF = 112
    AF = 136
    OF = 148
    RF = 180
    for r in range(ACC, ACC+80): a(f"v_mov_b32 v{r}, 0")
    stamp(a, 2)
    for h in range(8):
        va = 5 if h % 2 == 0 else 6
        if h + 3 < 8: issue_head(h+3)
        issue_wo(4 if h + 3 < 8 else 10)
        need(f"H{h}")
        if h == 0: stamp(a, 3)
        for s in range(3):
            for q in range(2):
                blk = (4*s + 2*q) if s < 2 else (8 + q)
                r = KF + 8*s + 4*q
                a(f"ds_read_b128 v[{r}:{r+3}], v{va} offset:{h*3360 + blk*336}")
        a("s_waitcnt lgkmcnt(0)")
        for s in range(3):
            for i in range(4):
                a(f"v_cvt_pk_bf16_f32 v{AF+4*s+i}, v{KF+8*s+2*i}, v{KF+8*s+2*i+1}")
        for i in range(4):
            a(f"v_cndmask_b32 v{AF+8+i}, 0, v{AF+8+i}, s[48:49]")
        a.nop(2)
        a(mf32(f"v[{DD}:{DD+15}]", f"v[{AF}:{AF+3}]", f"a[{12*h}:{12*h+3}]", "0"))
        a(mf32(f"v[{DD}:{DD+15}]", f"v[{AF+4}:{AF+7}]", f"a[{12*h+4}:{12*h+7}]", f"v[{DD}:{DD+15}]"))
        a(mf32(f"v[{DD}:{DD+15}]", f"v[{AF+8}:{AF+11}]", f"a[{12*h+8}:{12*h+11}]", f"v[{DD}:{DD+15}]"))
        a.nop(13)
        a(f"v_add_f32 v188, 0x358637bd, v{DD+12}")
        a("v_rcp_f32 v188, v188")
        a.nop(1)
        for i in range(6):
            a(f"v_pk_mul_f32 v[{DD+2*i}:{DD+2*i+1}], v[{DD+2*i}:{DD+2*i+1}], v[188:189] op_sel_hi:[1,0]")
        for i in range(4):
            a(f"v_cvt_pk_bf16_f32 v{OF+4*h+i}, v{DD+2*i}, v{DD+2*i+1}")
        Q, m = divmod(h, 4)
        rr = RF + 4*Q + 2*(m >> 1)
        a("s_mov_b64 exec, s[48:49]" if m % 2 == 0 else "s_not_b64 exec, s[48:49]")
        a(f"v_cvt_pk_bf16_f32 v{rr}, v{DD+8}, v{DD+9}")
        a(f"v_cvt_pk_bf16_f32 v{rr+1}, v{DD+10}, v{DD+11}")
        a("s_mov_b64 exec, -1")
    assert wo_issued[0] == 50
    stamp(a, 4)
    for j in range(50):
        Q, rem = divmod(j, 25)
        m, nt = divmod(rem, 5)
        if j % 5 == 0:
            need(f"W{j+4}")
        B = f"v[{OF+4*(4*Q+m)}:{OF+4*(4*Q+m)+3}]" if m < 4 else f"v[{RF+4*Q}:{RF+4*Q+3}]"
        d = ACC + 16*nt
        a(mf32(f"v[{d}:{d+15}]", wreg(j), B, f"v[{d}:{d+15}]"))
    a("s_waitcnt vmcnt(0)")
    stamp(a, 5)
    a("s_barrier")
    a.nop(12)
    for j in range(1, 4):
        a(f"s_add_u32 s50, s{S_WAVE}, {j}")
        a("s_and_b32 s50, s50, 3")
        a(f"s_mul_i32 s50, s50, {15*1024}")
        a(f"s_add_u32 s50, s50, {(j-1)*5*1024}")
        a(f"v_add_u32 v{8+j}, s50, v2")
        for nt in range(5):
            r = ACC + 16*nt + 4*j
            a(f"ds_write_b128 v{8+j}, v[{r}:{r+3}] offset:{nt*1024}")
    a(f"s_mul_i32 s50, s{S_WAVE}, {15*1024}")
    a("v_add_u32 v8, s50, v2")
    a("s_waitcnt lgkmcnt(0)")
    a("s_barrier")
    RD = 96
    for i in range(15):
        a(f"ds_read_b128 v[{RD+4*i}:{RD+4*i+3}], v8 offset:{i*1024}")
    OWN = 160
    for j in range(3):
        a(f"s_waitcnt lgkmcnt({min(15, 10-5*j)})")
        for nt in range(5):
            for p in range(2):
                src = (ACC + 16*nt + 2*p) if j == 0 else (OWN + 4*nt + 2*p)
                r = RD + 4*(5*j+nt) + 2*p
                a(f"v_pk_add_f32 v[{OWN+4*nt+2*p}:{OWN+4*nt+2*p+1}], v[{src}:{src+1}], v[{r}:{r+1}]")
    stamp(a, 6)
    a("v_mul_u32_u24 v8, 320, v3")
    a("v_lshlrev_b32 v9, 3, v4")
    a("v_add_u32 v8, v8, v9")
    a(f"s_lshl_b32 s50, s{S_WAVE}, 4")
    a(f"s_add_u32 s50, s50, {LDS_XT}")
    a("v_add_u32 v8, s50, v8")
    for nt in range(5):
        a(f"ds_read_b64 v[{ACC+2*nt}:{ACC+2*nt+1}], v8 offset:{64*nt}")
    a("s_waitcnt lgkmcnt(0)")
    HB = 40
    for nt in range(5):
        for p in range(2):
            x = ACC + 2*nt + p
            a(f"v_lshlrev_b32 v60, 16, v{x}")
            a(f"v_and_b32 v61, 0xffff0000, v{x}")
            a(f"v_pk_add_f32 v[60:61], v[60:61], v[{OWN+4*nt+2*p}:{OWN+4*nt+2*p+1}]")
            a(f"v_cvt_pk_bf16_f32 v{HB+2*nt+p}, v60, v61")
    a("v_lshlrev_b32 v8, 4, v3")
    a("v_lshlrev_b32 v9, 3, v4")
    a("v_add_u32 v8, v8, v9")
    a(f"s_mul_i32 s50, s{S_TB}, 40")
    a(f"s_mul_i32 s51, s{S_NB}, 10")
    a("s_add_u32 s50, s50, s51")
    a(f"s_lshr_b32 s51, s{S_WAVE}, 1")
    a("s_add_u32 s50, s50, s51")
    a("s_lshl_b32 s50, s50, 10")
    a(f"s_and_b32 s51, s{S_WAVE}, 1")
    a("s_lshl_b32 s51, s51, 9")
    a("s_add_u32 s50, s50, s51")
    a(f"s_add_u32 s50, s50, {WS_H}")
    for nt in range(5):
        a(f"buffer_store_dwordx2 v[{HB+2*nt}:{HB+2*nt+1}], v8, s[{SRD_WS}:{SRD_WS+3}], s50 offen{ST2}")
        a("s_add_u32 s50, s50, 2048")
    a("v_mov_b32 v62, 0\nv_mov_b32 v63, 0\nv_mov_b32 v64, 0\nv_mov_b32 v65, 0")
    for i in range(10):
        a(f"v_lshlrev_b32 v60, 16, v{HB+i}")
        a(f"v_and_b32 v61, 0xffff0000, v{HB+i}")
        a("v_pk_add_f32 v[62:63], v[62:63], v[60:61]")
        a("v_pk_fma_f32 v[64:65], v[60:61], v[60:61], v[64:65]")
    a("v_add_f32 v66, v62, v63")
    a("v_add_f32 v67, v64, v65")
    a(f"s_lshl_b32 s50, s{S_WAVE}, 9")
    a(f"s_add_u32 s50, s50, {LDS_ST}")
    a("v_lshlrev_b32 v8, 3, v1")
    a("v_add_u32 v8, s50, v8")
    a("ds_write_b64 v8, v[66:67]")
    a("s_waitcnt lgkmcnt(0)")
    a("s_barrier")
    a(f"s_cmp_lg_u32 s{S_WAVE}, 0")
    a("s_cbranch_scc1 Lp2_end")
    a("s_mov_b64 exec, s[48:49]")
    a("v_lshlrev_b32 v8, 3, v3")
    a(f"v_add_u32 v8, {LDS_ST}, v8")
    for i in range(8):
        a(f"ds_read_b64 v[{70+2*i}:{71+2*i}], v8 offset:{256*i}")
    a("s_waitcnt lgkmcnt(0)")
    for i in range(1, 8):
        a(f"v_pk_add_f32 v[70:71], v[70:71], v[{70+2*i}:{71+2*i}]")
    a("v_lshlrev_b32 v8, 5, v3")
    a(f"s_lshl_b32 s50, s{S_TB}, 10")
    a(f"s_lshl_b32 s51, s{S_NB}, 3")
    a("s_add_u32 s50, s50, s51")
    a(f"s_add_u32 s50, s50, {WS_STAT}")
    a(f"buffer_store_dwordx2 v[70:71], v8, s[{SRD_WS}:{SRD_WS+3}], s50 offen")
    a("s_mov_b64 exec, -1")
    a("Lp2_end:")
    stamp_store(a, 1)
    a("Lp2_exit:")
    a("s_endpgm")
```

```python
from common import *
import os
CP = 'nocp' not in os.environ.get('EXP', '')
import os
ST3 = os.environ.get('ST3', 'sc0 sc1')
ST3 = (' ' + ST3) if ST3 else ''

S_WAVE, S_XCD, S_SLOT, S_RB, S_T0 = 26, 27, 28, 29, 30
SRD_WS = 32
NST = 7
STG = 22528
NSTAGE = 21

def mf32(d, A, B, c=None):
    c = c or d
    return f"v_mfma_f32_32x32x16_bf16 {d}, {A}, {B}, {c}"

def emit_loader(a, part):
    nW = 4 if part == 0 else 3
    t0 = 0 if part == 0 else 4
    n = nW + 2
    a("v_and_b32 v1, 63, v0")
    a("v_lshlrev_b32 v2, 4, v1")
    for j in range(nW):
        a(f"v_add_u32 v{4+j}, {(t0+j)*41*1024 - j*1024}, v2")
    a(f"s_and_b32 s40, s{S_WAVE}, 1")
    a(f"s_mul_i32 s41, s{S_T0}, {41*1024}")
    a("s_lshl_b32 s42, s40, 10")
    a("s_add_u32 s41, s41, s42")
    a(f"s_add_u32 s41, s41, {WS_WGU}")
    for i in range(2):
        a(f"v_add_u32 v{10+i}, {i*40*1024 - i*1024}, v2")
    a(f"s_lshl_b32 s43, s{S_RB}, 2")
    a(f"s_lshr_b32 s44, s{S_WAVE}, 1")
    a("s_lshl_b32 s45, s44, 1")
    a("s_add_u32 s43, s43, s45")
    a(f"s_mul_i32 s43, s43, {40*1024}")
    a("s_add_u32 s43, s43, s42")
    a(f"s_add_u32 s43, s43, {WS_H}")
    a(f"s_mul_i32 s46, s40, {7*1024}")
    a(f"s_add_u32 s46, s46, {t0*1024}")
    a("s_lshl_b32 s47, s40, 12")
    a("s_lshl_b32 s45, s45, 10")
    a("s_add_u32 s47, s47, s45")
    a("s_add_u32 s47, s47, 14336")
    a("s_mov_b32 s48, 0")
    def loads(with_h=True):
        if with_h:
            a("s_add_u32 m0, s48, s47")
            a("s_nop 0")
            for i in range(2):
                a(f"buffer_load_dwordx4 v{10+i}, s[{SRD_WS}:{SRD_WS+3}], s43 offen offset:{i*1024} lds")
        a("s_add_u32 m0, s48, s46")
        a("s_nop 0")
        for j in range(nW):
            a(f"buffer_load_dwordx4 v{4+j}, s[{SRD_WS}:{SRD_WS+3}], s41 offen offset:{j*1024} lds")
        a("s_add_u32 s41, s41, 2048")
        a("s_add_u32 s43, s43, 2048")
        a(f"s_add_u32 s48, s48, {STG}")
        a(f"s_cmp_ge_u32 s48, {NST*STG}")
        a("s_cselect_b32 s48, 0, s48")
    for st in range(NST):
        loads()
    a(f"s_waitcnt vmcnt({(NST-1)*n})")
    a("s_barrier")
    lp = a.label("p3ld")
    a("s_mov_b32 s49, 0")
    a(f"{lp}:")
    a(f"s_waitcnt vmcnt({5*n})")
    a("s_barrier")
    loads()
    a("s_add_u32 s49, s49, 1")
    a("s_cmp_lt_u32 s49, 13")
    a(f"s_cbranch_scc1 {lp}")
    a(f"s_waitcnt vmcnt({5*n})")
    a("s_barrier")
    lb = a.label("p3x")
    a(f"s_cmp_lg_u32 s40, 0")
    a(f"s_cbranch_scc1 {lb}")
    loads(with_h=False)
    a(f"{lb}:")
    for i in range(14, 19):
        a(f"s_waitcnt vmcnt({(18-i)*n})") if i < 18 else a("s_waitcnt vmcnt(0)")
        a("s_barrier")
    a("s_barrier")
    a("s_barrier")
    a("s_branch Lp3_exit")

def emit_p3(a):
    kernel_begin(a, "p3_kernel")
    a("s_cmp_ge_u32 s2, 256")
    a("s_cbranch_scc1 Lp3_exit")
    stamp_init(a)
    a("s_load_dwordx2 s[24:25], s[0:1], 80")
    a("v_lshrrev_b32 v1, 6, v0")
    a(f"s_and_b32 s{S_XCD}, s2, 7")
    a(f"s_lshr_b32 s{S_SLOT}, s2, 3")
    a(f"v_readfirstlane_b32 s{S_WAVE}, v1")
    a(f"s_lshr_b32 s{S_RB}, s{S_XCD}, 2")
    a(f"s_lshl_b32 s{S_RB}, s{S_RB}, 3")
    a(f"s_lshr_b32 s31, s{S_SLOT}, 2")
    a(f"s_add_u32 s{S_RB}, s{S_RB}, s31")
    a(f"s_and_b32 s{S_T0}, s{S_XCD}, 3")
    a(f"s_lshl_b32 s{S_T0}, s{S_T0}, 2")
    a(f"s_and_b32 s31, s{S_SLOT}, 3")
    a(f"s_add_u32 s{S_T0}, s{S_T0}, s31")
    a(f"s_mul_i32 s{S_T0}, s{S_T0}, 27")
    a(f"s_lshr_b32 s{S_T0}, s{S_T0}, 2")
    a("s_waitcnt lgkmcnt(0)")
    stamp(a, 1)
    srd(a, SRD_WS, 24, WS_END)
    a(f"s_cmp_lt_u32 s{S_WAVE}, 4")
    a("s_cbranch_scc1 Lp3_cons")
    a(f"s_sub_u32 s{S_WAVE}, s{S_WAVE}, 4")
    a(f"s_cmp_lt_u32 s{S_WAVE}, 2")
    a("s_cbranch_scc0 Lp3_ld1")
    emit_loader(a, 0)
    a("Lp3_ld1:")
    emit_loader(a, 1)
    a("Lp3_cons:")
    a("v_and_b32 v1, 63, v0")
    if CP: code_prefetch(a, "p3_kernel", "Lp3_exit", 1, 3, 255)
    ACC = 16
    A0, A1 = 128, 156
    B0, B1 = 184, 188
    MB = 192
    VW, VH = 4, 5
    a("v_and_b32 v1, 63, v0")
    a("v_lshlrev_b32 v2, 4, v1")
    a("v_and_b32 v3, 31, v1")
    a(f"s_lshl_b32 s40, s{S_RB}, 7")
    a(f"s_lshl_b32 s41, s{S_WAVE}, 5")
    a("s_add_u32 s40, s40, s41")
    a("s_lshl_b32 s40, s40, 5")
    a(f"s_add_u32 s40, s40, {WS_STAT}")
    a("v_lshlrev_b32 v6, 5, v3")
    a(f"buffer_load_dwordx4 v[200:203], v6, s[{SRD_WS}:{SRD_WS+3}], s40 offen")
    a(f"buffer_load_dwordx4 v[204:207], v6, s[{SRD_WS}:{SRD_WS+3}], s40 offen offset:16")
    a(f"v_mov_b32 v{VW}, v2")
    a(f"s_lshl_b32 s41, s{S_WAVE}, 10")
    a("s_add_u32 s41, s41, 14336")
    a(f"v_add_u32 v{VH}, s41, v2")
    for r in range(ACC, ACC+112): a(f"v_mov_b32 v{r}, 0")
    a("s_mov_b32 s42, 0")
    a(f"s_mov_b32 s44, {STG}")
    a(f"s_mov_b32 s45, {(-(NST-1)*STG) & 0xffffffff}")
    def reads(setA, setB, ks, withB=True):
        R = []
        if withB: R.append(f"ds_read_b128 v[{setB}:{setB+3}], v{VH} offset:{ks*4096}")
        for t in range(7):
            R.append(f"ds_read_b128 v[{setA+4*t}:{setA+4*t+3}], v{VW} offset:{(ks*7+t)*1024}")
        return R
    def half(curA, curB, R):
        ri = 0
        for t in range(7):
            d = ACC + 16*t
            a(mf32(f"v[{d}:{d+15}]", f"v[{curA+4*t}:{curA+4*t+3}]", f"v[{curB}:{curB+3}]"))
            for _ in range(2):
                if ri < len(R): a(R[ri]); ri += 1
        while ri < len(R): a(R[ri]); ri += 1
    def adv():
        a(f"s_add_u32 s42, s42, {STG}")
        a(f"s_cmp_ge_u32 s42, {NST*STG}")
        a("s_cselect_b32 s43, s45, s44")
        a("s_cselect_b32 s42, 0, s42")
        a(f"v_add_u32 v{VW}, s43, v{VW}")
        a(f"v_add_u32 v{VH}, s43, v{VH}")
    stamp(a, 2)
    a("s_barrier")
    stamp(a, 3)
    for r in reads(A0, B0, 0): a(r)
    a("s_waitcnt vmcnt(0)")
    a("v_add_f32 v200, v200, v202\nv_add_f32 v201, v201, v203\nv_add_f32 v204, v204, v206\nv_add_f32 v205, v205, v207")
    a("v_add_f32 v200, v200, v204\nv_add_f32 v201, v201, v205")
    a("s_mov_b32 s46, 0x3acccccd")
    a("v_mul_f32 v200, s46, v200")
    a("v_mul_f32 v201, s46, v201")
    a("v_fma_f32 v201, -v200, v200, v201")
    a("v_max_f32 v201, 0, v201")
    a("v_add_f32 v201, 0x3727c5ac, v201")
    a("v_rsq_f32 v208, v201")
    a("v_sub_f32 v200, 0, v200")
    a("v_cvt_pk_bf16_f32 v202, v200, v200")
    a("v_lshlrev_b32 v203, 16, v202")
    a("v_sub_f32 v203, v200, v203")
    a("v_cvt_pk_bf16_f32 v203, v203, v203")
    a("v_cmp_gt_u32 vcc, 32, v1")
    a.nop(2)
    a(f"v_cndmask_b32 v{MB}, 0, v202, vcc")
    a(f"v_cndmask_b32 v{MB+1}, 0, v203, vcc")
    a(f"v_mov_b32 v{MB+2}, 0")
    a(f"v_mov_b32 v{MB+3}, 0")
    a("s_waitcnt lgkmcnt(0)")
    lp = a.label("p3main")
    a("s_mov_b32 s47, 0")
    a(f"{lp}:")
    half(A0, B0, reads(A1, B1, 1))
    adv()
    a("s_waitcnt lgkmcnt(0)")
    a("s_barrier")
    half(A1, B1, reads(A0, B0, 0))
    a("s_waitcnt lgkmcnt(0)")
    a("s_add_u32 s47, s47, 1")
    a("s_cmp_lt_u32 s47, 20")
    a(f"s_cbranch_scc1 {lp}")
    half(A0, MB, [])
    a("s_barrier")
    stamp(a, 4)
    a("v_lshrrev_b32 v6, 4, v3")
    a(f"v_mul_u32_u24 v6, {54*1024}, v6")
    a("v_and_b32 v7, 15, v3")
    a("v_lshrrev_b32 v8, 5, v1")
    a("v_lshlrev_b32 v8, 4, v8")
    a("v_add_u32 v7, v7, v8")
    a("v_lshlrev_b32 v7, 4, v7")
    a("v_add_u32 v6, v6, v7")
    a(f"s_lshl_b32 s40, s{S_RB}, 3")
    a(f"s_lshl_b32 s41, s{S_WAVE}, 1")
    a("s_add_u32 s40, s40, s41")
    a(f"s_mul_i32 s40, s40, {54*1024}")
    a(f"s_add_u32 s40, s40, {WS_ACT}")
    a(f"s_lshl_b32 s41, s{S_T0}, 9")
    a("s_add_u32 s40, s40, s41")
    import math
    c1 = -2*math.sqrt(2/math.pi)*math.log2(math.e)
    c2 = c1*0.044715
    import struct
    f2u = lambda f: struct.unpack("<I", struct.pack("<f", f))[0]
    a(f"s_mov_b32 s50, 0x{f2u(c1):08x}\ns_mov_b32 s51, 0x{f2u(c1):08x}")
    a(f"s_mov_b32 s52, 0x{f2u(c2):08x}\ns_mov_b32 s53, 0x{f2u(c2):08x}")
    a("v_mov_b32 v210, s50\nv_mov_b32 v211, s51")
    a.nop(8)
    for t in range(7):
        d = ACC + 16*t
        T = 128
        for i in range(8):
            a(f"v_pk_mul_f32 v[{d+2*i}:{d+2*i+1}], v[{d+2*i}:{d+2*i+1}], v[208:209] op_sel_hi:[1,0]")
        for i in range(4):
            g = d + 2*i
            a(f"v_pk_mul_f32 v[{T+2*i}:{T+2*i+1}], v[{g}:{g+1}], v[{g}:{g+1}]")
            a(f"v_pk_fma_f32 v[{T+2*i}:{T+2*i+1}], v[{T+2*i}:{T+2*i+1}], s[52:53], v[210:211]")
            a(f"v_pk_mul_f32 v[{T+2*i}:{T+2*i+1}], v[{T+2*i}:{T+2*i+1}], v[{g}:{g+1}]")
        for i in range(8):
            a(f"v_exp_f32 v{T+i}, v{T+i}")
        a.nop(1)
        for i in range(4):
            a(f"v_pk_add_f32 v[{T+2*i}:{T+2*i+1}], v[{T+2*i}:{T+2*i+1}], 1.0 op_sel_hi:[1,0]")
        for i in range(8):
            a(f"v_rcp_f32 v{T+i}, v{T+i}")
        for i in range(4):
            g = d + 2*i
            a(f"v_pk_mul_f32 v[{g}:{g+1}], v[{g}:{g+1}], v[{g+8}:{g+9}]")
        for i in range(4):
            g = d + 2*i
            a(f"v_pk_mul_f32 v[{g}:{g+1}], v[{g}:{g+1}], v[{T+2*i}:{T+2*i+1}]")
        for i in range(4):
            a(f"v_cvt_pk_bf16_f32 v{T+8+i}, v{d+2*i}, v{d+2*i+1}")
        a(f"buffer_store_dwordx4 v[{T+8}:{T+11}], v6, s[{SRD_WS}:{SRD_WS+3}], s40 offen{ST3}")
        a("s_add_u32 s40, s40, 512")
        a.nop(2)
    stamp_store(a, 2)
    a("Lp3_exit:")
    a("s_endpgm")
```

```python
from common import *
ST4 = __import__('os').environ.get('ST4', '')
ST4 = (' ' + ST4) if ST4 else ''
import os
CP = 'nocp' not in os.environ.get('EXP', '')

S_WAVE, S_XCD, S_SLOT, S_RB, S_NB = 26, 27, 28, 29, 30
SRD_WS, SRD_OUT = 32, 36
NST = 8
STG = 18432
NSTAGE = 27
LDS_OT = NST*STG

def mf16(d, A, B):
    return f"v_mfma_f32_16x16x32_bf16 v[{d}:{d+3}], v[{A}:{A+3}], v[{B}:{B+3}], v[{d}:{d+3}]"

def emit_loader(a, part):
    n = 5 if part == 0 else 4
    a("v_and_b32 v1, 63, v0")
    a("v_lshlrev_b32 v2, 4, v1")
    a(f"s_and_b32 s40, s{S_WAVE}, 1")
    if part == 0:
        a(f"s_mul_i32 s41, s{S_NB}, {54*5*1024}")
        a(f"s_mul_i32 s42, s40, 5120")
        a("s_add_u32 s41, s41, s42")
        a(f"s_add_u32 s41, s41, {WS_WD}")
        a(f"s_mul_i32 s46, s40, 5120")
        step = 10240
    else:
        for i in range(4):
            a(f"v_add_u32 v{4+i}, {i*54*1024 - i*1024}, v2")
        a(f"s_mul_i32 s41, s{S_RB}, {4*54*1024}")
        a("s_lshl_b32 s42, s40, 10")
        a("s_add_u32 s41, s41, s42")
        a(f"s_add_u32 s41, s41, {WS_ACT}")
        a("s_lshl_b32 s46, s40, 12")
        a("s_add_u32 s46, s46, 10240")
        step = 2048
    a("s_mov_b32 s48, 0")
    def loads():
        a("s_add_u32 m0, s48, s46")
        a("s_nop 0")
        if part == 0:
            for j in range(4):
                a(f"buffer_load_dwordx4 v2, s[{SRD_WS}:{SRD_WS+3}], s41 offen offset:{j*1024} lds")
            a("s_add_u32 m0, m0, 4096")
            a("s_add_u32 s43, s41, 4096")
            a(f"buffer_load_dwordx4 v2, s[{SRD_WS}:{SRD_WS+3}], s43 offen lds")
        else:
            for j in range(4):
                a(f"buffer_load_dwordx4 v{4+j}, s[{SRD_WS}:{SRD_WS+3}], s41 offen offset:{j*1024} lds")
        a(f"s_add_u32 s41, s41, {step}")
        a(f"s_add_u32 s48, s48, {STG}")
        a(f"s_cmp_ge_u32 s48, {NST*STG}")
        a("s_cselect_b32 s48, 0, s48")
    for st in range(NST): loads()
    a(f"s_waitcnt vmcnt({(NST-1)*n})")
    a("s_barrier")
    lp = a.label("p4ld")
    a("s_mov_b32 s49, 0")
    a(f"{lp}:")
    a(f"s_waitcnt vmcnt({6*n})")
    a("s_barrier")
    loads()
    a("s_add_u32 s49, s49, 1")
    a(f"s_cmp_lt_u32 s49, {NSTAGE-NST}")
    a(f"s_cbranch_scc1 {lp}")
    for i in range(NSTAGE-NST, NSTAGE):
        rem = max(0, 26 - (i+1))
        a(f"s_waitcnt vmcnt({rem*n})")
        a("s_barrier")
    a("s_branch Lp4_exit")

def emit_p4(a):
    kernel_begin(a, "p4_kernel")
    a("s_cmp_ge_u32 s2, 256")
    a("s_cbranch_scc1 Lp4_exit")
    stamp_init(a)
    a("s_load_dwordx2 s[20:21], s[0:1], 64")
    a("s_load_dwordx2 s[24:25], s[0:1], 80")
    a("v_lshrrev_b32 v1, 6, v0")
    a(f"s_and_b32 s{S_XCD}, s2, 7")
    a(f"s_lshr_b32 s{S_SLOT}, s2, 3")
    a(f"v_readfirstlane_b32 s{S_WAVE}, v1")
    a(f"s_lshr_b32 s{S_RB}, s{S_XCD}, 1")
    a(f"s_lshl_b32 s{S_RB}, s{S_RB}, 3")
    a(f"s_lshr_b32 s31, s{S_SLOT}, 2")
    a(f"s_add_u32 s{S_RB}, s{S_RB}, s31")
    a(f"s_and_b32 s{S_NB}, s{S_XCD}, 1")
    a(f"s_lshl_b32 s{S_NB}, s{S_NB}, 2")
    a(f"s_and_b32 s31, s{S_SLOT}, 3")
    a(f"s_add_u32 s{S_NB}, s{S_NB}, s31")
    a("s_waitcnt lgkmcnt(0)")
    stamp(a, 1)
    srd(a, SRD_WS, 24, WS_END)
    srd(a, SRD_OUT, 20, S*D*2)
    a(f"s_cmp_lt_u32 s{S_WAVE}, 4")
    a("s_cbranch_scc1 Lp4_cons")
    a(f"s_sub_u32 s{S_WAVE}, s{S_WAVE}, 4")
    a(f"s_cmp_lt_u32 s{S_WAVE}, 2")
    a("s_cbranch_scc0 Lp4_ld1")
    emit_loader(a, 0)
    a("Lp4_ld1:")
    emit_loader(a, 1)
    a("Lp4_cons:")
    if os.environ.get("PRIO"): a("s_setprio " + os.environ["PRIO"])
    a("v_and_b32 v1, 63, v0")
    if CP: code_prefetch(a, "p4_kernel", "Lp4_exit", 1, 3, 255)
    ACC = 16
    A0, A1 = 40, 60
    B0, B1 = 80, 84
    HR = 88
    VW, VH = 4, 5
    a("v_and_b32 v1, 63, v0")
    a("v_lshlrev_b32 v2, 4, v1")
    a("v_and_b32 v3, 15, v1")
    a("v_lshrrev_b32 v7, 4, v1")
    a("v_lshrrev_b32 v8, 1, v7")
    a("v_lshlrev_b32 v8, 5, v8")
    a("v_add_u32 v8, v8, v3")
    a("v_lshlrev_b32 v8, 4, v8")
    a("v_and_b32 v9, 1, v7")
    a("v_lshlrev_b32 v9, 3, v9")
    a("v_add_u32 v8, v8, v9")
    a(f"s_lshl_b32 s40, s{S_RB}, 1")
    a(f"s_lshr_b32 s41, s{S_WAVE}, 1")
    a("s_add_u32 s40, s40, s41")
    a("s_mul_i32 s40, s40, 40")
    a(f"s_mul_i32 s41, s{S_NB}, 5")
    a("s_add_u32 s40, s40, s41")
    a("s_lshl_b32 s40, s40, 10")
    a(f"s_and_b32 s41, s{S_WAVE}, 1")
    a("s_lshl_b32 s41, s41, 8")
    a("s_add_u32 s40, s40, s41")
    a(f"s_add_u32 s40, s40, {WS_H}")
    for t in range(5):
        if t == 4: a("s_add_u32 s40, s40, 4096")
        a(f"buffer_load_dwordx2 v[{HR+2*t}:{HR+2*t+1}], v8, s[{SRD_WS}:{SRD_WS+3}], s40 offen offset:{(t%4)*1024}")
    a(f"v_mov_b32 v{VW}, v2")
    a(f"s_lshl_b32 s41, s{S_WAVE}, 10")
    a("s_add_u32 s41, s41, 10240")
    a(f"v_add_u32 v{VH}, s41, v2")
    for r in range(ACC, ACC+20): a(f"v_mov_b32 v{r}, 0")
    a("s_mov_b32 s42, 0")
    a(f"s_mov_b32 s44, {STG}")
    a(f"s_mov_b32 s45, {(-(NST-1)*STG) & 0xffffffff}")
    def reads(setA, setB, ks):
        R = [f"ds_read_b128 v[{setB}:{setB+3}], v{VH} offset:{ks*4096}"]
        for t in range(5):
            R.append(f"ds_read_b128 v[{setA+4*t}:{setA+4*t+3}], v{VW} offset:{(ks*5+t)*1024}")
        return R
    def half(curA, curB, R):
        ri = 0
        for t in range(5):
            a(mf16(ACC+4*t, curA+4*t, curB))
            for _ in range(2):
                if ri < len(R): a(R[ri]); ri += 1
    def adv():
        a(f"s_add_u32 s42, s42, {STG}")
        a(f"s_cmp_ge_u32 s42, {NST*STG}")
        a("s_cselect_b32 s43, s45, s44")
        a("s_cselect_b32 s42, 0, s42")
        a(f"v_add_u32 v{VW}, s43, v{VW}")
        a(f"v_add_u32 v{VH}, s43, v{VH}")
    stamp(a, 2)
    a("s_barrier")
    stamp(a, 3)
    for r in reads(A0, B0, 0): a(r)
    a("s_waitcnt lgkmcnt(0)")
    lp = a.label("p4main")
    a("s_mov_b32 s47, 0")
    a(f"{lp}:")
    half(A0, B0, reads(A1, B1, 1))
    adv()
    a("s_waitcnt lgkmcnt(0)")
    a("s_barrier")
    half(A1, B1, reads(A0, B0, 0))
    a("s_waitcnt lgkmcnt(0)")
    a("s_add_u32 s47, s47, 1")
    a(f"s_cmp_lt_u32 s47, {NSTAGE}")
    a(f"s_cbranch_scc1 {lp}")
    stamp(a, 4)
    a("s_waitcnt vmcnt(0)")
    a.nop(8)
    OB = 100
    for t in range(5):
        for p in range(2):
            x = HR + 2*t + p
            a(f"v_lshlrev_b32 v60, 16, v{x}")
            a(f"v_and_b32 v61, 0xffff0000, v{x}")
            a(f"v_pk_add_f32 v[60:61], v[60:61], v[{ACC+4*t+2*p}:{ACC+4*t+2*p+1}]")
            a(f"v_cvt_pk_bf16_f32 v{OB+2*t+p}, v60, v61")
    a("v_mul_u32_u24 v8, 176, v3")
    a("v_lshlrev_b32 v9, 3, v7")
    a("v_add_u32 v8, v8, v9")
    a(f"s_mul_i32 s40, s{S_WAVE}, 2816")
    a(f"s_add_u32 s40, s40, {LDS_OT}")
    a("v_add_u32 v8, s40, v8")
    for t in range(5):
        a(f"ds_write_b64 v8, v[{OB+2*t}:{OB+2*t+1}] offset:{32*t}")
    for j in range(3):
        a(f"v_add_u32 v10, {64*j}, v1")
        a("v_mul_u32_u24 v11, 205, v10")
        a("v_lshrrev_b32 v11, 11, v11")
        a("v_mul_u32_u24 v12, 10, v11")
        a("v_sub_u32 v12, v10, v12")
        a("v_lshlrev_b32 v12, 4, v12")
        a("v_mul_u32_u24 v13, 176, v11")
        a("v_add_u32 v13, v13, v12")
        a(f"v_add_u32 v{20+j}, s40, v13")
        a("v_mul_u32_u24 v13, 1280, v11")
        a(f"v_add_u32 v{24+j}, v13, v12")
    a("s_waitcnt lgkmcnt(0)")
    for j in range(3):
        a(f"ds_read_b128 v[{40+4*j}:{43+4*j}], v{20+j}")
    a(f"s_lshl_b32 s41, s{S_RB}, 6")
    a(f"s_lshl_b32 s42, s{S_WAVE}, 4")
    a("s_add_u32 s41, s41, s42")
    a("s_mul_i32 s41, s41, 1280")
    a(f"s_mul_i32 s42, s{S_NB}, 160")
    a("s_add_u32 s41, s41, s42")
    a("s_waitcnt lgkmcnt(0)")
    for j in range(3):
        if j == 2: a("s_mov_b32 exec_hi, 0")
        a(f"buffer_store_dwordx4 v[{40+4*j}:{43+4*j}], v{24+j}, s[{SRD_OUT}:{SRD_OUT+3}], s41 offen{ST4}")
    a("s_mov_b64 exec, -1")
    stamp_store(a, 3)
    a("Lp4_exit:")
    a("s_endpgm")
```

```python
import sys
from common import *
import p1

NAME = "sequential_preLN__linear_kernel_hedgehog__geglu_ffn__prompt"

def build(kernels):
    a = Asm()
    hdr = open("cdna_kernels/" + NAME + ".s.ref").read().split("\n")
    for line in hdr:
        if line.startswith("; Override launch") : break
        a(line)
    for (name, grid, block, lds, fn, vg, acc) in kernels:
        a(f"; @launch kernel={name} grid=({grid},1,1) block=({block},1,1) lds={lds}")
    a('.amdgcn_target "amdgcn-amd-amdhsa--gfx950"')
    a(".text")
    for (name, grid, block, lds, fn, vg, acc) in kernels:
        fn(a)
    a("Lcode_end:")
    a("s_endpgm")
    a('.section .rodata,"a"')
    a(".p2align 6")
    a("Lkd_start:")
    for (name, grid, block, lds, fn, vg, acc) in kernels:
        kernel_desc(a, name, vg, acc)
    return a.text()

KERNELS = [
    ("p1_kernel", 256, 512, 163840, p1.emit_p1, 256, 256),
]
try:
    import p2
    KERNELS.append(("p2_kernel", 256, 256, 163840, p2.emit_p2, 512, 256))
    import p3
    KERNELS.append(("p3_kernel", 256, 512, 163840, p3.emit_p3, 256, 256))
    import p4
    KERNELS.append(("p4_kernel", 256, 512, 163840, p4.emit_p4, 256, 256))
except ImportError:
    pass

import os
if os.environ.get("MERGE34", "0") == "1":
    def emit_p34(a):
        p3.emit_p3(a); p4.emit_p4(a)
    KERNELS = KERNELS[:2] + [("p34_kernel", 512, 512, 163840, emit_p34, 256, 256)]

if __name__ == "__main__":
    out = sys.argv[1] if len(sys.argv) > 1 else "cdna_kernels/" + NAME + ".s"
    open(out, "w").write(build(KERNELS))
    print("wrote", out)
```

```python
from common import *
import os
EXP = os.environ.get("EXP", "")
ST = os.environ.get("ST", "sc0 sc1")
ST = (" " + ST) if ST else ""
STP = os.environ.get("STP", "sc0 sc1")
STP = (" " + STP) if STP else ""

S_WAVE, S_XCD, S_SLOT = 26, 27, 28
SRD_WS, SRD_A, SRD_B, SRD_PHI, SRD_DBG = 32, 36, 40, 44, 48

def emit_pack_dma(a, srd_reg, nins_per_wave, pitch, s_off_reg, lds_base_expr_reg, v_off):
    lp = a.label("pdma")
    a(f"s_mov_b32 s60, {nins_per_wave}")
    a(f"{lp}:")
    a(f"s_mov_b32 m0, s{lds_base_expr_reg}")
    a(f"s_add_u32 s{lds_base_expr_reg}, s{lds_base_expr_reg}, 1024")
    a(f"buffer_load_dwordx4 v{v_off}, s[{srd_reg}:{srd_reg+3}], s{s_off_reg} offen lds")
    a(f"s_add_u32 s{s_off_reg}, s{s_off_reg}, {8*pitch}")
    a(f"s_sub_u32 s60, s60, 1")
    a(f"s_cmp_lg_u32 s60, 0")
    a(f"s_cbranch_scc1 {lp}")

def emit_prefetch(a):
    srd(a, SRD_A, 4, S*D*2)
    srd(a, SRD_B, 6, D*3*D*2)
    a(f"s_sub_u32 s52, s{S_SLOT}, 24")
    a(f"s_lshr_b32 s66, s{S_XCD}, 1")
    a(f"s_mul_i32 s66, s66, {512*1280}")
    for j in range(2):
        a("s_mul_i32 s60, s52, 640")
        a(f"s_add_u32 s60, s60, {512*j}")
        a("v_add_u32 v232, s60, v0")
        a("v_lshlrev_b32 v232, 7, v232")
        if j == 1:
            a("v_cmp_gt_u32 vcc, 128, v0")
            a("s_and_saveexec_b64 s[68:69], vcc")
        a(f"buffer_load_dword v{250+j}, v232, s[{SRD_A}:{SRD_A+3}], s66 offen")
        if j == 1: a("s_mov_b64 exec, s[68:69]")
    a(f"s_and_b32 s66, s{S_XCD}, 1")
    a("s_mul_i32 s66, s66, 640")
    for j in range(3):
        a("s_mul_i32 s60, s52, 1200")
        a(f"s_add_u32 s60, s60, {512*j}")
        a("v_add_u32 v232, s60, v0")
        a("v_mul_u32_u24 v233, 17477, v232")
        a("v_lshrrev_b32 v233, 18, v233")
        a("v_mul_u32_u24 v234, 15, v233")
        a("v_sub_u32 v234, v232, v234")
        a("v_mul_u32_u24 v235, 205, v234")
        a("v_lshrrev_b32 v235, 10, v235")
        a("v_mul_u32_u24 v236, 5, v235")
        a("v_sub_u32 v236, v234, v236")
        a("v_mul_u32_u24 v233, 3840, v233")
        a("v_mul_u32_u24 v235, 1280, v235")
        a("v_lshlrev_b32 v236, 7, v236")
        a("v_add3_u32 v233, v233, v235, v236")
        if j == 2:
            a("v_cmp_gt_u32 vcc, 176, v0")
            a("s_and_saveexec_b64 s[68:69], vcc")
        a(f"buffer_load_dword v{252+j}, v233, s[{SRD_B}:{SRD_B+3}], s66 offen")
        if j == 2: a("s_mov_b64 exec, s[68:69]")
    if "nocp" not in EXP and "cp0" not in EXP:
        code_prefetch(a, "p1_kernel", "Lcode_end", 0, 232, 255)
    if "tlb" in EXP:
        a("v_lshlrev_b32 v232, 16, v0")
        a(f"v_min_u32 v232, {WS_END-4}, v232")
        a(f"buffer_load_dword v249, v232, s[{SRD_WS}:{SRD_WS+3}], 0 offen")
    a("s_waitcnt vmcnt(0)")

def emit_pack(a):
    if "nopf" not in EXP: emit_prefetch(a)
    a(f"s_sub_u32 s52, s{S_SLOT}, 24")
    a(f"s_lshl_b32 s52, s52, 3")
    a(f"s_add_u32 s52, s52, s{S_XCD}")
    a("s_cmp_ge_u32 s52, %d" % (0 if "nopack" in EXP else 57))
    a("s_cbranch_scc1 Lp1_end")
    a(f"s_cmp_ge_u32 s{S_WAVE}, 4")
    a("s_cbranch_scc1 Lp1_exit")
    a("v_and_b32 v1, 63, v0")
    a("v_lshlrev_b32 v2, 4, v1")
    a("v_lshrrev_b32 v3, 3, v1")
    a("v_and_b32 v4, 7, v1")
    a("v_lshlrev_b32 v4, 4, v4")
    a("v_lshrrev_b32 v5, 4, v1")
    a("v_bfe_u32 v6, v1, 2, 2")
    a("v_and_b32 v7, 3, v1")
    a("s_cmp_lt_u32 s52, 27")
    a("s_cbranch_scc0 Lp1_pack_not_gu")
    srd(a, SRD_A, 14, D*F*2)
    srd(a, SRD_B, 16, D*F*2)
    a("v_mul_u32_u24 v8, 3456, v3")
    a("v_add_u32 v8, v8, v4")
    a(f"s_mul_i32 s53, s{S_WAVE}, {20*8*3456}")
    a("s_lshl_b32 s54, s52, 7")
    a("s_add_u32 s53, s53, s54")
    a("s_mov_b32 s55, s53")
    a(f"s_mul_i32 s56, s{S_WAVE}, {20*1024}")
    a(f"s_add_u32 s57, s56, 81920")
    emit_pack_dma(a, SRD_A, 20, 3456, 53, 56, 8)
    emit_pack_dma(a, SRD_B, 20, 3456, 55, 57, 8)
    a("v_and_b32 v9, 1, v5")
    a("v_mul_u32_u24 v9, 81920, v9")
    a("v_lshrrev_b32 v10, 1, v5")
    a("v_lshlrev_b32 v10, 3, v10")
    a("v_add_u32 v10, v10, v6")
    a("v_lshlrev_b32 v10, 7, v10")
    a("v_add_u32 v9, v9, v10")
    a("v_and_b32 v10, 1, v7")
    a("v_lshlrev_b32 v10, 4, v10")
    a("v_add_u32 v9, v9, v10")
    a("v_lshrrev_b32 v10, 1, v7")
    a("v_lshlrev_b32 v10, 3, v10")
    a("v_add_u32 v9, v9, v10")
    a(f"s_lshl_b32 s53, s{S_WAVE}, 5")
    a("v_add_u32 v9, s53, v9")
    for i in range(4): a(f"v_mov_b32 v{12+i}, 0x3f803f80")
    for i in range(16): a(f"v_mov_b32 v{16+i}, 0")
    a("s_lshl_b32 s53, s52, 2")
    a(f"s_add_u32 s53, s53, s{S_WAVE}")
    a(f"s_mul_i32 s53, s53, {41*1024}")
    a(f"s_add_u32 s53, s53, {WS_WGU}")
    a("s_waitcnt vmcnt(0)")
    a("s_barrier")
    lp = a.label("gu")
    a("s_mov_b32 s60, 10")
    a(f"{lp}:")
    for u in range(4):
        a(f"ds_read_b64_tr_b16 v[{32+4*u}:{33+4*u}], v9 offset:{u*2048}")
        a(f"ds_read_b64_tr_b16 v[{34+4*u}:{35+4*u}], v9 offset:{u*2048+512}")
    a("v_add_u32 v9, 8192, v9")
    for u in range(4):
        a(f"s_waitcnt lgkmcnt({6-2*u})")
        a(f"v_mfma_f32_32x32x16_bf16 v[16:31], v[12:15], v[{32+4*u}:{35+4*u}], v[16:31]")
        a(f"buffer_store_dwordx4 v[{32+4*u}:{35+4*u}], v2, s[{SRD_WS}:{SRD_WS+3}], s53 offen{STP}")
        a("s_add_u32 s53, s53, 1024")
    a("s_sub_u32 s60, s60, 1")
    a("s_cmp_lg_u32 s60, 0")
    a(f"s_cbranch_scc1 {lp}")
    a.nop(14)
    a("v_cvt_pk_bf16_f32 v32, v16, v16")
    a("v_lshlrev_b32 v33, 16, v32")
    a("v_sub_f32 v34, v16, v33")
    a("v_cvt_pk_bf16_f32 v36, v33, v34")
    a("v_cmp_gt_u32 vcc, 32, v1")
    a.nop(2)
    a("v_cndmask_b32 v36, 0, v36, vcc")
    a("v_mov_b32 v37, v36")
    a("v_mov_b32 v38, 0")
    a("v_mov_b32 v39, 0")
    a(f"buffer_store_dwordx4 v[36:39], v2, s[{SRD_WS}:{SRD_WS+3}], s53 offen{STP}")
    a("s_branch Lp1_end")
    a("Lp1_pack_not_gu:")
    a("s_cmp_lt_u32 s52, 47")
    a("s_cbranch_scc0 Lp1_pack_wo")
    srd(a, SRD_A, 18, F*D*2)
    a("s_sub_u32 s52, s52, 27")
    a("s_lshr_b32 s58, s52, 1")
    a("s_and_b32 s59, s52, 1")
    a("v_mul_u32_u24 v8, 1280, v3")
    a("v_add_u32 v8, v8, v4")
    a(f"s_mul_i32 s53, s59, {864*1280}")
    a(f"s_mul_i32 s54, s{S_WAVE}, {27*8*1280}")
    a("s_add_u32 s53, s53, s54")
    a("s_lshl_b32 s54, s58, 7")
    a("s_add_u32 s53, s53, s54")
    a(f"s_mul_i32 s56, s{S_WAVE}, {27*1024}")
    emit_pack_dma(a, SRD_A, 27, 1280, 53, 56, 8)
    a("v_lshlrev_b32 v9, 3, v5")
    a("v_add_u32 v9, v9, v6")
    a("v_lshlrev_b32 v9, 7, v9")
    a("v_lshlrev_b32 v10, 3, v7")
    a("v_add_u32 v9, v9, v10")
    a(f"s_lshl_b32 s53, s{S_WAVE}, 5")
    a("v_add_u32 v9, s53, v9")
    a("s_lshl_b32 s53, s58, 2")
    a(f"s_add_u32 s53, s53, s{S_WAVE}")
    a("s_mul_i32 s54, s53, 52429")
    a("s_lshr_b32 s54, s54, 18")
    a("s_mul_i32 s55, s54, 5")
    a("s_sub_u32 s55, s53, s55")
    a("s_mul_i32 s54, s54, 54")
    a("s_mul_i32 s56, s59, 27")
    a("s_add_u32 s54, s54, s56")
    a("s_mul_i32 s54, s54, 5")
    a("s_add_u32 s54, s54, s55")
    a("s_lshl_b32 s53, s54, 10")
    a(f"s_add_u32 s53, s53, {WS_WD}")
    a("s_waitcnt vmcnt(0)")
    a("s_barrier")
    lp = a.label("wd")
    a("s_mov_b32 s60, 9")
    a(f"{lp}:")
    for u in range(3):
        a(f"ds_read_b64_tr_b16 v[{32+4*u}:{33+4*u}], v9 offset:{u*4096}")
        a(f"ds_read_b64_tr_b16 v[{34+4*u}:{35+4*u}], v9 offset:{u*4096+512}")
    a("v_add_u32 v9, 12288, v9")
    for u in range(3):
        a(f"s_waitcnt lgkmcnt({4-2*u})")
        a(f"buffer_store_dwordx4 v[{32+4*u}:{35+4*u}], v2, s[{SRD_WS}:{SRD_WS+3}], s53 offen{STP}")
        a("s_add_u32 s53, s53, 5120")
    a("s_sub_u32 s60, s60, 1")
    a("s_cmp_lg_u32 s60, 0")
    a(f"s_cbranch_scc1 {lp}")
    a("s_branch Lp1_end")
    a("Lp1_pack_wo:")
    srd(a, SRD_A, 10, D*D*2)
    a("s_sub_u32 s58, s52, 47")
    a("v_mul_u32_u24 v8, 1280, v3")
    a("v_add_u32 v8, v8, v4")
    a(f"s_mul_i32 s53, s{S_WAVE}, {20*8*1280}")
    a("s_lshl_b32 s54, s58, 7")
    a("s_add_u32 s53, s53, s54")
    a(f"s_mul_i32 s56, s{S_WAVE}, {20*1024}")
    emit_pack_dma(a, SRD_A, 20, 1280, 53, 56, 8)
    a(f"s_and_b32 s53, s{S_WAVE}, 1")
    a("s_lshl_b32 s53, s53, 6")
    a(f"s_lshr_b32 s54, s{S_WAVE}, 1")
    a("s_mul_i32 s55, s54, 40960")
    a("s_add_u32 s53, s53, s55")
    a("s_lshl_b32 s54, s54, 4")
    a("v_and_b32 v10, 1, v5")
    a("v_lshlrev_b32 v10, 4, v10")
    a("v_lshlrev_b32 v11, 2, v7")
    a("v_add_u32 v10, v10, v11")
    a("v_add_u32 v10, s54, v10")
    a("v_lshrrev_b32 v11, 1, v5")
    a("v_lshlrev_b32 v12, 2, v11")
    a("v_add_u32 v12, v12, v6")
    a("v_lshlrev_b32 v12, 7, v12")
    a("v_mul_u32_u24 v13, 20, v11")
    a("v_add_u32 v13, v13, v6")
    a("v_add_u32 v13, 16, v13")
    a("v_lshlrev_b32 v13, 7, v13")
    for rr in range(2):
        a(f"v_add_u32 v14, {8*rr}, v10")
        a("v_and_b32 v14, 31, v14")
        a("v_lshlrev_b32 v14, 1, v14")
        a("v_add_u32 v14, s53, v14")
        a(f"v_add_u32 v{16+rr}, v12, v14")
        a(f"v_add_u32 v{18+rr}, v13, v14")
    a("s_lshl_b32 s53, s58, 1")
    a(f"s_and_b32 s54, s{S_WAVE}, 1")
    a("s_add_u32 s53, s53, s54")
    a("s_mul_i32 s54, s53, 52429")
    a("s_lshr_b32 s54, s54, 18")
    a("s_mul_i32 s55, s54, 5")
    a("s_sub_u32 s55, s53, s55")
    a("s_lshl_b32 s54, s54, 3")
    a(f"s_lshr_b32 s56, s{S_WAVE}, 1")
    a("s_lshl_b32 s56, s56, 2")
    a("s_add_u32 s54, s54, s56")
    a("s_mul_i32 s54, s54, 25")
    a("s_add_u32 s54, s54, s55")
    a("s_lshl_b32 s53, s54, 10")
    a(f"s_add_u32 s53, s53, {WS_WOP}")
    a("s_waitcnt vmcnt(0)")
    a("s_barrier")
    for Qi in range(4):
        for m in range(5):
            b = 32 + 4*m
            if m < 4:
                o = (4*Qi+m)*2560
                a(f"ds_read_b64_tr_b16 v[{b}:{b+1}], v{16+(Qi>>1)} offset:{o}")
                a(f"ds_read_b64_tr_b16 v[{b+2}:{b+3}], v{16+(Qi>>1)} offset:{o+1024}")
            else:
                o = Qi*10240
                a(f"ds_read_b64_tr_b16 v[{b}:{b+1}], v{18+(Qi>>1)} offset:{o}")
                a(f"ds_read_b64_tr_b16 v[{b+2}:{b+3}], v{18+(Qi>>1)} offset:{o+5120}")
        for m in range(5):
            b = 32 + 4*m
            a(f"s_waitcnt lgkmcnt({8-2*m})")
            a(f"buffer_store_dwordx4 v[{b}:{b+3}], v2, s[{SRD_WS}:{SRD_WS+3}], s53 offen{STP}")
            a("s_add_u32 s53, s53, 5120")
        a.nop(2)
    a("s_branch Lp1_end")

LDS_WPHI = 0
LDS_ZERO = 8192
LDS_CS   = 9216
LDS_STAT = 10496
XR_BASE, XR_STG, XR_N = 12288, 16384, 4
WR_BASE, WR_STG, WR_N = 77824, 12288, 7
LDS_PHI = 12288
PHI_P = 352
LDS_V = 57344
V_P = 224
LDS_KVO = 86016
LDS_ACCX = 100352

V_WR = 2
V_XR0, V_XR1 = 12, 13
V_ONES = 16
V_ACC = 20
V_CS = 100
V_A0, V_A1 = 120, 160
V_B0, V_B1 = 200, 208
V_SX, V_SQ = 216, 224

S_ROLE, S_RB, S_HG, S_ZERO = 59, 61, 62, 63
S_L2E = 64

def acc(mt, T): return V_ACC + (mt*10 + T)*4

def mf16(d, A, B, c=None):
    c = d if c is None else c
    return f"v_mfma_f32_16x16x32_bf16 v[{d}:{d+3}], v[{A}:{A+3}], v[{B}:{B+3}], v[{c}:{c+3}]"

def frag_reads(setA, setB, vx):
    R = []
    for mt in range(2):
        R.append(f"ds_read_b128 v[{setB+4*mt}:{setB+4*mt+3}], v{vx} offset:{mt*2048}")
    for T in range(10):
        arr, t = divmod(T, 5)
        off = arr*6144
        R.append(f"ds_read_b64_tr_b16 v[{setA+4*T}:{setA+4*T+1}], v{V_WR+5*arr+t} offset:{off}")
        R.append(f"ds_read_b64_tr_b16 v[{setA+4*T+2}:{setA+4*T+3}], v{V_WR+5*arr+t} offset:{off+8*192}")
    return R

def emit_step(a, curA, curB, reads, cs_waves, fill=()):
    fill = list(fill)
    M = []
    for T in range(10):
        for mt in range(2):
            M.append(mf16(acc(mt, T), curA+4*T, curB+4*mt))
    ri = 0
    for k, m in enumerate(M):
        if "nomfma" not in EXP: a(m)
        for _ in range(2):
            if ri < len(reads):
                a(reads[ri]); ri += 1
            elif fill:
                a(fill.pop(0))
    assert ri == len(reads)
    for f in fill: a(f)

def adv_w():
    L = [f"s_add_u32 s54, s54, {WR_STG}\ns_cmp_ge_u32 s54, {WR_N*WR_STG}\ns_cselect_b32 s58, s77, s76\ns_cselect_b32 s54, 0, s54"]
    for i in range(10): L.append(f"v_add_u32 v{V_WR+i}, s58, v{V_WR+i}")
    return L
def adv_x():
    return [f"s_add_u32 s55, s55, {XR_STG}\ns_cmp_ge_u32 s55, {XR_N*XR_STG}\ns_cselect_b32 s56, s79, s78\ns_cselect_b32 s55, 0, s55",
            f"v_add_u32 v{V_XR0}, s56, v{V_XR0}", f"v_add_u32 v{V_XR1}, s56, v{V_XR1}"]

def emit_delta(a):
    a(f"s_mul_i32 s68, s{S_HG}, 160")
    a("s_add_u32 s69, s68, 2560")
    a("s_add_u32 s68, s68, 1280")
    a(f"s_mul_i32 s70, s{S_HG}, 320")
    a("s_add_u32 s71, s70, 160")
    a(f"s_cmp_eq_u32 s{S_ROLE}, 0")
    a("s_cselect_b32 s68, s68, s70")
    a("s_cselect_b32 s69, s69, s71")
    a("s_and_b32 s66, s68, 63")
    a("s_and_b32 s67, s69, 63")
    a("s_sub_u32 s68, s68, s66")
    a("s_sub_u32 s69, s69, s67")

def emit_loader(a):
    srd(a, SRD_A, 4, S*D*2)
    srd(a, SRD_B, 6, D*3*D*2)
    a("v_and_b32 v1, 63, v0")
    a("v_lshrrev_b32 v14, 3, v1")
    a("v_and_b32 v32, 7, v1")
    a("v_xor_b32 v32, v32, v14")
    a("v_lshlrev_b32 v32, 4, v32")
    a("v_mul_u32_u24 v14, 1280, v14")
    a("v_add_u32 v2, v14, v32")
    a(f"s_lshl_b32 s60, s{S_RB}, 7")
    a(f"s_lshl_b32 s52, s{S_WAVE}, 5")
    a("s_add_u32 s60, s60, s52")
    a("s_mul_i32 s52, s60, 1280")
    a(f"s_lshl_b32 s55, s{S_WAVE}, 12")
    a(f"s_add_u32 s55, s55, {XR_BASE}")
    for i in range(1, 4):
        a(f"v_add_u32 v{2+i}, {i*(10240-1024)}, v2")
    q = []
    xs = [0]; ws = [0]
    def issue_x():
        s = xs[0]
        a(f"s_add_u32 m0, s55, {(s % XR_N)*XR_STG}")
        a("s_nop 0")
        for i in range(4):
            a(f"buffer_load_dwordx4 v{2+i}, s[{SRD_A}:{SRD_A+3}], s52 offen offset:{i*1024} lds")
        a("s_add_u32 s52, s52, 128")
        q.append((f"X{s}", 4)); xs[0] += 1
    def issue_w():
        s = ws[0]
        a(f"s_add_u32 m0, s56, {(s % WR_N)*WR_STG}")
        a("s_nop 0")
        for j in range(3):
            a(f"buffer_load_dwordx4 v{6+j}, s[{SRD_B}:{SRD_B+3}], s53 offen offset:{j*1024} lds")
        a(f"s_add_u32 s53, s53, {32*3840}")
        q.append((f"W{s}", 3)); ws[0] += 1
    done = [-1]
    def need(names):
        last = max(i for i, (n, c) in enumerate(q) if n in names)
        if last <= done[0]: return
        done[0] = last
        a(f"s_waitcnt vmcnt({sum(c for n, c in q[last+1:])})")
    issue_x()
    emit_delta(a)
    a(f"s_and_b32 s70, s{S_WAVE}, 1")
    a("s_mul_i32 s71, s70, 192")
    for j in range(3):
        a(f"s_add_u32 s72, s71, {64*j}")
        a("v_add_u32 v32, s72, v1")
        a("v_mul_u32_u24 v33, 5462, v32")
        a("v_lshrrev_b32 v33, 16, v33")
        a("v_mul_u32_u24 v34, 12, v33")
        a("v_sub_u32 v34, v32, v34")
        a("v_bfe_u32 v36, v33, 2, 1")
        a("v_lshlrev_b32 v36, 1, v36")
        a("v_xor_b32 v34, v34, v36")
        a("v_and_b32 v35, 0x13, v33")
        a("v_and_b32 v36, 4, v33")
        a("v_lshlrev_b32 v36, 1, v36")
        a("v_or_b32 v35, v35, v36")
        a("v_and_b32 v36, 8, v33")
        a("v_lshrrev_b32 v36, 1, v36")
        a("v_or_b32 v35, v35, v36")
        a("v_mul_u32_u24 v35, 3840, v35")
        a("v_lshlrev_b32 v34, 4, v34")
        a(f"v_add_u32 v{6+j}, v35, v34")
        if j: a(f"v_subrev_u32 v{6+j}, {1024*j}, v{6+j}")
    a(f"s_lshr_b32 s71, s{S_WAVE}, 1")
    a("s_cmp_eq_u32 s71, 0")
    a("s_cselect_b32 s53, s68, s69")
    a("s_mul_i32 s56, s71, 6144")
    a("s_mul_i32 s72, s70, 3072")
    a("s_add_u32 s56, s56, s72")
    a(f"s_add_u32 s56, s56, {WR_BASE}")
    issue_w(); issue_w()
    srd(a, SRD_PHI, 8, H*DH*DH*2)
    a(f"s_mul_i32 s68, s{S_HG}, 3200")
    a(f"s_mul_i32 s69, s{S_HG}, 6400")
    a(f"s_cmp_eq_u32 s{S_ROLE}, 0")
    a("s_cselect_b32 s68, s68, s69")
    a(f"s_lshl_b32 s69, s{S_WAVE}, 11")
    a("s_add_u32 s68, s68, s69")
    a(f"s_add_u32 m0, s69, {LDS_WPHI}")
    a("v_lshlrev_b32 v14, 4, v1")
    a(f"buffer_load_dwordx4 v14, s[{SRD_PHI}:{SRD_PHI+3}], s68 offen lds")
    a(f"buffer_load_dwordx4 v14, s[{SRD_PHI}:{SRD_PHI+3}], s68 offen offset:1024 lds")
    q.append(("PHI", 2))
    RAMP = os.environ.get("RAMP", "1") == "1"
    R1 = int(os.environ.get("R1", "2"))
    if RAMP:
        if R1 >= 1: issue_x(); issue_w(); issue_w()
        if R1 >= 2: issue_x(); issue_w(); issue_w()
    else:
        issue_x(); issue_w(); issue_w(); issue_x(); issue_w(); issue_w(); issue_x(); issue_w()
    a("v_and_b32 v232, 15, v1")
    a("v_lshrrev_b32 v233, 4, v1")
    a("v_and_b32 v234, 7, v232")
    a("v_xor_b32 v234, v234, v233")
    a("v_lshlrev_b32 v234, 4, v234")
    a("v_lshlrev_b32 v235, 7, v232")
    a("v_add_u32 v234, v234, v235")
    a("v_add_u32 v26, s55, v234")
    a("v_xor_b32 v27, 64, v26")
    emit_delta(a)
    a("s_cmp_eq_u32 s71, 0")
    a(f"s_lshr_b32 s72, s{S_WAVE}, 1")
    a("s_cmp_eq_u32 s72, 0")
    a("s_cselect_b32 s73, s66, s67")
    a("s_mul_i32 s72, s72, 6144")
    a(f"s_add_u32 s72, s72, {WR_BASE}")
    a("v_bfe_u32 v234, v1, 2, 2")
    a("v_and_b32 v235, 1, v233")
    a("v_lshlrev_b32 v236, 2, v235")
    a("v_add_u32 v234, v234, v236")
    a("v_lshrrev_b32 v236, 1, v233")
    a("v_lshlrev_b32 v236, 4, v236")
    a("v_add_u32 v234, v234, v236")
    a("v_mul_u32_u24 v234, 192, v234")
    a("v_add_u32 v234, s72, v234")
    a("v_lshlrev_b32 v235, 5, v235")
    a("v_and_b32 v236, 3, v1")
    a("v_mul_u32_u24 v236, 40, v236")
    a("v_add_u32 v237, s73, v236")
    for t in range(5):
        a(f"v_add_u32 v238, {8*t}, v237")
        a("v_xor_b32 v238, v238, v235")
        a(f"v_add_u32 v{16+t}, v238, v234")
    for i in range(4): a(f"v_mov_b32 v{28+i}, 0x3f803f80")
    for r in range(32, 68): a(f"v_mov_b32 v{r}, 0")
    a(f"s_and_b32 s74, s{S_WAVE}, 1")
    def side(st):
        c0, c1 = ((2*st) % WR_N)*WR_STG, ((2*st+1) % WR_N)*WR_STG
        a(f"s_mov_b32 s75, {c0}")
        a("s_cmp_eq_u32 s74, 0")
        a(f"s_cselect_b32 s75, s75, {c1}")
        xo = (st % XR_N)*XR_STG
        for ks in range(2):
            for mt in range(2):
                r = 88 + 8*ks + 4*mt
                a(f"ds_read_b128 v[{r}:{r+3}], v{26+ks} offset:{xo + mt*2048}")
        for t in range(5): a(f"v_add_u32 v{21+t}, s75, v{16+t}")
        for t in range(5):
            a(f"ds_read_b64_tr_b16 v[{68+4*t}:{69+4*t}], v{21+t}")
            a(f"ds_read_b64_tr_b16 v[{70+4*t}:{71+4*t}], v{21+t} offset:{8*192}")
        a("s_waitcnt lgkmcnt(10)")
        for ks in range(2):
            for mt in range(2):
                r = 88 + 8*ks + 4*mt
                a(mf16(52+4*mt, 28, r))
                a(mf16(60+4*mt, r, r))
        a("s_waitcnt lgkmcnt(0)")
        for t in range(5):
            a(mf16(32+4*t, 68+4*t, 28))
    need(["X0", "W0", "W1"])
    stamp(a, 2)
    a("s_barrier")
    if RAMP:
        while xs[0] < 4 or ws[0] < 7:
            if xs[0] < 4 and 2*xs[0] <= ws[0]: issue_x()
            elif ws[0] < 7: issue_w()
            else: issue_x()
    side(0)
    for i in range(10):
        names = []
        if i + 1 < 10: names = [f"W{2*i+2}", f"W{2*i+3}", f"X{i+1}"]
        if names: need(names)
        a("s_barrier")
        if 2*i + 7 < 20: issue_w()
        if i + 4 < 10: issue_x()
        if 2*i + 8 < 20: issue_w()
        if i + 1 < 10: side(i+1)
        if i == 5:
            need(["PHI"])
            lbk = a.label("pk"); lbq = a.label("pq")
            a(f"s_cmp_eq_u32 s{S_ROLE}, 0")
            a(f"s_cbranch_scc0 {lbk}")
            emit_phi_addr(a, 14, 0)
            a(f"s_branch {lbq}")
            a(f"{lbk}:")
            emit_phi_addr(a, 14, 1)
            a(f"{lbq}:")
            emit_phi_frags(a, PF, 14)
        if i == 8:
            a.nop(8)
            a("v_and_b32 v232, 15, v1")
            a("v_lshrrev_b32 v233, 4, v1")
            a("v_lshlrev_b32 v234, 4, v233")
            a(f"s_mul_i32 s60, s{S_WAVE}, 320")
            a(f"v_add_u32 v234, s60, v234")
            a("v_cmp_eq_u32 vcc, 0, v232")
            a("s_and_saveexec_b64 s[68:69], vcc")
            for t in range(5):
                a(f"ds_write_b128 v234, v[{32+4*t}:{32+4*t+3}] offset:{LDS_CS+64*t}")
            a("s_mov_b64 exec, s[68:69]")
            a("v_and_b32 v234, 3, v1")
            a("v_cmp_eq_u32 s[68:69], 1, v234")
            a("v_cmp_eq_u32 s[70:71], 2, v234")
            a("v_cmp_eq_u32 s[72:73], 3, v234")
            a("v_lshrrev_b32 v235, 2, v232")
            a("v_lshlrev_b32 v235, 4, v235")
            a("v_add_u32 v235, v235, v232")
            a("v_lshlrev_b32 v235, 2, v235")
            for mt in range(2):
                qq = 60+4*mt
                a(f"v_cndmask_b32 v{236+mt}, v{qq}, v{qq+1}, s[68:69]")
                a(f"v_cndmask_b32 v{236+mt}, v{236+mt}, v{qq+2}, s[70:71]")
                a(f"v_cndmask_b32 v{236+mt}, v{236+mt}, v{qq+3}, s[72:73]")
            for mt in range(2):
                a(f"ds_bpermute_b32 v{238+mt}, v235, v{236+mt}")
            a("s_mov_b32 s60, 0x3acccccd")
            a("s_waitcnt lgkmcnt(0)")
            for mt in range(2):
                st = 240 + 2*mt
                a(f"v_mul_f32 v{236+mt}, s60, v{52+4*mt}")
                a(f"v_mul_f32 v{238+mt}, s60, v{238+mt}")
                a(f"v_fma_f32 v{238+mt}, -v{236+mt}, v{236+mt}, v{238+mt}")
                a(f"v_max_f32 v{238+mt}, 0, v{238+mt}")
                a(f"v_add_f32 v{238+mt}, 0x3727c5ac, v{238+mt}")
                a(f"v_rsq_f32 v{st}, v{238+mt}")
                a.nop(1)
                a(f"v_mul_f32 v{st+1}, v{236+mt}, v{st}")
                a(f"v_sub_f32 v{st+1}, 0, v{st+1}")
            a("v_lshlrev_b32 v232, 3, v232")
            a(f"s_lshl_b32 s60, s{S_WAVE}, 8")
            a("v_add_u32 v232, s60, v232")
            a("s_mov_b64 exec, 0xffff")
            for mt in range(2):
                a(f"ds_write_b64 v232, v[{240+2*mt}:{241+2*mt}] offset:{LDS_STAT+128*mt}")
            a("s_mov_b64 exec, -1")
            a("s_waitcnt lgkmcnt(0)")
    a("s_barrier")
    emit_epi_loader(a)

def emit_main(a):
    srd(a, SRD_DBG, 22, 256)
    a("v_and_b32 v1, 63, v0")
    a(f"s_mov_b32 s{S_ZERO}, 0")
    lb_not = a.label("noticket")
    a(f"s_cmp_lg_u32 s{S_ROLE}, 0")
    a(f"s_cbranch_scc1 {lb_not}")
    a(f"s_cmp_lg_u32 s{S_WAVE}, 0")
    a(f"s_cbranch_scc1 {lb_not}")
    a(f"s_lshl_b32 s60, s{S_HG}, 2")
    a("v_mov_b32 v14, s60")
    a("v_mov_b32 v15, 1")
    a("s_mov_b64 exec, 1")
    a(f"buffer_atomic_add v15, v14, s[{SRD_DBG}:{SRD_DBG+3}], 0 offen sc0")
    a("s_mov_b64 exec, -1")
    a(f"{lb_not}:")
    a("v_and_b32 v232, 15, v1")
    a("v_lshrrev_b32 v233, 4, v1")
    a("v_and_b32 v234, 7, v232")
    a("v_xor_b32 v234, v234, v233")
    a("v_lshlrev_b32 v234, 4, v234")
    a("v_lshlrev_b32 v235, 7, v232")
    a("v_add_u32 v234, v234, v235")
    a(f"s_lshl_b32 s60, s{S_WAVE}, 12")
    a(f"s_add_u32 s60, s60, {XR_BASE}")
    a(f"v_add_u32 v{V_XR0}, s60, v234")
    a(f"v_xor_b32 v{V_XR1}, 64, v{V_XR0}")
    emit_delta(a)
    a("v_bfe_u32 v234, v1, 2, 2")
    a("v_and_b32 v235, 1, v233")
    a("v_lshlrev_b32 v236, 2, v235")
    a("v_add_u32 v234, v234, v236")
    a("v_lshrrev_b32 v236, 1, v233")
    a("v_lshlrev_b32 v236, 4, v236")
    a("v_add_u32 v234, v234, v236")
    a("v_mul_u32_u24 v234, 192, v234")
    a(f"v_add_u32 v234, {WR_BASE}, v234")
    a("v_lshlrev_b32 v235, 5, v235")
    a("v_and_b32 v236, 3, v1")
    a("v_mul_u32_u24 v236, 40, v236")
    for arr in range(2):
        a(f"v_add_u32 v237, s{66+arr}, v236")
        for t in range(5):
            a(f"v_add_u32 v238, {8*t}, v237")
            a("v_xor_b32 v238, v238, v235")
            a(f"v_add_u32 v{V_WR+5*arr+t}, v238, v234")
    for r in range(V_ACC, V_ACC+80): a(f"v_mov_b32 v{r}, 0")
    a("v_lshlrev_b32 v232, 2, v0")
    a("v_mov_b32 v233, 0")
    a(f"ds_write_b32 v232, v233 offset:{LDS_ZERO}")
    a("s_mov_b32 s57, 0")
    a("s_mov_b32 s54, 0")
    a("s_mov_b32 s55, 0")
    a(f"s_mov_b32 s76, {WR_STG}")
    a(f"s_mov_b32 s77, {(-(WR_N-1)*WR_STG) & 0xffffffff}")
    a(f"s_mov_b32 s78, {XR_STG}")
    a(f"s_mov_b32 s79, {(-(XR_N-1)*XR_STG) & 0xffffffff}")
    a("s_waitcnt lgkmcnt(0)")
    stamp(a, 2)
    a("s_barrier")
    stamp(a, 3)
    for r in frag_reads(V_A0, V_B0, V_XR0): a(r)
    for f in adv_w(): a(f)
    a("s_waitcnt lgkmcnt(0)")
    lp = a.label("main")
    a(f"{lp}:")
    emit_step(a, V_A0, V_B0, frag_reads(V_A1, V_B1, V_XR1), [0, 2], adv_w() + adv_x())
    if "bw" in EXP: a("s_memtime s[64:65]")
    a("s_waitcnt lgkmcnt(0)")
    if "bw" in EXP: a("s_memtime s[66:67]")
    a("s_barrier")
    if "bw" in EXP:
        a("s_memtime s[68:69]")
        a("s_waitcnt lgkmcnt(0)")
        a("s_sub_u32 s70, s66, s64\ns_add_u32 s92, s92, s70")
        a("s_sub_u32 s70, s68, s66\ns_add_u32 s94, s94, s70")
    emit_step(a, V_A1, V_B1, frag_reads(V_A0, V_B0, V_XR0), [1, 3], adv_w())
    lb_nz = a.label("nozero")
    a("s_cmp_lg_u32 s57, 0")
    a(f"s_cbranch_scc1 {lb_nz}")
    a(f"s_cmp_lg_u32 s{S_ROLE}, 0")
    a(f"s_cbranch_scc1 {lb_nz}")
    a(f"s_cmp_lg_u32 s{S_WAVE}, 0")
    a(f"s_cbranch_scc1 {lb_nz}")
    a("s_waitcnt vmcnt(0)")
    a("v_readfirstlane_b32 s60, v15")
    a("s_nop 3")
    a("s_cmp_lg_u32 s60, 0")
    a(f"s_cbranch_scc1 {lb_nz}")
    a(f"s_mov_b32 s{S_ZERO}, 1")
    a("s_mov_b32 s72, s24\ns_mov_b32 s73, s25")
    a(f"s_add_u32 s74, s{S_HG}, 1")
    a(f"s_mul_i32 s74, s74, 13440")
    a("s_mov_b32 s75, 0x00020000")
    a(f"s_mul_i32 s60, s{S_HG}, 13440")
    a("v_lshlrev_b32 v232, 4, v1")
    for i in range(4): a(f"v_mov_b32 v{236+i}, 0")
    for i in range(14):
        a(f"buffer_store_dwordx4 v[236:239], v232, s[72:75], s60 offen sc1")
        a("s_add_u32 s60, s60, 1024")
    a(f"{lb_nz}:")
    lb_f = a.label("noflag")
    a(f"s_cmp_lg_u32 s{S_ZERO}, 1")
    a(f"s_cbranch_scc1 {lb_f}")
    a(f"s_cmp_lg_u32 s57, 2")
    a(f"s_cbranch_scc1 {lb_f}")
    a("s_waitcnt vmcnt(0)")
    a(f"s_lshl_b32 s60, s{S_HG}, 2")
    a("s_add_u32 s60, s60, 32")
    a("v_mov_b32 v14, s60")
    a("v_mov_b32 v15, 1")
    a("s_mov_b64 exec, 1")
    a(f"buffer_store_dword v15, v14, s[{SRD_DBG}:{SRD_DBG+3}], 0 offen sc1")
    a("s_mov_b64 exec, -1")
    a(f"{lb_f}:")
    a("s_waitcnt lgkmcnt(0)")
    a("s_add_u32 s57, s57, 1")
    a("s_cmp_lt_u32 s57, 10")
    a(f"s_cbranch_scc1 {lp}")

def emit_softmax(a, P, E, OUT, T0):
    mx, mn = T0, T0+2
    a(f"v_max3_f32 v{mx}, v{P}, v{P+1}, v{P+2}")
    a(f"v_min3_f32 v{mn}, v{P}, v{P+1}, v{P+2}")
    for i in range(3, 19, 2):
        a(f"v_max3_f32 v{mx}, v{mx}, v{P+i}, v{P+i+1}")
        a(f"v_min3_f32 v{mn}, v{mn}, v{P+i}, v{P+i+1}")
    a(f"v_max_f32 v{mx}, v{mx}, v{P+19}")
    a(f"v_min_f32 v{mn}, v{mn}, v{P+19}")
    a(f"v_mul_f32 v{mx}, s{S_L2E+1}, v{mx}")
    a(f"v_mul_f32 v{mn}, s{S_L2E}, v{mn}")
    for i in range(10):
        a(f"v_pk_fma_f32 v[{E+2*i}:{E+2*i+1}], v[{P+2*i}:{P+2*i+1}], s[70:71], v[{mx}:{mx+1}] op_sel_hi:[1,1,0]")
        a(f"v_pk_fma_f32 v[{P+2*i}:{P+2*i+1}], v[{P+2*i}:{P+2*i+1}], s[70:71], v[{mn}:{mn+1}] op_sel_hi:[1,1,0] neg_lo:[1,0,0] neg_hi:[1,0,0]")
    for i in range(20):
        a(f"v_exp_f32 v{E+i}, v{E+i}")
        a(f"v_exp_f32 v{P+i}, v{P+i}")
    a.nop(1)
    sp, sm = T0, T0+2
    a(f"v_pk_add_f32 v[{sp}:{sp+1}], v[{E}:{E+1}], v[{E+2}:{E+3}]")
    a(f"v_pk_add_f32 v[{sm}:{sm+1}], v[{P}:{P+1}], v[{P+2}:{P+3}]")
    for i in range(2, 10):
        a(f"v_pk_add_f32 v[{sp}:{sp+1}], v[{sp}:{sp+1}], v[{E+2*i}:{E+2*i+1}]")
        a(f"v_pk_add_f32 v[{sm}:{sm+1}], v[{sm}:{sm+1}], v[{P+2*i}:{P+2*i+1}]")
    a(f"v_add_f32 v{sp}, v{sp}, v{sp+1}")
    a(f"v_add_f32 v{sm}, v{sm}, v{sm+1}")
    a(f"v_rcp_f32 v{sp}, v{sp}")
    a(f"v_rcp_f32 v{sm}, v{sm}")
    a.nop(1)
    for i in range(10):
        a(f"v_pk_mul_f32 v[{E+2*i}:{E+2*i+1}], v[{E+2*i}:{E+2*i+1}], v[{sp}:{sp+1}] op_sel_hi:[1,0]")
        a(f"v_pk_mul_f32 v[{P+2*i}:{P+2*i+1}], v[{P+2*i}:{P+2*i+1}], v[{sm}:{sm+1}] op_sel_hi:[1,0]")
    for i in range(10):
        a(f"v_cvt_pk_bf16_f32 v{OUT+i}, v{E+2*i}, v{E+2*i+1}")
        a(f"v_cvt_pk_bf16_f32 v{OUT+10+i}, v{P+2*i}, v{P+2*i+1}")

def mf16k16(d, A, B):
    return f"v_mfma_f32_16x16x16_bf16 v[{d}:{d+3}], v[{A}:{A+1}], v[{B}:{B+1}], v[{d}:{d+3}]"

def emit_phi_frags(a, dst, vaddr):
    for t in range(5):
        b = dst + 10*t
        for kk in range(2):
            for q in range(2):
                a(f"ds_read_b64_tr_b16 v[{b+4*kk+2*q}:{b+4*kk+2*q+1}], v{vaddr} offset:{(8*kk+4*q)*40+8*t}")
        a(f"ds_read_b64_tr_b16 v[{b+8}:{b+9}], v{vaddr} offset:{16*40+8*t}")

def emit_phi_mfma(a, PF, KB, P):
    for t in range(5):
        b = PF + 10*t
        d = P + 4*t
        a(f"v_mfma_f32_16x16x32_bf16 v[{d}:{d+3}], v[{b}:{b+3}], v[{KB}:{KB+3}], 0")
    for t in range(5):
        b = PF + 10*t
        d = P + 4*t
        a(f"v_mfma_f32_16x16x32_bf16 v[{d}:{d+3}], v[{b+4}:{b+7}], v[{KB+4}:{KB+7}], v[{d}:{d+3}]")
    for t in range(5):
        b = PF + 10*t
        d = P + 4*t
        a(mf16k16(d, b+8, KB+8))

def emit_phi_addr(a, dst, hh):
    a("v_lshrrev_b32 v232, 4, v1")
    a("v_and_b32 v233, 3, v1")
    a("v_bfe_u32 v234, v1, 2, 2")
    a("v_mul_u32_u24 v234, 40, v234")
    a("v_mul_u32_u24 v235, 800, v232")
    a(f"v_add_u32 v235, {LDS_WPHI+hh*3200}, v235")
    a("v_cmp_eq_u32 vcc, v232, v233")
    a(f"v_mov_b32 v236, {LDS_ZERO}")
    a.nop(1)
    a("v_cndmask_b32 v235, v236, v235, vcc")
    a(f"v_add_u32 v{dst}, v235, v234")

def emit_consts(a):
    a(f"s_mov_b32 s{S_L2E}, 0x3fb8aa3b")
    a(f"s_mov_b32 s{S_L2E+1}, 0xbfb8aa3b")
    a("s_mov_b32 s70, 0x3fb8aa3b")
    a("s_mov_b32 s71, 0x3fb8aa3b")

PF = 120
CSR = 170
KB = 190
PP = 100
EE = 210

def emit_cs_read(a, arr):
    a("v_lshrrev_b32 v233, 4, v1")
    a("v_lshlrev_b32 v234, 4, v233")
    for t in range(5):
        a(f"ds_read_b128 v[{CSR+4*t}:{CSR+4*t+3}], v234 offset:{LDS_CS+(2*arr)*320+64*t}")
        a(f"ds_read_b128 v[{CSR+20+4*t}:{CSR+20+4*t+3}], v234 offset:{LDS_CS+(2*arr+1)*320+64*t}")
    a("s_waitcnt lgkmcnt(0)")
    for i in range(10):
        a(f"v_pk_add_f32 v[{CSR+2*i}:{CSR+2*i+1}], v[{CSR+2*i}:{CSR+2*i+1}], v[{CSR+20+2*i}:{CSR+20+2*i+1}]")

def emit_stat_read(a, cw_reg):
    a("v_and_b32 v232, 15, v1")
    a("v_lshlrev_b32 v232, 3, v232")
    a(f"s_lshl_b32 s60, s{cw_reg}, 8")
    a("v_add_u32 v232, s60, v232")
    a(f"ds_read_b64 v[230:231], v232 offset:{LDS_STAT}")
    a(f"ds_read_b64 v[240:241], v232 offset:{LDS_STAT+128}")

def emit_ln(a, R, st):
    for i in range(10):
        r = R + 2*i
        a(f"v_pk_mul_f32 v[206:207], v[{CSR+2*i}:{CSR+2*i+1}], v[{st}:{st+1}] op_sel:[0,1] op_sel_hi:[1,1]")
        a(f"v_pk_fma_f32 v[{r}:{r+1}], v[{r}:{r+1}], v[{st}:{st+1}], v[206:207] op_sel_hi:[1,0,1]")

def emit_unit(a, R):
    for t in range(5):
        r = R + 4*t
        a(f"v_cvt_pk_bf16_f32 v{KB+2*t}, v{r}, v{r+1}")
        a(f"v_cvt_pk_bf16_f32 v{KB+2*t+1}, v{r+2}, v{r+3}")
    a.nop(2)
    emit_phi_mfma(a, PF, KB, PP)
    a.nop(8)
    emit_softmax(a, PP, EE, R, 250)

def phi_write_addr(a, cw_reg):
    a("v_and_b32 v232, 15, v1")
    a("v_lshrrev_b32 v233, 4, v1")
    a(f"s_lshl_b32 s60, s{cw_reg}, 5")
    a("v_add_u32 v232, s60, v232")
    a(f"v_mul_u32_u24 v234, {PHI_P}, v232")
    a("v_mul_u32_u24 v235, 80, v233")
    a("v_add_u32 v248, v234, v235")
    a(f"v_mul_u32_u24 v234, {V_P}, v232")
    a("v_mul_u32_u24 v235, 48, v233")
    a("v_add_u32 v249, v234, v235")
    a(f"v_add_u32 v249, {LDS_V}, v249")

def q_store_addr(a, cw_reg, hh):
    a("v_and_b32 v232, 15, v1")
    a("v_lshrrev_b32 v233, 4, v1")
    a("v_mul_u32_u24 v233, 2560, v233")
    a("v_lshlrev_b32 v232, 4, v232")
    a("v_add_u32 v248, v232, v233")
    a(f"s_lshl_b32 s60, s{S_RB}, 2")
    a(f"s_add_u32 s60, s60, s{cw_reg}")
    a("s_lshl_b32 s60, s60, 5")
    a(f"s_lshl_b32 s68, s{S_HG}, 3")
    a("s_add_u32 s60, s60, s68")
    if hh: a("s_add_u32 s60, s60, 4")
    a("s_mul_i32 s60, s60, 2560")
    a(f"s_add_u32 s69, s60, {WS_PHIQ}")

def emit_epi_loader(a):
    emit_consts(a)
    RX = 20
    a("v_lshlrev_b32 v2, 4, v1")
    a(f"s_mul_i32 s60, s{S_WAVE}, 10240")
    a(f"s_add_u32 s60, s60, {LDS_ACCX}")
    a("v_add_u32 v2, s60, v2")
    a(f"s_cmp_eq_u32 s{S_ROLE}, 0")
    a("s_cbranch_scc0 Lp1_ld_q")
    for t in range(5):
        a(f"ds_read_b128 v[{RX+4*t}:{RX+4*t+3}], v2 offset:{t*1024}")
    emit_stat_read(a, S_WAVE)
    emit_cs_read(a, 0)
    emit_ln(a, RX, 240)
    emit_unit(a, RX)
    phi_write_addr(a, S_WAVE)
    for i in range(5):
        a(f"ds_write_b128 v248, v[{RX+4*i}:{RX+4*i+3}] offset:{LDS_PHI+16*PHI_P+16*i}")
    a("s_waitcnt lgkmcnt(0)")
    a("s_barrier")
    a("s_branch Lp1_exit")
    a("Lp1_ld_q:")
    for t in range(10):
        a(f"ds_read_b128 v[{RX+4*t}:{RX+4*t+3}], v2 offset:{t*1024}")
    emit_stat_read(a, S_WAVE)
    emit_cs_read(a, 1)
    q_store_addr(a, S_WAVE, 1)
    for mt in range(2):
        R = RX + 20*mt
        emit_ln(a, R, 230 if mt == 0 else 240)
        emit_unit(a, R)
        for p in range(5):
            a(f"buffer_store_dwordx4 v[{R+4*p}:{R+4*p+3}], v248, s[{SRD_WS}:{SRD_WS+3}], s69 offen offset:{p*512+mt*256}{ST}")
    a("s_branch Lp1_exit")

def emit_epi_common(a):
    a("s_waitcnt vmcnt(0)")
    a.nop(8)
    a("v_and_b32 v232, 15, v1")
    a("v_lshrrev_b32 v233, 4, v1")
    a("v_lshlrev_b32 v234, 4, v233")
    a(f"s_mul_i32 s60, s{S_WAVE}, 320")
    a(f"v_add_u32 v234, s60, v234")
    a("v_lshlrev_b32 v2, 4, v1")
    a(f"s_mul_i32 s60, s{S_WAVE}, 10240")
    a(f"s_add_u32 s60, s60, {LDS_ACCX}")
    a("v_add_u32 v2, s60, v2")
    lbq = a.label("xq"); lbd = a.label("xd")
    a(f"s_cmp_eq_u32 s{S_ROLE}, 0")
    a(f"s_cbranch_scc0 {lbq}")
    for t in range(5):
        a(f"ds_write_b128 v2, v[{acc(1,t)}:{acc(1,t)+3}] offset:{t*1024}")
    a(f"s_branch {lbd}")
    a(f"{lbq}:")
    for mt in range(2):
        for t in range(5):
            a(f"ds_write_b128 v2, v[{acc(mt,5+t)}:{acc(mt,5+t)+3}] offset:{(mt*5+t)*1024}")
    a(f"{lbd}:")
    emit_consts(a)
    emit_phi_addr(a, 14, 0)
    emit_phi_frags(a, PF, 14)
    a("s_waitcnt lgkmcnt(0)")
    a("s_barrier")

def emit_epi_kv(a):
    a(f"s_lshl_b32 s68, s{S_HG}, 2")
    a("s_add_u32 s68, s68, 32")
    a("v_mov_b32 v246, s68")
    a(f"buffer_load_dword v247, v246, s[{SRD_DBG}:{SRD_DBG+3}], 0 offen sc1")
    emit_stat_read(a, S_WAVE)
    phi_write_addr(a, S_WAVE)
    emit_cs_read(a, 1)
    for mt in range(2):
        emit_ln(a, acc(mt, 5), 230 if mt == 0 else 240)
        vb = 210
        for t in range(5):
            r = acc(mt, 5+t)
            a(f"v_cvt_pk_bf16_f32 v{vb+2*t}, v{r}, v{r+1}")
            a(f"v_cvt_pk_bf16_f32 v{vb+2*t+1}, v{r+2}, v{r+3}")
        a(f"v_mov_b32 v{vb+10}, 0x3f80")
        a(f"v_mov_b32 v{vb+11}, 0")
        for i in range(3):
            a(f"ds_write_b128 v249, v[{vb+4*i}:{vb+4*i+3}] offset:{mt*16*V_P+16*i}")
        a.nop(2)
    emit_cs_read(a, 0)
    emit_ln(a, acc(0, 0), 230)
    emit_unit(a, acc(0, 0))
    o = acc(0, 0)
    for i in range(5):
        a(f"ds_write_b128 v248, v[{o+4*i}:{o+4*i+3}] offset:{LDS_PHI+16*i}")
    a("s_waitcnt lgkmcnt(0)")
    a("s_barrier")
    if "bw" not in EXP: stamp(a, 6)
    a("v_lshrrev_b32 v232, 4, v1")
    a("v_lshlrev_b32 v232, 2, v232")
    a("v_bfe_u32 v233, v1, 2, 2")
    a("v_add_u32 v232, v232, v233")
    a("v_and_b32 v233, 3, v1")
    a("v_lshlrev_b32 v233, 3, v233")
    a(f"v_mul_u32_u24 v234, {PHI_P}, v232")
    a("v_add_u32 v234, v234, v233")
    a(f"s_mul_i32 s60, s{S_WAVE}, 80")
    a("v_add_u32 v234, s60, v234")
    a(f"v_mul_u32_u24 v235, {V_P}, v232")
    a("v_add_u32 v235, v235, v233")
    a(f"s_mul_i32 s60, s{S_WAVE}, 48")
    a("v_add_u32 v235, s60, v235")
    a(f"v_add_u32 v235, {LDS_V}, v235")
    KD = 100
    FA, FB = 136, 184
    for s in range(4):
        for ft in range(3):
            for q in range(2):
                a(f"ds_read_b64_tr_b16 v[{FA+12*s+4*ft+2*q}:{FA+12*s+4*ft+2*q+1}], v234 offset:{LDS_PHI+(32*s+16*q)*PHI_P+32*ft}")
        for dt in range(2):
            for q in range(2):
                a(f"ds_read_b64_tr_b16 v[{FB+8*s+4*dt+2*q}:{FB+8*s+4*dt+2*q+1}], v235 offset:{(32*s+16*q)*V_P+32*dt}")
    for s in range(4):
        a(f"s_waitcnt lgkmcnt({min(15, 10*(3-s))})")
        for ft in range(3):
            for dt in range(2):
                d = KD+4*(ft*2+dt)
                if s == 0:
                    a(f"v_mfma_f32_16x16x32_bf16 v[{d}:{d+3}], v[{FA+4*ft}:{FA+4*ft+3}], v[{FB+4*dt}:{FB+4*dt+3}], 0")
                else:
                    a(mf16(d, FA+12*s+4*ft, FB+8*s+4*dt))
    a("v_and_b32 v232, 15, v1")
    a("v_lshrrev_b32 v233, 4, v1")
    a("v_and_b32 v234, 1, v233")
    a("v_lshrrev_b32 v235, 1, v233")
    a("v_lshlrev_b32 v236, 1, v234")
    a("v_add_u32 v236, v236, v235")
    a("v_mul_u32_u24 v236, 336, v236")
    a("v_lshlrev_b32 v237, 4, v232")
    a("v_add_u32 v236, v236, v237")
    a(f"s_mul_i32 s60, s{S_WAVE}, 3360")
    a(f"s_add_u32 s61, s60, {LDS_KVO}")
    a("v_add_u32 v236, s61, v236")
    a("v_mul_u32_u24 v238, 336, v234")
    a("v_add_u32 v238, v238, v237")
    a("v_add_u32 v238, s61, v238")
    a("v_cmp_gt_u32 s[68:69], 5, v232")
    a("v_cmp_eq_u32 s[70:71], 0, v235")
    a("s_and_b64 s[72:73], s[68:69], s[70:71]")
    for ft in range(2):
        a(f"ds_write_b128 v236, v[{KD+4*(ft*2)}:{KD+4*(ft*2)+3}] offset:{ft*4*336}")
    a("s_mov_b64 exec, s[68:69]")
    for ft in range(2):
        a(f"ds_write_b128 v236, v[{KD+4*(ft*2+1)}:{KD+4*(ft*2+1)+3}] offset:{ft*4*336+256}")
    a("s_mov_b64 exec, s[70:71]")
    a(f"ds_write_b128 v238, v[{KD+16}:{KD+19}] offset:{8*336}")
    a("s_mov_b64 exec, s[72:73]")
    a(f"ds_write_b128 v238, v[{KD+20}:{KD+23}] offset:{8*336+256}")
    a("s_mov_b64 exec, -1")
    a("v_lshlrev_b32 v232, 2, v1")
    a("v_add_u32 v233, s61, v232")
    a("s_waitcnt lgkmcnt(0)")
    for i in range(14):
        a(f"ds_read_b32 v{136+i}, v233 offset:{256*i}")
    lp = a.label("poll"); lpd = a.label("polld")
    a(f"{lp}:")
    a("s_waitcnt vmcnt(0)")
    a("v_readfirstlane_b32 s69, v247")
    a("s_nop 3")
    a("s_cmp_lg_u32 s69, 0")
    a(f"s_cbranch_scc1 {lpd}")
    a(f"buffer_load_dword v247, v246, s[{SRD_DBG}:{SRD_DBG+3}], 0 offen sc1")
    a(f"s_branch {lp}")
    a(f"{lpd}:")
    if "bw" not in EXP: stamp(a, 7)
    a(f"s_mul_i32 s68, s{S_HG}, 13440")
    a("s_add_u32 s68, s68, s60")
    a("s_waitcnt lgkmcnt(0)")
    for i in range(13):
        a(f"buffer_atomic_add_f32 v{136+i}, v232, s[{SRD_WS}:{SRD_WS+3}], s68 offen offset:{256*i}")
    a("s_mov_b64 exec, 0xff")
    a(f"buffer_atomic_add_f32 v{136+13}, v232, s[{SRD_WS}:{SRD_WS+3}], s68 offen offset:{256*13}")
    a("s_mov_b64 exec, -1")
    a("s_branch Lp1_end")

def emit_epi_q(a):
    emit_stat_read(a, S_WAVE)
    emit_cs_read(a, 0)
    q_store_addr(a, S_WAVE, 0)
    for mt in range(2):
        R = acc(mt, 0)
        emit_ln(a, R, 230 if mt == 0 else 240)
        emit_unit(a, R)
        for p in range(5):
            a(f"buffer_store_dwordx4 v[{R+4*p}:{R+4*p+3}], v248, s[{SRD_WS}:{SRD_WS+3}], s69 offen offset:{p*512+mt*256}{ST}")
    a("s_branch Lp1_end")

def emit_p1(a):
    kernel_begin(a, "p1_kernel")
    a("s_cmp_ge_u32 s2, 256")
    a("s_cbranch_scc1 Lp1_exit")
    stamp_init(a)
    if "cp0" in EXP: code_prefetch(a, "p1_kernel", "Lcode_end", 0, 254, 255)
    a("s_load_dwordx8 s[4:11], s[0:1], 0")
    a("s_load_dwordx8 s[12:19], s[0:1], 32")
    a("s_load_dwordx4 s[20:23], s[0:1], 64")
    a("s_load_dwordx2 s[24:25], s[0:1], 80")
    a("v_lshrrev_b32 v1, 6, v0")
    a(f"s_and_b32 s{S_XCD}, s2, 7")
    a(f"s_lshr_b32 s{S_SLOT}, s2, 3")
    a(f"v_readfirstlane_b32 s{S_WAVE}, v1")
    a("s_waitcnt lgkmcnt(0)")
    stamp(a, 1)
    srd(a, SRD_WS, 24, WS_END)
    a(f"s_cmp_ge_u32 s{S_SLOT}, 24")
    a("s_cbranch_scc1 Lp1_pack")
    a(f"s_lshr_b32 s60, s{S_XCD}, 1")
    a(f"s_and_b32 s66, s{S_XCD}, 1")
    a(f"s_cmp_ge_u32 s{S_SLOT}, 16")
    a("s_cbranch_scc1 Lp1_q")
    a(f"s_mov_b32 s{S_ROLE}, 0")
    a(f"s_lshl_b32 s{S_RB}, s60, 2")
    a(f"s_lshr_b32 s67, s{S_SLOT}, 2")
    a(f"s_add_u32 s{S_RB}, s{S_RB}, s67")
    a(f"s_lshl_b32 s{S_HG}, s66, 2")
    a(f"s_and_b32 s67, s{S_SLOT}, 3")
    a(f"s_add_u32 s{S_HG}, s{S_HG}, s67")
    a("s_branch Lp1_main")
    a("Lp1_q:")
    a(f"s_mov_b32 s{S_ROLE}, 1")
    a(f"s_sub_u32 s67, s{S_SLOT}, 16")
    a(f"s_lshl_b32 s{S_RB}, s60, 2")
    a(f"s_lshr_b32 s68, s67, 1")
    a(f"s_add_u32 s{S_RB}, s{S_RB}, s68")
    a(f"s_lshl_b32 s{S_HG}, s66, 1")
    a(f"s_and_b32 s68, s67, 1")
    a(f"s_add_u32 s{S_HG}, s{S_HG}, s68")
    a("Lp1_main:")
    a(f"s_cmp_ge_u32 s{S_WAVE}, 4")
    a("s_cbranch_scc0 Lp1_cons")
    a(f"s_sub_u32 s{S_WAVE}, s{S_WAVE}, 4")
    emit_loader(a)
    a("Lp1_cons:")
    if os.environ.get("PRIO"): a("s_setprio " + os.environ["PRIO"])
    emit_main(a)
    stamp(a, 4)
    emit_epi_common(a)
    stamp(a, 5)
    a(f"s_cmp_eq_u32 s{S_ROLE}, 0")
    a("s_cbranch_scc0 Lp1_epi_q")
    emit_epi_kv(a)
    a("Lp1_epi_q:")
    emit_epi_q(a)
    a("Lp1_pack:")
    emit_pack(a)
    a("Lp1_end:")
    stamp_store(a, 0)
    a("Lp1_exit:")
    a("s_endpgm")
```

```python
from common import *
import os
CP1 = 'cp1' in os.environ.get('EXP', '')
CP = 'nocp' not in os.environ.get('EXP', '') and not CP1
import os
ST3 = os.environ.get('ST3', 'sc0 sc1')
ST3 = (' ' + ST3) if ST3 else ''

S_WAVE, S_XCD, S_SLOT, S_RB, S_T0 = 26, 27, 28, 29, 30
SRD_WS = 32
NST = 7
STG = 22528
NSTAGE = 21

def mf32(d, A, B, c=None):
    c = c or d
    return f"v_mfma_f32_32x32x16_bf16 {d}, {A}, {B}, {c}"

def emit_epi(a, ACC, tiles, t_first):
    T = 128
    a("v_and_b32 v3, 31, v1")
    a("v_lshrrev_b32 v6, 4, v3")
    a(f"v_mul_u32_u24 v6, {54*1024}, v6")
    a("v_and_b32 v7, 15, v3")
    a("v_lshrrev_b32 v8, 5, v1")
    a("v_lshlrev_b32 v8, 4, v8")
    a("v_add_u32 v7, v7, v8")
    a("v_lshlrev_b32 v7, 4, v7")
    a("v_add_u32 v6, v6, v7")
    a(f"s_lshl_b32 s40, s{S_RB}, 3")
    a(f"s_lshl_b32 s41, s{S_WAVE}, 1")
    a("s_add_u32 s40, s40, s41")
    a(f"s_mul_i32 s40, s40, {54*1024}")
    a(f"s_add_u32 s40, s40, {WS_ACT + 512*t_first}")
    a(f"s_lshl_b32 s41, s{S_T0}, 9")
    a("s_add_u32 s40, s40, s41")
    import math, struct
    c1 = -2*math.sqrt(2/math.pi)*math.log2(math.e)
    c2 = c1*0.044715
    f2u = lambda f: struct.unpack("<I", struct.pack("<f", f))[0]
    a(f"s_mov_b32 s50, 0x{f2u(c1):08x}\ns_mov_b32 s51, 0x{f2u(c1):08x}")
    a(f"s_mov_b32 s52, 0x{f2u(c2):08x}\ns_mov_b32 s53, 0x{f2u(c2):08x}")
    a("v_mov_b32 v210, s50\nv_mov_b32 v211, s51")
    a.nop(4)
    for t in tiles:
        d = ACC + 16*t
        for i in range(8):
            a(f"v_pk_mul_f32 v[{d+2*i}:{d+2*i+1}], v[{d+2*i}:{d+2*i+1}], v[208:209] op_sel_hi:[1,0]")
        for i in range(4):
            g = d + 2*i
            a(f"v_pk_mul_f32 v[{T+2*i}:{T+2*i+1}], v[{g}:{g+1}], v[{g}:{g+1}]")
            a(f"v_pk_fma_f32 v[{T+2*i}:{T+2*i+1}], v[{T+2*i}:{T+2*i+1}], s[52:53], v[210:211]")
            a(f"v_pk_mul_f32 v[{T+2*i}:{T+2*i+1}], v[{T+2*i}:{T+2*i+1}], v[{g}:{g+1}]")
        for i in range(8):
            a(f"v_exp_f32 v{T+i}, v{T+i}")
        for i in range(4):
            g = d + 2*i
            a(f"v_pk_mul_f32 v[{g}:{g+1}], v[{g}:{g+1}], v[{g+8}:{g+9}]")
        for i in range(4):
            a(f"v_pk_add_f32 v[{T+2*i}:{T+2*i+1}], v[{T+2*i}:{T+2*i+1}], 1.0 op_sel_hi:[1,0]")
        for i in range(8):
            a(f"v_rcp_f32 v{T+i}, v{T+i}")
        a.nop(1)
        for i in range(4):
            g = d + 2*i
            a(f"v_pk_mul_f32 v[{g}:{g+1}], v[{g}:{g+1}], v[{T+2*i}:{T+2*i+1}]")
        for i in range(4):
            a(f"v_cvt_pk_bf16_f32 v{T+8+i}, v{d+2*i}, v{d+2*i+1}")
        a(f"buffer_store_dwordx4 v[{T+8}:{T+11}], v6, s[{SRD_WS}:{SRD_WS+3}], s40 offen{ST3}")
        a("s_add_u32 s40, s40, 512")
        a.nop(2)

def emit_loader(a, part):
    nW = 4 if part == 0 else 3
    t0 = 0 if part == 0 else 4
    n = nW + 2
    a("v_and_b32 v1, 63, v0")
    a("v_lshlrev_b32 v2, 4, v1")
    for j in range(nW):
        a(f"v_add_u32 v{4+j}, {(t0+j)*41*1024 - j*1024}, v2")
    a(f"s_and_b32 s40, s{S_WAVE}, 1")
    a(f"s_mul_i32 s41, s{S_T0}, {41*1024}")
    a("s_lshl_b32 s42, s40, 10")
    a("s_add_u32 s41, s41, s42")
    a(f"s_add_u32 s41, s41, {WS_WGU}")
    for i in range(2):
        a(f"v_add_u32 v{10+i}, {i*40*1024 - i*1024}, v2")
    a(f"s_lshl_b32 s43, s{S_RB}, 2")
    a(f"s_lshr_b32 s44, s{S_WAVE}, 1")
    a("s_lshl_b32 s45, s44, 1")
    a("s_add_u32 s43, s43, s45")
    a(f"s_mul_i32 s43, s43, {40*1024}")
    a("s_add_u32 s43, s43, s42")
    a(f"s_add_u32 s43, s43, {WS_H}")
    a(f"s_mul_i32 s46, s40, {7*1024}")
    a(f"s_add_u32 s46, s46, {t0*1024}")
    a("s_lshl_b32 s47, s40, 12")
    a("s_lshl_b32 s45, s45, 10")
    a("s_add_u32 s47, s47, s45")
    a("s_add_u32 s47, s47, 14336")
    a("s_mov_b32 s48, 0")
    ROT = os.environ.get("ROT3", "0") == "1"
    if ROT:
        a(f"s_mul_i32 s57, s{S_SLOT}, 20")
        a("s_lshr_b32 s57, s57, 5")
        a("s_sub_u32 s56, 20, s57")
        a("s_mov_b32 s58, s41")
        a("s_lshl_b32 s57, s57, 11")
        a("s_add_u32 s41, s41, s57")
        a("s_add_u32 s43, s43, s57")
    def loads(with_h=True):
        if with_h:
            a("s_add_u32 m0, s48, s47")
            a("s_nop 0")
            for i in range(2):
                a(f"buffer_load_dwordx4 v{10+i}, s[{SRD_WS}:{SRD_WS+3}], s43 offen offset:{i*1024} lds")
        a("s_add_u32 m0, s48, s46")
        a("s_nop 0")
        for j in range(nW):
            a(f"buffer_load_dwordx4 v{4+j}, s[{SRD_WS}:{SRD_WS+3}], s41 offen offset:{j*1024} lds")
        a("s_add_u32 s41, s41, 2048")
        a("s_add_u32 s43, s43, 2048")
        if ROT and with_h:
            a("s_sub_u32 s56, s56, 1")
            a("s_cmp_eq_u32 s56, 0")
            a("s_cselect_b32 s57, 40960, 0")
            a("s_sub_u32 s41, s41, s57")
            a("s_sub_u32 s43, s43, s57")
        a(f"s_add_u32 s48, s48, {STG}")
        a(f"s_cmp_ge_u32 s48, {NST*STG}")
        a("s_cselect_b32 s48, 0, s48")
    RAMP = os.environ.get("RAMP", "1") == "1"
    hi = -1
    def issue_upto(k):
        nonlocal hi
        while hi < k:
            loads(); hi += 1
    if RAMP:
        issue_upto(int(os.environ.get('R34', '2')))
        a(f"s_waitcnt vmcnt({hi*n})")
        a("s_barrier")
        issue_upto(hi + 2)
        i = 0
        while True:
            a(f"s_waitcnt vmcnt({(hi-(i+1))*n})")
            a("s_barrier")
            issue_upto(min(hi+2, i+NST))
            i += 1
            if hi == (i-1) + NST: break
        start = i
    else:
        issue_upto(NST-1)
        a(f"s_waitcnt vmcnt({(NST-1)*n})")
        a("s_barrier")
        start = 0
    lp = a.label("p3ld")
    a(f"s_mov_b32 s49, {start}")
    a(f"{lp}:")
    a(f"s_waitcnt vmcnt({5*n})")
    a("s_barrier")
    loads()
    a("s_add_u32 s49, s49, 1")
    a("s_cmp_lt_u32 s49, 13")
    a(f"s_cbranch_scc1 {lp}")
    a(f"s_waitcnt vmcnt({5*n})")
    a("s_barrier")
    lb = a.label("p3x")
    a(f"s_cmp_lg_u32 s40, 0")
    a(f"s_cbranch_scc1 {lb}")
    if ROT: a("s_add_u32 s41, s58, 40960")
    loads(with_h=False)
    a(f"{lb}:")
    for i in range(14, 19):
        a(f"s_waitcnt vmcnt({(18-i)*n})") if i < 18 else a("s_waitcnt vmcnt(0)")
        a("s_barrier")
    a("s_barrier")
    a("s_barrier")
    if os.environ.get("P3SPLIT", "0") == "1":
        a(f"s_mul_i32 s41, s{S_WAVE}, 13312")
        a("v_add_u32 v6, s41, v2")
        a("v_lshlrev_b32 v7, 2, v1")
        a("v_add_u32 v7, s41, v7")
        a("s_barrier")
        for i in range(12):
            a(f"ds_read_b128 v[{16+4*i}:{19+4*i}], v6 offset:{i*1024}")
        a("ds_read_b32 v208, v7 offset:12288")
        a("s_waitcnt lgkmcnt(0)")
        emit_epi(a, 16, range(3), 4)
    a("s_branch Lp3_exit")

def emit_p3(a):
    kernel_begin(a, "p3_kernel")
    a("s_cmp_ge_u32 s2, 256")
    a("s_cbranch_scc1 Lp3_exit")
    stamp_init(a)
    if CP1: code_prefetch(a, "p3_kernel", "Lp3_exit", 0, 254, 255)
    a("s_load_dwordx2 s[24:25], s[0:1], 80")
    a("v_lshrrev_b32 v1, 6, v0")
    a(f"s_and_b32 s{S_XCD}, s2, 7")
    a(f"s_lshr_b32 s{S_SLOT}, s2, 3")
    a(f"v_readfirstlane_b32 s{S_WAVE}, v1")
    a(f"s_lshr_b32 s{S_RB}, s{S_XCD}, 2")
    a(f"s_lshl_b32 s{S_RB}, s{S_RB}, 3")
    a(f"s_lshr_b32 s31, s{S_SLOT}, 2")
    a(f"s_add_u32 s{S_RB}, s{S_RB}, s31")
    a(f"s_and_b32 s{S_T0}, s{S_XCD}, 3")
    a(f"s_lshl_b32 s{S_T0}, s{S_T0}, 2")
    a(f"s_and_b32 s31, s{S_SLOT}, 3")
    a(f"s_add_u32 s{S_T0}, s{S_T0}, s31")
    a(f"s_mul_i32 s{S_T0}, s{S_T0}, 27")
    a(f"s_lshr_b32 s{S_T0}, s{S_T0}, 2")
    a("s_waitcnt lgkmcnt(0)")
    stamp(a, 1)
    srd(a, SRD_WS, 24, WS_END)
    a(f"s_cmp_lt_u32 s{S_WAVE}, 4")
    a("s_cbranch_scc1 Lp3_cons")
    a(f"s_sub_u32 s{S_WAVE}, s{S_WAVE}, 4")
    a(f"s_cmp_lt_u32 s{S_WAVE}, 2")
    a("s_cbranch_scc0 Lp3_ld1")
    emit_loader(a, 0)
    a("Lp3_ld1:")
    emit_loader(a, 1)
    a("Lp3_cons:")
    a("v_and_b32 v1, 63, v0")
    if CP: code_prefetch(a, "p3_kernel", "Lp3_exit", 1, 3, 255)
    ACC = 16
    A0, A1 = 128, 156
    B0, B1 = 184, 188
    MB = 192
    VW, VH = 4, 5
    a("v_and_b32 v1, 63, v0")
    a("v_lshlrev_b32 v2, 4, v1")
    a("v_and_b32 v3, 31, v1")
    a(f"s_lshl_b32 s40, s{S_RB}, 7")
    a(f"s_lshl_b32 s41, s{S_WAVE}, 5")
    a("s_add_u32 s40, s40, s41")
    a("s_lshl_b32 s40, s40, 5")
    a(f"s_add_u32 s40, s40, {WS_STAT}")
    a("v_lshlrev_b32 v6, 5, v3")
    a(f"buffer_load_dwordx4 v[200:203], v6, s[{SRD_WS}:{SRD_WS+3}], s40 offen")
    a(f"buffer_load_dwordx4 v[204:207], v6, s[{SRD_WS}:{SRD_WS+3}], s40 offen offset:16")
    a(f"v_mov_b32 v{VW}, v2")
    a(f"s_lshl_b32 s41, s{S_WAVE}, 10")
    a("s_add_u32 s41, s41, 14336")
    a(f"v_add_u32 v{VH}, s41, v2")
    for r in range(ACC, ACC+112): a(f"v_mov_b32 v{r}, 0")
    a("s_mov_b32 s42, 0")
    a(f"s_mov_b32 s44, {STG}")
    a(f"s_mov_b32 s45, {(-(NST-1)*STG) & 0xffffffff}")
    def reads(setA, setB, ks, withB=True):
        R = []
        if withB: R.append(f"ds_read_b128 v[{setB}:{setB+3}], v{VH} offset:{ks*4096}")
        for t in range(7):
            R.append(f"ds_read_b128 v[{setA+4*t}:{setA+4*t+3}], v{VW} offset:{(ks*7+t)*1024}")
        return R
    def half(curA, curB, R):
        ri = 0
        for t in range(7):
            d = ACC + 16*t
            a(mf32(f"v[{d}:{d+15}]", f"v[{curA+4*t}:{curA+4*t+3}]", f"v[{curB}:{curB+3}]"))
            for _ in range(2):
                if ri < len(R): a(R[ri]); ri += 1
        while ri < len(R): a(R[ri]); ri += 1
    def adv():
        a(f"s_add_u32 s42, s42, {STG}")
        a(f"s_cmp_ge_u32 s42, {NST*STG}")
        a("s_cselect_b32 s43, s45, s44")
        a("s_cselect_b32 s42, 0, s42")
        a(f"v_add_u32 v{VW}, s43, v{VW}")
        a(f"v_add_u32 v{VH}, s43, v{VH}")
    stamp(a, 2)
    a("s_barrier")
    stamp(a, 3)
    for r in reads(A0, B0, 0): a(r)
    a("s_waitcnt vmcnt(0)")
    a("v_add_f32 v200, v200, v202\nv_add_f32 v201, v201, v203\nv_add_f32 v204, v204, v206\nv_add_f32 v205, v205, v207")
    a("v_add_f32 v200, v200, v204\nv_add_f32 v201, v201, v205")
    a("s_mov_b32 s46, 0x3acccccd")
    a("v_mul_f32 v200, s46, v200")
    a("v_mul_f32 v201, s46, v201")
    a("v_fma_f32 v201, -v200, v200, v201")
    a("v_max_f32 v201, 0, v201")
    a("v_add_f32 v201, 0x3727c5ac, v201")
    a("v_rsq_f32 v208, v201")
    a("v_sub_f32 v200, 0, v200")
    a("v_cvt_pk_bf16_f32 v202, v200, v200")
    a("v_lshlrev_b32 v203, 16, v202")
    a("v_sub_f32 v203, v200, v203")
    a("v_cvt_pk_bf16_f32 v203, v203, v203")
    a("v_cmp_gt_u32 vcc, 32, v1")
    a.nop(2)
    a(f"v_cndmask_b32 v{MB}, 0, v202, vcc")
    a(f"v_cndmask_b32 v{MB+1}, 0, v203, vcc")
    a(f"v_mov_b32 v{MB+2}, 0")
    a(f"v_mov_b32 v{MB+3}, 0")
    a("s_waitcnt lgkmcnt(0)")
    lp = a.label("p3main")
    a("s_mov_b32 s47, 0")
    a(f"{lp}:")
    half(A0, B0, reads(A1, B1, 1))
    adv()
    a("s_waitcnt lgkmcnt(0)")
    a("s_barrier")
    half(A1, B1, reads(A0, B0, 0))
    a("s_waitcnt lgkmcnt(0)")
    a("s_add_u32 s47, s47, 1")
    a("s_cmp_lt_u32 s47, 20")
    a(f"s_cbranch_scc1 {lp}")
    half(A0, MB, [])
    a("s_barrier")
    stamp(a, 4)
    SPLIT = os.environ.get("P3SPLIT", "0") == "1"
    if SPLIT:
        a.nop(10)
        a(f"s_mul_i32 s41, s{S_WAVE}, 13312")
        a("v_add_u32 v6, s41, v2")
        for i in range(12):
            r = ACC + 64 + 4*i
            a(f"ds_write_b128 v6, v[{r}:{r+3}] offset:{i*1024}")
        a("v_lshlrev_b32 v7, 2, v1")
        a("v_add_u32 v7, s41, v7")
        a("ds_write_b32 v7, v208 offset:12288")
        a("s_waitcnt lgkmcnt(0)")
        a("s_barrier")
        emit_epi(a, ACC, range(4), 0)
    else:
        emit_epi(a, ACC, range(7), 0)
    stamp_store(a, 2)
    a("Lp3_exit:")
    a("s_endpgm")
```

```python
from common import *
ST4 = __import__('os').environ.get('ST4', '')
ST4 = (' ' + ST4) if ST4 else ''
import os
CP1 = 'cp1' in os.environ.get('EXP', '')
CP = 'nocp' not in os.environ.get('EXP', '') and not CP1

S_WAVE, S_XCD, S_SLOT, S_RB, S_NB = 26, 27, 28, 29, 30
SRD_WS, SRD_OUT = 32, 36
NST = 8
STG = 18432
NSTAGE = 27
LDS_OT = NST*STG

def mf16(d, A, B):
    return f"v_mfma_f32_16x16x32_bf16 v[{d}:{d+3}], v[{A}:{A+3}], v[{B}:{B+3}], v[{d}:{d+3}]"

def emit_loader(a, part):
    n = 5 if part == 0 else 4
    a("v_and_b32 v1, 63, v0")
    a("v_lshlrev_b32 v2, 4, v1")
    a(f"s_and_b32 s40, s{S_WAVE}, 1")
    if part == 0:
        a(f"s_mul_i32 s41, s{S_NB}, {54*5*1024}")
        a(f"s_mul_i32 s42, s40, 5120")
        a("s_add_u32 s41, s41, s42")
        a(f"s_add_u32 s41, s41, {WS_WD}")
        a(f"s_mul_i32 s46, s40, 5120")
        step = 10240
    else:
        for i in range(4):
            a(f"v_add_u32 v{4+i}, {i*54*1024 - i*1024}, v2")
        a(f"s_mul_i32 s41, s{S_RB}, {4*54*1024}")
        a("s_lshl_b32 s42, s40, 10")
        a("s_add_u32 s41, s41, s42")
        a(f"s_add_u32 s41, s41, {WS_ACT}")
        a("s_lshl_b32 s46, s40, 12")
        a("s_add_u32 s46, s46, 10240")
        step = 2048
    a("s_mov_b32 s48, 0")
    ROT = os.environ.get("ROT4", "0") == "1"
    if ROT:
        a(f"s_add_u32 s56, s41, {NSTAGE*step}")
        a(f"s_mul_i32 s57, s{S_SLOT}, 27")
        a("s_lshr_b32 s57, s57, 5")
        a(f"s_mul_i32 s57, s57, {step}")
        a("s_add_u32 s41, s41, s57")
    def loads():
        a("s_add_u32 m0, s48, s46")
        a("s_nop 0")
        if part == 0:
            for j in range(4):
                a(f"buffer_load_dwordx4 v2, s[{SRD_WS}:{SRD_WS+3}], s41 offen offset:{j*1024} lds")
            a("s_add_u32 m0, m0, 4096")
            a("s_add_u32 s43, s41, 4096")
            a(f"buffer_load_dwordx4 v2, s[{SRD_WS}:{SRD_WS+3}], s43 offen lds")
        else:
            for j in range(4):
                a(f"buffer_load_dwordx4 v{4+j}, s[{SRD_WS}:{SRD_WS+3}], s41 offen offset:{j*1024} lds")
        a(f"s_add_u32 s41, s41, {step}")
        if ROT:
            a("s_cmp_ge_u32 s41, s56")
            a(f"s_cselect_b32 s57, {NSTAGE*step}, 0")
            a("s_sub_u32 s41, s41, s57")
        a(f"s_add_u32 s48, s48, {STG}")
        a(f"s_cmp_ge_u32 s48, {NST*STG}")
        a("s_cselect_b32 s48, 0, s48")
    RAMP = os.environ.get("RAMP", "1") == "1"
    hi = -1
    def issue_upto(k):
        nonlocal hi
        while hi < k:
            loads(); hi += 1
    if RAMP:
        issue_upto(int(os.environ.get('R34', '2')))
        a(f"s_waitcnt vmcnt({(hi-0)*n})")
        a("s_barrier")
        issue_upto(hi + 2)
        i = 0
        while True:
            a(f"s_waitcnt vmcnt({(hi-(i+1))*n})")
            a("s_barrier")
            issue_upto(min(hi+2, i+NST))
            i += 1
            if hi == (i-1) + NST: break
        start = i
    else:
        issue_upto(NST-1)
        a(f"s_waitcnt vmcnt({(NST-1)*n})")
        a("s_barrier")
        start = 0
    lp = a.label("p4ld")
    a(f"s_mov_b32 s49, {start}")
    a(f"{lp}:")
    a(f"s_waitcnt vmcnt({6*n})")
    a("s_barrier")
    loads()
    a("s_add_u32 s49, s49, 1")
    a(f"s_cmp_lt_u32 s49, {NSTAGE-NST}")
    a(f"s_cbranch_scc1 {lp}")
    for i in range(NSTAGE-NST, NSTAGE):
        rem = max(0, 26 - (i+1))
        a(f"s_waitcnt vmcnt({rem*n})")
        a("s_barrier")
    a("s_branch Lp4_exit")

def emit_p4(a):
    kernel_begin(a, "p4_kernel")
    a("s_cmp_ge_u32 s2, 256")
    a("s_cbranch_scc1 Lp4_exit")
    stamp_init(a)
    if CP1: code_prefetch(a, "p4_kernel", "Lp4_exit", 0, 254, 255)
    a("s_load_dwordx2 s[20:21], s[0:1], 64")
    a("s_load_dwordx2 s[24:25], s[0:1], 80")
    a("v_lshrrev_b32 v1, 6, v0")
    a(f"s_and_b32 s{S_XCD}, s2, 7")
    a(f"s_lshr_b32 s{S_SLOT}, s2, 3")
    a(f"v_readfirstlane_b32 s{S_WAVE}, v1")
    a(f"s_lshr_b32 s{S_RB}, s{S_XCD}, 1")
    a(f"s_lshl_b32 s{S_RB}, s{S_RB}, 3")
    a(f"s_lshr_b32 s31, s{S_SLOT}, 2")
    a(f"s_add_u32 s{S_RB}, s{S_RB}, s31")
    a(f"s_and_b32 s{S_NB}, s{S_XCD}, 1")
    a(f"s_lshl_b32 s{S_NB}, s{S_NB}, 2")
    a(f"s_and_b32 s31, s{S_SLOT}, 3")
    a(f"s_add_u32 s{S_NB}, s{S_NB}, s31")
    a("s_waitcnt lgkmcnt(0)")
    stamp(a, 1)
    srd(a, SRD_WS, 24, WS_END)
    srd(a, SRD_OUT, 20, S*D*2)
    a(f"s_cmp_lt_u32 s{S_WAVE}, 4")
    a("s_cbranch_scc1 Lp4_cons")
    a(f"s_sub_u32 s{S_WAVE}, s{S_WAVE}, 4")
    a(f"s_cmp_lt_u32 s{S_WAVE}, 2")
    a("s_cbranch_scc0 Lp4_ld1")
    emit_loader(a, 0)
    a("Lp4_ld1:")
    emit_loader(a, 1)
    a("Lp4_cons:")
    if os.environ.get("PRIO"): a("s_setprio " + os.environ["PRIO"])
    a("v_and_b32 v1, 63, v0")
    if CP: code_prefetch(a, "p4_kernel", "Lp4_exit", 1, 3, 255)
    ACC = 16
    A0, A1 = 40, 60
    B0, B1 = 80, 84
    HR = 88
    VW, VH = 4, 5
    a("v_and_b32 v1, 63, v0")
    a("v_lshlrev_b32 v2, 4, v1")
    a("v_and_b32 v3, 15, v1")
    a("v_lshrrev_b32 v7, 4, v1")
    a("v_lshrrev_b32 v8, 1, v7")
    a("v_lshlrev_b32 v8, 5, v8")
    a("v_add_u32 v8, v8, v3")
    a("v_lshlrev_b32 v8, 4, v8")
    a("v_and_b32 v9, 1, v7")
    a("v_lshlrev_b32 v9, 3, v9")
    a("v_add_u32 v8, v8, v9")
    a(f"s_lshl_b32 s40, s{S_RB}, 1")
    a(f"s_lshr_b32 s41, s{S_WAVE}, 1")
    a("s_add_u32 s40, s40, s41")
    a("s_mul_i32 s40, s40, 40")
    a(f"s_mul_i32 s41, s{S_NB}, 5")
    a("s_add_u32 s40, s40, s41")
    a("s_lshl_b32 s40, s40, 10")
    a(f"s_and_b32 s41, s{S_WAVE}, 1")
    a("s_lshl_b32 s41, s41, 8")
    a("s_add_u32 s40, s40, s41")
    a(f"s_add_u32 s40, s40, {WS_H}")
    for t in range(5):
        if t == 4: a("s_add_u32 s40, s40, 4096")
        a(f"buffer_load_dwordx2 v[{HR+2*t}:{HR+2*t+1}], v8, s[{SRD_WS}:{SRD_WS+3}], s40 offen offset:{(t%4)*1024}")
    a(f"v_mov_b32 v{VW}, v2")
    a(f"s_lshl_b32 s41, s{S_WAVE}, 10")
    a("s_add_u32 s41, s41, 10240")
    a(f"v_add_u32 v{VH}, s41, v2")
    for r in range(ACC, ACC+20): a(f"v_mov_b32 v{r}, 0")
    a("s_mov_b32 s42, 0")
    a(f"s_mov_b32 s44, {STG}")
    a(f"s_mov_b32 s45, {(-(NST-1)*STG) & 0xffffffff}")
    def reads(setA, setB, ks):
        R = [f"ds_read_b128 v[{setB}:{setB+3}], v{VH} offset:{ks*4096}"]
        for t in range(5):
            R.append(f"ds_read_b128 v[{setA+4*t}:{setA+4*t+3}], v{VW} offset:{(ks*5+t)*1024}")
        return R
    def half(curA, curB, R):
        ri = 0
        for t in range(5):
            a(mf16(ACC+4*t, curA+4*t, curB))
            for _ in range(2):
                if ri < len(R): a(R[ri]); ri += 1
    def adv():
        a(f"s_add_u32 s42, s42, {STG}")
        a(f"s_cmp_ge_u32 s42, {NST*STG}")
        a("s_cselect_b32 s43, s45, s44")
        a("s_cselect_b32 s42, 0, s42")
        a(f"v_add_u32 v{VW}, s43, v{VW}")
        a(f"v_add_u32 v{VH}, s43, v{VH}")
    stamp(a, 2)
    a("s_barrier")
    stamp(a, 3)
    for r in reads(A0, B0, 0): a(r)
    a("s_waitcnt lgkmcnt(0)")
    lp = a.label("p4main")
    a("s_mov_b32 s47, 0")
    a(f"{lp}:")
    half(A0, B0, reads(A1, B1, 1))
    adv()
    a("s_waitcnt lgkmcnt(0)")
    a("s_barrier")
    half(A1, B1, reads(A0, B0, 0))
    a("s_waitcnt lgkmcnt(0)")
    a("s_add_u32 s47, s47, 1")
    a(f"s_cmp_lt_u32 s47, {NSTAGE}")
    a(f"s_cbranch_scc1 {lp}")
    stamp(a, 4)
    a("s_waitcnt vmcnt(0)")
    a.nop(8)
    OB = 100
    for t in range(5):
        for p in range(2):
            x = HR + 2*t + p
            a(f"v_lshlrev_b32 v60, 16, v{x}")
            a(f"v_and_b32 v61, 0xffff0000, v{x}")
            a(f"v_pk_add_f32 v[60:61], v[60:61], v[{ACC+4*t+2*p}:{ACC+4*t+2*p+1}]")
            a(f"v_cvt_pk_bf16_f32 v{OB+2*t+p}, v60, v61")
    a("v_mul_u32_u24 v8, 176, v3")
    a("v_lshlrev_b32 v9, 3, v7")
    a("v_add_u32 v8, v8, v9")
    a(f"s_mul_i32 s40, s{S_WAVE}, 2816")
    a(f"s_add_u32 s40, s40, {LDS_OT}")
    a("v_add_u32 v8, s40, v8")
    for t in range(5):
        a(f"ds_write_b64 v8, v[{OB+2*t}:{OB+2*t+1}] offset:{32*t}")
    for j in range(3):
        a(f"v_add_u32 v10, {64*j}, v1")
        a("v_mul_u32_u24 v11, 205, v10")
        a("v_lshrrev_b32 v11, 11, v11")
        a("v_mul_u32_u24 v12, 10, v11")
        a("v_sub_u32 v12, v10, v12")
        a("v_lshlrev_b32 v12, 4, v12")
        a("v_mul_u32_u24 v13, 176, v11")
        a("v_add_u32 v13, v13, v12")
        a(f"v_add_u32 v{20+j}, s40, v13")
        a("v_mul_u32_u24 v13, 1280, v11")
        a(f"v_add_u32 v{24+j}, v13, v12")
    a("s_waitcnt lgkmcnt(0)")
    for j in range(3):
        a(f"ds_read_b128 v[{40+4*j}:{43+4*j}], v{20+j}")
    a(f"s_lshl_b32 s41, s{S_RB}, 6")
    a(f"s_lshl_b32 s42, s{S_WAVE}, 4")
    a("s_add_u32 s41, s41, s42")
    a("s_mul_i32 s41, s41, 1280")
    a(f"s_mul_i32 s42, s{S_NB}, 160")
    a("s_add_u32 s41, s41, s42")
    a("s_waitcnt lgkmcnt(0)")
    for j in range(3):
        if j == 2: a("s_mov_b32 exec_hi, 0")
        a(f"buffer_store_dwordx4 v[{40+4*j}:{43+4*j}], v{24+j}, s[{SRD_OUT}:{SRD_OUT+3}], s41 offen{ST4}")
    a("s_mov_b64 exec, -1")
    stamp_store(a, 3)
    a("Lp4_exit:")
    a("s_endpgm")
```

```python
from common import *
import gen
def mk_nop(name):
    def emit(a):
        kernel_begin(a, name)
        a("s_endpgm")
    return emit
base = list(gen.KERNELS)
thin = ("nop_kernel", 256, 64, 0, mk_nop("nop_kernel"), 8, 8)
fat = ("fat_kernel", 256, 512, 163840, mk_nop("fat_kernel"), 256, 256)
fat2 = ("fat2_kernel", 256, 512, 0, mk_nop("fat2_kernel"), 256, 256)
def build(kernels):
    a = Asm()
    hdr = open("cdna_kernels/" + gen.NAME + ".s.ref").read().split("\n")
    for line in hdr:
        if line.startswith("; Override launch") : break
        a(line)
    for (name, grid, block, lds, fn, vg, acc) in kernels:
        a(f"; @launch kernel={name} grid=({grid},1,1) block=({block},1,1) lds={lds}")
    a('.amdgcn_target "amdgcn-amd-amdhsa--gfx950"')
    a(".text")
    seen = []
    for k in kernels:
        if k[0] not in [s[0] for s in seen]: seen.append(k)
    for k in seen: k[4](a)
    a("Lcode_end:")
    a("s_endpgm")
    a('.section .rodata,"a"')
    for k in seen: kernel_desc(a, k[0], k[5], k[6])
    return a.text()
K = "cdna_kernels/"
open(K+"varA.s","w").write(build(base))
open(K+"varB.s","w").write(build(base + [fat]*4))
open(K+"varC.s","w").write(build(base + [thin]*4))
open(K+"varD.s","w").write(build(base + [fat2]*4))
open(K+"varE.s","w").write(build(base + [base[3]]))
open(K+"varF.s","w").write(build(base[:3] + [base[2]] + base[3:]))
```

```python
from common import *
import os
EXP = os.environ.get("EXP", "")
ST = os.environ.get("ST", "sc0 sc1")
ST = (" " + ST) if ST else ""
STP = os.environ.get("STP", "sc0 sc1")
STP = (" " + STP) if STP else ""

S_WAVE, S_XCD, S_SLOT = 26, 27, 28
SRD_WS, SRD_A, SRD_B, SRD_PHI, SRD_DBG = 32, 36, 40, 44, 48

def emit_pack_dma(a, srd_reg, nins_per_wave, pitch, s_off_reg, lds_base_expr_reg, v_off):
    lp = a.label("pdma")
    a(f"s_mov_b32 s60, {nins_per_wave}")
    a(f"{lp}:")
    a(f"s_mov_b32 m0, s{lds_base_expr_reg}")
    a(f"s_add_u32 s{lds_base_expr_reg}, s{lds_base_expr_reg}, 1024")
    a(f"buffer_load_dwordx4 v{v_off}, s[{srd_reg}:{srd_reg+3}], s{s_off_reg} offen lds")
    a(f"s_add_u32 s{s_off_reg}, s{s_off_reg}, {8*pitch}")
    a(f"s_sub_u32 s60, s60, 1")
    a(f"s_cmp_lg_u32 s60, 0")
    a(f"s_cbranch_scc1 {lp}")

def emit_prefetch(a):
    srd(a, SRD_A, 4, S*D*2)
    srd(a, SRD_B, 6, D*3*D*2)
    a(f"s_sub_u32 s52, s{S_SLOT}, 24")
    a(f"s_lshr_b32 s66, s{S_XCD}, 1")
    a(f"s_mul_i32 s66, s66, {512*1280}")
    for j in range(2):
        a("s_mul_i32 s60, s52, 640")
        a(f"s_add_u32 s60, s60, {512*j}")
        a("v_add_u32 v232, s60, v0")
        a("v_lshlrev_b32 v232, 7, v232")
        if j == 1:
            a("v_cmp_gt_u32 vcc, 128, v0")
            a("s_and_saveexec_b64 s[68:69], vcc")
        a(f"buffer_load_dword v{250+j}, v232, s[{SRD_A}:{SRD_A+3}], s66 offen")
        if j == 1: a("s_mov_b64 exec, s[68:69]")
    a(f"s_and_b32 s66, s{S_XCD}, 1")
    a("s_mul_i32 s66, s66, 640")
    for j in range(3):
        a("s_mul_i32 s60, s52, 1200")
        a(f"s_add_u32 s60, s60, {512*j}")
        a("v_add_u32 v232, s60, v0")
        a("v_mul_u32_u24 v233, 17477, v232")
        a("v_lshrrev_b32 v233, 18, v233")
        a("v_mul_u32_u24 v234, 15, v233")
        a("v_sub_u32 v234, v232, v234")
        a("v_mul_u32_u24 v235, 205, v234")
        a("v_lshrrev_b32 v235, 10, v235")
        a("v_mul_u32_u24 v236, 5, v235")
        a("v_sub_u32 v236, v234, v236")
        a("v_mul_u32_u24 v233, 3840, v233")
        a("v_mul_u32_u24 v235, 1280, v235")
        a("v_lshlrev_b32 v236, 7, v236")
        a("v_add3_u32 v233, v233, v235, v236")
        if j == 2:
            a("v_cmp_gt_u32 vcc, 176, v0")
            a("s_and_saveexec_b64 s[68:69], vcc")
        a(f"buffer_load_dword v{252+j}, v233, s[{SRD_B}:{SRD_B+3}], s66 offen")
        if j == 2: a("s_mov_b64 exec, s[68:69]")
    if "nocp" not in EXP and "cp0" not in EXP:
        code_prefetch(a, "p1_kernel", "Lcode_end", 0, 232, 255)
    if "kd" in EXP:
        a("s_getpc_b64 s[72:73]")
        a("s_add_u32 s72, s72, Lkd_start@rel32@lo+4")
        a("s_addc_u32 s73, s73, Lkd_start@rel32@hi+12")
        a("v_and_b32 v232, 7, v0")
        a("v_lshlrev_b32 v232, 6, v232")
        a("global_load_dword v248, v232, s[72:73]")
    if "tlb" in EXP:
        a("v_lshlrev_b32 v232, 16, v0")
        a(f"v_min_u32 v232, {WS_END-4}, v232")
        a(f"buffer_load_dword v249, v232, s[{SRD_WS}:{SRD_WS+3}], 0 offen")
    a("s_waitcnt vmcnt(0)")

def emit_pack(a):
    if "nopf" not in EXP: emit_prefetch(a)
    a(f"s_sub_u32 s52, s{S_SLOT}, 24")
    a(f"s_lshl_b32 s52, s52, 3")
    a(f"s_add_u32 s52, s52, s{S_XCD}")
    a("s_cmp_ge_u32 s52, %d" % (0 if "nopack" in EXP else 57))
    a("s_cbranch_scc1 Lp1_end")
    a(f"s_cmp_ge_u32 s{S_WAVE}, 4")
    a("s_cbranch_scc1 Lp1_exit")
    a("v_and_b32 v1, 63, v0")
    a("v_lshlrev_b32 v2, 4, v1")
    a("v_lshrrev_b32 v3, 3, v1")
    a("v_and_b32 v4, 7, v1")
    a("v_lshlrev_b32 v4, 4, v4")
    a("v_lshrrev_b32 v5, 4, v1")
    a("v_bfe_u32 v6, v1, 2, 2")
    a("v_and_b32 v7, 3, v1")
    a("s_cmp_lt_u32 s52, 27")
    a("s_cbranch_scc0 Lp1_pack_not_gu")
    srd(a, SRD_A, 14, D*F*2)
    srd(a, SRD_B, 16, D*F*2)
    a("v_mul_u32_u24 v8, 3456, v3")
    a("v_add_u32 v8, v8, v4")
    a(f"s_mul_i32 s53, s{S_WAVE}, {20*8*3456}")
    a("s_lshl_b32 s54, s52, 7")
    a("s_add_u32 s53, s53, s54")
    a("s_mov_b32 s55, s53")
    a(f"s_mul_i32 s56, s{S_WAVE}, {20*1024}")
    a(f"s_add_u32 s57, s56, 81920")
    emit_pack_dma(a, SRD_A, 20, 3456, 53, 56, 8)
    emit_pack_dma(a, SRD_B, 20, 3456, 55, 57, 8)
    a("v_and_b32 v9, 1, v5")
    a("v_mul_u32_u24 v9, 81920, v9")
    a("v_lshrrev_b32 v10, 1, v5")
    a("v_lshlrev_b32 v10, 3, v10")
    a("v_add_u32 v10, v10, v6")
    a("v_lshlrev_b32 v10, 7, v10")
    a("v_add_u32 v9, v9, v10")
    a("v_and_b32 v10, 1, v7")
    a("v_lshlrev_b32 v10, 4, v10")
    a("v_add_u32 v9, v9, v10")
    a("v_lshrrev_b32 v10, 1, v7")
    a("v_lshlrev_b32 v10, 3, v10")
    a("v_add_u32 v9, v9, v10")
    a(f"s_lshl_b32 s53, s{S_WAVE}, 5")
    a("v_add_u32 v9, s53, v9")
    for i in range(4): a(f"v_mov_b32 v{12+i}, 0x3f803f80")
    for i in range(16): a(f"v_mov_b32 v{16+i}, 0")
    a("s_lshl_b32 s53, s52, 2")
    a(f"s_add_u32 s53, s53, s{S_WAVE}")
    a(f"s_mul_i32 s53, s53, {41*1024}")
    a(f"s_add_u32 s53, s53, {WS_WGU}")
    a("s_waitcnt vmcnt(0)")
    a("s_barrier")
    lp = a.label("gu")
    a("s_mov_b32 s60, 10")
    a(f"{lp}:")
    for u in range(4):
        a(f"ds_read_b64_tr_b16 v[{32+4*u}:{33+4*u}], v9 offset:{u*2048}")
        a(f"ds_read_b64_tr_b16 v[{34+4*u}:{35+4*u}], v9 offset:{u*2048+512}")
    a("v_add_u32 v9, 8192, v9")
    for u in range(4):
        a(f"s_waitcnt lgkmcnt({6-2*u})")
        a(f"v_mfma_f32_32x32x16_bf16 v[16:31], v[12:15], v[{32+4*u}:{35+4*u}], v[16:31]")
        a(f"buffer_store_dwordx4 v[{32+4*u}:{35+4*u}], v2, s[{SRD_WS}:{SRD_WS+3}], s53 offen{STP}")
        a("s_add_u32 s53, s53, 1024")
    a("s_sub_u32 s60, s60, 1")
    a("s_cmp_lg_u32 s60, 0")
    a(f"s_cbranch_scc1 {lp}")
    a.nop(14)
    a("v_cvt_pk_bf16_f32 v32, v16, v16")
    a("v_lshlrev_b32 v33, 16, v32")
    a("v_sub_f32 v34, v16, v33")
    a("v_cvt_pk_bf16_f32 v36, v33, v34")
    a("v_cmp_gt_u32 vcc, 32, v1")
    a.nop(2)
    a("v_cndmask_b32 v36, 0, v36, vcc")
    a("v_mov_b32 v37, v36")
    a("v_mov_b32 v38, 0")
    a("v_mov_b32 v39, 0")
    a(f"buffer_store_dwordx4 v[36:39], v2, s[{SRD_WS}:{SRD_WS+3}], s53 offen{STP}")
    a("s_branch Lp1_end")
    a("Lp1_pack_not_gu:")
    a("s_cmp_lt_u32 s52, 47")
    a("s_cbranch_scc0 Lp1_pack_wo")
    srd(a, SRD_A, 18, F*D*2)
    a("s_sub_u32 s52, s52, 27")
    a("s_lshr_b32 s58, s52, 1")
    a("s_and_b32 s59, s52, 1")
    a("v_mul_u32_u24 v8, 1280, v3")
    a("v_add_u32 v8, v8, v4")
    a(f"s_mul_i32 s53, s59, {864*1280}")
    a(f"s_mul_i32 s54, s{S_WAVE}, {27*8*1280}")
    a("s_add_u32 s53, s53, s54")
    a("s_lshl_b32 s54, s58, 7")
    a("s_add_u32 s53, s53, s54")
    a(f"s_mul_i32 s56, s{S_WAVE}, {27*1024}")
    emit_pack_dma(a, SRD_A, 27, 1280, 53, 56, 8)
    a("v_lshlrev_b32 v9, 3, v5")
    a("v_add_u32 v9, v9, v6")
    a("v_lshlrev_b32 v9, 7, v9")
    a("v_lshlrev_b32 v10, 3, v7")
    a("v_add_u32 v9, v9, v10")
    a(f"s_lshl_b32 s53, s{S_WAVE}, 5")
    a("v_add_u32 v9, s53, v9")
    a("s_lshl_b32 s53, s58, 2")
    a(f"s_add_u32 s53, s53, s{S_WAVE}")
    a("s_mul_i32 s54, s53, 52429")
    a("s_lshr_b32 s54, s54, 18")
    a("s_mul_i32 s55, s54, 5")
    a("s_sub_u32 s55, s53, s55")
    a("s_mul_i32 s54, s54, 54")
    a("s_mul_i32 s56, s59, 27")
    a("s_add_u32 s54, s54, s56")
    a("s_mul_i32 s54, s54, 5")
    a("s_add_u32 s54, s54, s55")
    a("s_lshl_b32 s53, s54, 10")
    a(f"s_add_u32 s53, s53, {WS_WD}")
    a("s_waitcnt vmcnt(0)")
    a("s_barrier")
    lp = a.label("wd")
    a("s_mov_b32 s60, 9")
    a(f"{lp}:")
    for u in range(3):
        a(f"ds_read_b64_tr_b16 v[{32+4*u}:{33+4*u}], v9 offset:{u*4096}")
        a(f"ds_read_b64_tr_b16 v[{34+4*u}:{35+4*u}], v9 offset:{u*4096+512}")
    a("v_add_u32 v9, 12288, v9")
    for u in range(3):
        a(f"s_waitcnt lgkmcnt({4-2*u})")
        a(f"buffer_store_dwordx4 v[{32+4*u}:{35+4*u}], v2, s[{SRD_WS}:{SRD_WS+3}], s53 offen{STP}")
        a("s_add_u32 s53, s53, 5120")
    a("s_sub_u32 s60, s60, 1")
    a("s_cmp_lg_u32 s60, 0")
    a(f"s_cbranch_scc1 {lp}")
    a("s_branch Lp1_end")
    a("Lp1_pack_wo:")
    srd(a, SRD_A, 10, D*D*2)
    a("s_sub_u32 s58, s52, 47")
    a("v_mul_u32_u24 v8, 1280, v3")
    a("v_add_u32 v8, v8, v4")
    a(f"s_mul_i32 s53, s{S_WAVE}, {20*8*1280}")
    a("s_lshl_b32 s54, s58, 7")
    a("s_add_u32 s53, s53, s54")
    a(f"s_mul_i32 s56, s{S_WAVE}, {20*1024}")
    emit_pack_dma(a, SRD_A, 20, 1280, 53, 56, 8)
    a(f"s_and_b32 s53, s{S_WAVE}, 1")
    a("s_lshl_b32 s53, s53, 6")
    a(f"s_lshr_b32 s54, s{S_WAVE}, 1")
    a("s_mul_i32 s55, s54, 40960")
    a("s_add_u32 s53, s53, s55")
    a("s_lshl_b32 s54, s54, 4")
    a("v_and_b32 v10, 1, v5")
    a("v_lshlrev_b32 v10, 4, v10")
    a("v_lshlrev_b32 v11, 2, v7")
    a("v_add_u32 v10, v10, v11")
    a("v_add_u32 v10, s54, v10")
    a("v_lshrrev_b32 v11, 1, v5")
    a("v_lshlrev_b32 v12, 2, v11")
    a("v_add_u32 v12, v12, v6")
    a("v_lshlrev_b32 v12, 7, v12")
    a("v_mul_u32_u24 v13, 20, v11")
    a("v_add_u32 v13, v13, v6")
    a("v_add_u32 v13, 16, v13")
    a("v_lshlrev_b32 v13, 7, v13")
    for rr in range(2):
        a(f"v_add_u32 v14, {8*rr}, v10")
        a("v_and_b32 v14, 31, v14")
        a("v_lshlrev_b32 v14, 1, v14")
        a("v_add_u32 v14, s53, v14")
        a(f"v_add_u32 v{16+rr}, v12, v14")
        a(f"v_add_u32 v{18+rr}, v13, v14")
    a("s_lshl_b32 s53, s58, 1")
    a(f"s_and_b32 s54, s{S_WAVE}, 1")
    a("s_add_u32 s53, s53, s54")
    a("s_mul_i32 s54, s53, 52429")
    a("s_lshr_b32 s54, s54, 18")
    a("s_mul_i32 s55, s54, 5")
    a("s_sub_u32 s55, s53, s55")
    a("s_lshl_b32 s54, s54, 3")
    a(f"s_lshr_b32 s56, s{S_WAVE}, 1")
    a("s_lshl_b32 s56, s56, 2")
    a("s_add_u32 s54, s54, s56")
    a("s_mul_i32 s54, s54, 25")
    a("s_add_u32 s54, s54, s55")
    a("s_lshl_b32 s53, s54, 10")
    a(f"s_add_u32 s53, s53, {WS_WOP}")
    a("s_waitcnt vmcnt(0)")
    a("s_barrier")
    for Qi in range(4):
        for m in range(5):
            b = 32 + 4*m
            if m < 4:
                o = (4*Qi+m)*2560
                a(f"ds_read_b64_tr_b16 v[{b}:{b+1}], v{16+(Qi>>1)} offset:{o}")
                a(f"ds_read_b64_tr_b16 v[{b+2}:{b+3}], v{16+(Qi>>1)} offset:{o+1024}")
            else:
                o = Qi*10240
                a(f"ds_read_b64_tr_b16 v[{b}:{b+1}], v{18+(Qi>>1)} offset:{o}")
                a(f"ds_read_b64_tr_b16 v[{b+2}:{b+3}], v{18+(Qi>>1)} offset:{o+5120}")
        for m in range(5):
            b = 32 + 4*m
            a(f"s_waitcnt lgkmcnt({8-2*m})")
            a(f"buffer_store_dwordx4 v[{b}:{b+3}], v2, s[{SRD_WS}:{SRD_WS+3}], s53 offen{STP}")
            a("s_add_u32 s53, s53, 5120")
        a.nop(2)
    a("s_branch Lp1_end")

LDS_WPHI = 0
LDS_ZERO = 8192
LDS_CS   = 9216
LDS_STAT = 10496
XR_BASE, XR_STG, XR_N = 12288, 16384, 4
WR_BASE, WR_STG, WR_N = 77824, 12288, 7
LDS_PHI = 12288
PHI_P = 352
LDS_V = 57344
V_P = 224
LDS_KVO = 86016
LDS_ACCX = 100352

V_WR = 2
V_XR0, V_XR1 = 12, 13
V_ONES = 16
V_ACC = 20
V_CS = 100
V_A0, V_A1 = 120, 160
V_B0, V_B1 = 200, 208
V_SX, V_SQ = 216, 224

S_ROLE, S_RB, S_HG, S_ZERO = 59, 61, 62, 63
S_L2E = 64

def acc(mt, T): return V_ACC + (mt*10 + T)*4

def mf16(d, A, B, c=None):
    c = d if c is None else c
    return f"v_mfma_f32_16x16x32_bf16 v[{d}:{d+3}], v[{A}:{A+3}], v[{B}:{B+3}], v[{c}:{c+3}]"

def frag_reads(setA, setB, vx):
    R = []
    for mt in range(2):
        R.append(f"ds_read_b128 v[{setB+4*mt}:{setB+4*mt+3}], v{vx} offset:{mt*2048}")
    for T in range(10):
        arr, t = divmod(T, 5)
        off = arr*6144
        R.append(f"ds_read_b64_tr_b16 v[{setA+4*T}:{setA+4*T+1}], v{V_WR+5*arr+t} offset:{off}")
        R.append(f"ds_read_b64_tr_b16 v[{setA+4*T+2}:{setA+4*T+3}], v{V_WR+5*arr+t} offset:{off+8*192}")
    return R

def emit_step(a, curA, curB, reads, cs_waves, fill=()):
    fill = list(fill)
    M = []
    for T in range(10):
        for mt in range(2):
            M.append(mf16(acc(mt, T), curA+4*T, curB+4*mt))
    ri = 0
    for k, m in enumerate(M):
        if "nomfma" not in EXP: a(m)
        for _ in range(2):
            if ri < len(reads):
                a(reads[ri]); ri += 1
            elif fill:
                a(fill.pop(0))
    assert ri == len(reads)
    for f in fill: a(f)

def adv_w():
    L = [f"s_add_u32 s54, s54, {WR_STG}\ns_cmp_ge_u32 s54, {WR_N*WR_STG}\ns_cselect_b32 s58, s77, s76\ns_cselect_b32 s54, 0, s54"]
    for i in range(10): L.append(f"v_add_u32 v{V_WR+i}, s58, v{V_WR+i}")
    return L
def adv_x():
    return [f"s_add_u32 s55, s55, {XR_STG}\ns_cmp_ge_u32 s55, {XR_N*XR_STG}\ns_cselect_b32 s56, s79, s78\ns_cselect_b32 s55, 0, s55",
            f"v_add_u32 v{V_XR0}, s56, v{V_XR0}", f"v_add_u32 v{V_XR1}, s56, v{V_XR1}"]

def emit_delta(a):
    a(f"s_mul_i32 s68, s{S_HG}, 160")
    a("s_add_u32 s69, s68, 2560")
    a("s_add_u32 s68, s68, 1280")
    a(f"s_mul_i32 s70, s{S_HG}, 320")
    a("s_add_u32 s71, s70, 160")
    a(f"s_cmp_eq_u32 s{S_ROLE}, 0")
    a("s_cselect_b32 s68, s68, s70")
    a("s_cselect_b32 s69, s69, s71")
    a("s_and_b32 s66, s68, 63")
    a("s_and_b32 s67, s69, 63")
    a("s_sub_u32 s68, s68, s66")
    a("s_sub_u32 s69, s69, s67")

def emit_loader(a):
    srd(a, SRD_A, 4, S*D*2)
    srd(a, SRD_B, 6, D*3*D*2)
    a("v_and_b32 v1, 63, v0")
    a("v_lshrrev_b32 v14, 3, v1")
    a("v_and_b32 v32, 7, v1")
    a("v_xor_b32 v32, v32, v14")
    a("v_lshlrev_b32 v32, 4, v32")
    a("v_mul_u32_u24 v14, 1280, v14")
    a("v_add_u32 v2, v14, v32")
    a(f"s_lshl_b32 s60, s{S_RB}, 7")
    a(f"s_lshl_b32 s52, s{S_WAVE}, 5")
    a("s_add_u32 s60, s60, s52")
    a("s_mul_i32 s52, s60, 1280")
    a(f"s_lshl_b32 s55, s{S_WAVE}, 12")
    a(f"s_add_u32 s55, s55, {XR_BASE}")
    for i in range(1, 4):
        a(f"v_add_u32 v{2+i}, {i*(10240-1024)}, v2")
    q = []
    xs = [0]; ws = [0]
    def issue_x():
        s = xs[0]
        a(f"s_add_u32 m0, s55, {(s % XR_N)*XR_STG}")
        a("s_nop 0")
        for i in range(4):
            a(f"buffer_load_dwordx4 v{2+i}, s[{SRD_A}:{SRD_A+3}], s52 offen offset:{i*1024} lds")
        a("s_add_u32 s52, s52, 128")
        q.append((f"X{s}", 4)); xs[0] += 1
    def issue_w():
        s = ws[0]
        a(f"s_add_u32 m0, s56, {(s % WR_N)*WR_STG}")
        a("s_nop 0")
        for j in range(3):
            a(f"buffer_load_dwordx4 v{6+j}, s[{SRD_B}:{SRD_B+3}], s53 offen offset:{j*1024} lds")
        a(f"s_add_u32 s53, s53, {32*3840}")
        q.append((f"W{s}", 3)); ws[0] += 1
    done = [-1]
    def need(names):
        last = max(i for i, (n, c) in enumerate(q) if n in names)
        if last <= done[0]: return
        done[0] = last
        a(f"s_waitcnt vmcnt({sum(c for n, c in q[last+1:])})")
    issue_x()
    emit_delta(a)
    a(f"s_and_b32 s70, s{S_WAVE}, 1")
    a("s_mul_i32 s71, s70, 192")
    for j in range(3):
        a(f"s_add_u32 s72, s71, {64*j}")
        a("v_add_u32 v32, s72, v1")
        a("v_mul_u32_u24 v33, 5462, v32")
        a("v_lshrrev_b32 v33, 16, v33")
        a("v_mul_u32_u24 v34, 12, v33")
        a("v_sub_u32 v34, v32, v34")
        a("v_bfe_u32 v36, v33, 2, 1")
        a("v_lshlrev_b32 v36, 1, v36")
        a("v_xor_b32 v34, v34, v36")
        a("v_and_b32 v35, 0x13, v33")
        a("v_and_b32 v36, 4, v33")
        a("v_lshlrev_b32 v36, 1, v36")
        a("v_or_b32 v35, v35, v36")
        a("v_and_b32 v36, 8, v33")
        a("v_lshrrev_b32 v36, 1, v36")
        a("v_or_b32 v35, v35, v36")
        a("v_mul_u32_u24 v35, 3840, v35")
        a("v_lshlrev_b32 v34, 4, v34")
        a(f"v_add_u32 v{6+j}, v35, v34")
        if j: a(f"v_subrev_u32 v{6+j}, {1024*j}, v{6+j}")
    a(f"s_lshr_b32 s71, s{S_WAVE}, 1")
    a("s_cmp_eq_u32 s71, 0")
    a("s_cselect_b32 s53, s68, s69")
    a("s_mul_i32 s56, s71, 6144")
    a("s_mul_i32 s72, s70, 3072")
    a("s_add_u32 s56, s56, s72")
    a(f"s_add_u32 s56, s56, {WR_BASE}")
    issue_w(); issue_w()
    srd(a, SRD_PHI, 8, H*DH*DH*2)
    a(f"s_mul_i32 s68, s{S_HG}, 3200")
    a(f"s_mul_i32 s69, s{S_HG}, 6400")
    a(f"s_cmp_eq_u32 s{S_ROLE}, 0")
    a("s_cselect_b32 s68, s68, s69")
    a(f"s_lshl_b32 s69, s{S_WAVE}, 11")
    a("s_add_u32 s68, s68, s69")
    a(f"s_add_u32 m0, s69, {LDS_WPHI}")
    a("v_lshlrev_b32 v14, 4, v1")
    a(f"buffer_load_dwordx4 v14, s[{SRD_PHI}:{SRD_PHI+3}], s68 offen lds")
    a(f"buffer_load_dwordx4 v14, s[{SRD_PHI}:{SRD_PHI+3}], s68 offen offset:1024 lds")
    q.append(("PHI", 2))
    RAMP = os.environ.get("RAMP", "1") == "1"
    R1 = int(os.environ.get("R1", "2"))
    if RAMP:
        if R1 >= 1: issue_x(); issue_w(); issue_w()
        if R1 >= 2: issue_x(); issue_w(); issue_w()
    else:
        issue_x(); issue_w(); issue_w(); issue_x(); issue_w(); issue_w(); issue_x(); issue_w()
    a("v_and_b32 v232, 15, v1")
    a("v_lshrrev_b32 v233, 4, v1")
    a("v_and_b32 v234, 7, v232")
    a("v_xor_b32 v234, v234, v233")
    a("v_lshlrev_b32 v234, 4, v234")
    a("v_lshlrev_b32 v235, 7, v232")
    a("v_add_u32 v234, v234, v235")
    a("v_add_u32 v26, s55, v234")
    a("v_xor_b32 v27, 64, v26")
    emit_delta(a)
    a("s_cmp_eq_u32 s71, 0")
    a(f"s_lshr_b32 s72, s{S_WAVE}, 1")
    a("s_cmp_eq_u32 s72, 0")
    a("s_cselect_b32 s73, s66, s67")
    a("s_mul_i32 s72, s72, 6144")
    a(f"s_add_u32 s72, s72, {WR_BASE}")
    a("v_bfe_u32 v234, v1, 2, 2")
    a("v_and_b32 v235, 1, v233")
    a("v_lshlrev_b32 v236, 2, v235")
    a("v_add_u32 v234, v234, v236")
    a("v_lshrrev_b32 v236, 1, v233")
    a("v_lshlrev_b32 v236, 4, v236")
    a("v_add_u32 v234, v234, v236")
    a("v_mul_u32_u24 v234, 192, v234")
    a("v_add_u32 v234, s72, v234")
    a("v_lshlrev_b32 v235, 5, v235")
    a("v_and_b32 v236, 3, v1")
    a("v_mul_u32_u24 v236, 40, v236")
    a("v_add_u32 v237, s73, v236")
    for t in range(5):
        a(f"v_add_u32 v238, {8*t}, v237")
        a("v_xor_b32 v238, v238, v235")
        a(f"v_add_u32 v{16+t}, v238, v234")
    for i in range(4): a(f"v_mov_b32 v{28+i}, 0x3f803f80")
    for r in range(32, 68): a(f"v_mov_b32 v{r}, 0")
    a(f"s_and_b32 s74, s{S_WAVE}, 1")
    def side(st):
        c0, c1 = ((2*st) % WR_N)*WR_STG, ((2*st+1) % WR_N)*WR_STG
        a(f"s_mov_b32 s75, {c0}")
        a("s_cmp_eq_u32 s74, 0")
        a(f"s_cselect_b32 s75, s75, {c1}")
        xo = (st % XR_N)*XR_STG
        for ks in range(2):
            for mt in range(2):
                r = 88 + 8*ks + 4*mt
                a(f"ds_read_b128 v[{r}:{r+3}], v{26+ks} offset:{xo + mt*2048}")
        for t in range(5): a(f"v_add_u32 v{21+t}, s75, v{16+t}")
        for t in range(5):
            a(f"ds_read_b64_tr_b16 v[{68+4*t}:{69+4*t}], v{21+t}")
            a(f"ds_read_b64_tr_b16 v[{70+4*t}:{71+4*t}], v{21+t} offset:{8*192}")
        a("s_waitcnt lgkmcnt(10)")
        for ks in range(2):
            for mt in range(2):
                r = 88 + 8*ks + 4*mt
                a(mf16(52+4*mt, 28, r))
                a(mf16(60+4*mt, r, r))
        a("s_waitcnt lgkmcnt(0)")
        for t in range(5):
            a(mf16(32+4*t, 68+4*t, 28))
    need(["X0", "W0", "W1"])
    stamp(a, 2)
    a("s_barrier")
    if RAMP:
        while xs[0] < 4 or ws[0] < 7:
            if xs[0] < 4 and 2*xs[0] <= ws[0]: issue_x()
            elif ws[0] < 7: issue_w()
            else: issue_x()
    side(0)
    for i in range(10):
        names = []
        if i + 1 < 10: names = [f"W{2*i+2}", f"W{2*i+3}", f"X{i+1}"]
        if names: need(names)
        a("s_barrier")
        if 2*i + 7 < 20: issue_w()
        if i + 4 < 10: issue_x()
        if 2*i + 8 < 20: issue_w()
        if i + 1 < 10: side(i+1)
        if i == 5:
            need(["PHI"])
            lbk = a.label("pk"); lbq = a.label("pq")
            a(f"s_cmp_eq_u32 s{S_ROLE}, 0")
            a(f"s_cbranch_scc0 {lbk}")
            emit_phi_addr(a, 14, 0)
            a(f"s_branch {lbq}")
            a(f"{lbk}:")
            emit_phi_addr(a, 14, 1)
            a(f"{lbq}:")
            emit_phi_frags(a, PF, 14)
        if i == 8:
            a.nop(8)
            a("v_and_b32 v232, 15, v1")
            a("v_lshrrev_b32 v233, 4, v1")
            a("v_lshlrev_b32 v234, 4, v233")
            a(f"s_mul_i32 s60, s{S_WAVE}, 320")
            a(f"v_add_u32 v234, s60, v234")
            a("v_cmp_eq_u32 vcc, 0, v232")
            a("s_and_saveexec_b64 s[68:69], vcc")
            for t in range(5):
                a(f"ds_write_b128 v234, v[{32+4*t}:{32+4*t+3}] offset:{LDS_CS+64*t}")
            a("s_mov_b64 exec, s[68:69]")
            a("v_and_b32 v234, 3, v1")
            a("v_cmp_eq_u32 s[68:69], 1, v234")
            a("v_cmp_eq_u32 s[70:71], 2, v234")
            a("v_cmp_eq_u32 s[72:73], 3, v234")
            a("v_lshrrev_b32 v235, 2, v232")
            a("v_lshlrev_b32 v235, 4, v235")
            a("v_add_u32 v235, v235, v232")
            a("v_lshlrev_b32 v235, 2, v235")
            for mt in range(2):
                qq = 60+4*mt
                a(f"v_cndmask_b32 v{236+mt}, v{qq}, v{qq+1}, s[68:69]")
                a(f"v_cndmask_b32 v{236+mt}, v{236+mt}, v{qq+2}, s[70:71]")
                a(f"v_cndmask_b32 v{236+mt}, v{236+mt}, v{qq+3}, s[72:73]")
            for mt in range(2):
                a(f"ds_bpermute_b32 v{238+mt}, v235, v{236+mt}")
            a("s_mov_b32 s60, 0x3acccccd")
            a("s_waitcnt lgkmcnt(0)")
            for mt in range(2):
                st = 240 + 2*mt
                a(f"v_mul_f32 v{236+mt}, s60, v{52+4*mt}")
                a(f"v_mul_f32 v{238+mt}, s60, v{238+mt}")
                a(f"v_fma_f32 v{238+mt}, -v{236+mt}, v{236+mt}, v{238+mt}")
                a(f"v_max_f32 v{238+mt}, 0, v{238+mt}")
                a(f"v_add_f32 v{238+mt}, 0x3727c5ac, v{238+mt}")
                a(f"v_rsq_f32 v{st}, v{238+mt}")
                a.nop(1)
                a(f"v_mul_f32 v{st+1}, v{236+mt}, v{st}")
                a(f"v_sub_f32 v{st+1}, 0, v{st+1}")
            a("v_lshlrev_b32 v232, 3, v232")
            a(f"s_lshl_b32 s60, s{S_WAVE}, 8")
            a("v_add_u32 v232, s60, v232")
            a("s_mov_b64 exec, 0xffff")
            for mt in range(2):
                a(f"ds_write_b64 v232, v[{240+2*mt}:{241+2*mt}] offset:{LDS_STAT+128*mt}")
            a("s_mov_b64 exec, -1")
            a("s_waitcnt lgkmcnt(0)")
    a("s_barrier")
    emit_epi_loader(a)

def emit_main(a):
    srd(a, SRD_DBG, 22, 256)
    a("v_and_b32 v1, 63, v0")
    a(f"s_mov_b32 s{S_ZERO}, 0")
    lb_not = a.label("noticket")
    a(f"s_cmp_lg_u32 s{S_ROLE}, 0")
    a(f"s_cbranch_scc1 {lb_not}")
    a(f"s_cmp_lg_u32 s{S_WAVE}, 0")
    a(f"s_cbranch_scc1 {lb_not}")
    a(f"s_lshl_b32 s60, s{S_HG}, 2")
    a("v_mov_b32 v14, s60")
    a("v_mov_b32 v15, 1")
    a("s_mov_b64 exec, 1")
    a(f"buffer_atomic_add v15, v14, s[{SRD_DBG}:{SRD_DBG+3}], 0 offen sc0")
    a("s_mov_b64 exec, -1")
    a(f"{lb_not}:")
    a("v_and_b32 v232, 15, v1")
    a("v_lshrrev_b32 v233, 4, v1")
    a("v_and_b32 v234, 7, v232")
    a("v_xor_b32 v234, v234, v233")
    a("v_lshlrev_b32 v234, 4, v234")
    a("v_lshlrev_b32 v235, 7, v232")
    a("v_add_u32 v234, v234, v235")
    a(f"s_lshl_b32 s60, s{S_WAVE}, 12")
    a(f"s_add_u32 s60, s60, {XR_BASE}")
    a(f"v_add_u32 v{V_XR0}, s60, v234")
    a(f"v_xor_b32 v{V_XR1}, 64, v{V_XR0}")
    emit_delta(a)
    a("v_bfe_u32 v234, v1, 2, 2")
    a("v_and_b32 v235, 1, v233")
    a("v_lshlrev_b32 v236, 2, v235")
    a("v_add_u32 v234, v234, v236")
    a("v_lshrrev_b32 v236, 1, v233")
    a("v_lshlrev_b32 v236, 4, v236")
    a("v_add_u32 v234, v234, v236")
    a("v_mul_u32_u24 v234, 192, v234")
    a(f"v_add_u32 v234, {WR_BASE}, v234")
    a("v_lshlrev_b32 v235, 5, v235")
    a("v_and_b32 v236, 3, v1")
    a("v_mul_u32_u24 v236, 40, v236")
    for arr in range(2):
        a(f"v_add_u32 v237, s{66+arr}, v236")
        for t in range(5):
            a(f"v_add_u32 v238, {8*t}, v237")
            a("v_xor_b32 v238, v238, v235")
            a(f"v_add_u32 v{V_WR+5*arr+t}, v238, v234")
    for r in range(V_ACC, V_ACC+80): a(f"v_mov_b32 v{r}, 0")
    a("v_lshlrev_b32 v232, 2, v0")
    a("v_mov_b32 v233, 0")
    a(f"ds_write_b32 v232, v233 offset:{LDS_ZERO}")
    a("s_mov_b32 s57, 0")
    a("s_mov_b32 s54, 0")
    a("s_mov_b32 s55, 0")
    a(f"s_mov_b32 s76, {WR_STG}")
    a(f"s_mov_b32 s77, {(-(WR_N-1)*WR_STG) & 0xffffffff}")
    a(f"s_mov_b32 s78, {XR_STG}")
    a(f"s_mov_b32 s79, {(-(XR_N-1)*XR_STG) & 0xffffffff}")
    a("s_waitcnt lgkmcnt(0)")
    stamp(a, 2)
    a("s_barrier")
    stamp(a, 3)
    for r in frag_reads(V_A0, V_B0, V_XR0): a(r)
    for f in adv_w(): a(f)
    a("s_waitcnt lgkmcnt(0)")
    lp = a.label("main")
    a(f"{lp}:")
    emit_step(a, V_A0, V_B0, frag_reads(V_A1, V_B1, V_XR1), [0, 2], adv_w() + adv_x())
    if "bw" in EXP: a("s_memtime s[64:65]")
    a("s_waitcnt lgkmcnt(0)")
    if "bw" in EXP: a("s_memtime s[66:67]")
    a("s_barrier")
    if "bw" in EXP:
        a("s_memtime s[68:69]")
        a("s_waitcnt lgkmcnt(0)")
        a("s_sub_u32 s70, s66, s64\ns_add_u32 s92, s92, s70")
        a("s_sub_u32 s70, s68, s66\ns_add_u32 s94, s94, s70")
    emit_step(a, V_A1, V_B1, frag_reads(V_A0, V_B0, V_XR0), [1, 3], adv_w())
    lb_nz = a.label("nozero")
    a("s_cmp_lg_u32 s57, 0")
    a(f"s_cbranch_scc1 {lb_nz}")
    a(f"s_cmp_lg_u32 s{S_ROLE}, 0")
    a(f"s_cbranch_scc1 {lb_nz}")
    a(f"s_cmp_lg_u32 s{S_WAVE}, 0")
    a(f"s_cbranch_scc1 {lb_nz}")
    a("s_waitcnt vmcnt(0)")
    a("v_readfirstlane_b32 s60, v15")
    a("s_nop 3")
    a("s_cmp_lg_u32 s60, 0")
    a(f"s_cbranch_scc1 {lb_nz}")
    a(f"s_mov_b32 s{S_ZERO}, 1")
    a("s_mov_b32 s72, s24\ns_mov_b32 s73, s25")
    a(f"s_add_u32 s74, s{S_HG}, 1")
    a(f"s_mul_i32 s74, s74, 13440")
    a("s_mov_b32 s75, 0x00020000")
    a(f"s_mul_i32 s60, s{S_HG}, 13440")
    a("v_lshlrev_b32 v232, 4, v1")
    for i in range(4): a(f"v_mov_b32 v{236+i}, 0")
    for i in range(14):
        a(f"buffer_store_dwordx4 v[236:239], v232, s[72:75], s60 offen sc1")
        a("s_add_u32 s60, s60, 1024")
    a(f"{lb_nz}:")
    lb_f = a.label("noflag")
    a(f"s_cmp_lg_u32 s{S_ZERO}, 1")
    a(f"s_cbranch_scc1 {lb_f}")
    a(f"s_cmp_lg_u32 s57, 2")
    a(f"s_cbranch_scc1 {lb_f}")
    a("s_waitcnt vmcnt(0)")
    a(f"s_lshl_b32 s60, s{S_HG}, 2")
    a("s_add_u32 s60, s60, 32")
    a("v_mov_b32 v14, s60")
    a("v_mov_b32 v15, 1")
    a("s_mov_b64 exec, 1")
    a(f"buffer_store_dword v15, v14, s[{SRD_DBG}:{SRD_DBG+3}], 0 offen sc1")
    a("s_mov_b64 exec, -1")
    a(f"{lb_f}:")
    a("s_waitcnt lgkmcnt(0)")
    a("s_add_u32 s57, s57, 1")
    a("s_cmp_lt_u32 s57, 10")
    a(f"s_cbranch_scc1 {lp}")

def emit_softmax(a, P, E, OUT, T0):
    mx, mn = T0, T0+2
    a(f"v_max3_f32 v{mx}, v{P}, v{P+1}, v{P+2}")
    a(f"v_min3_f32 v{mn}, v{P}, v{P+1}, v{P+2}")
    for i in range(3, 19, 2):
        a(f"v_max3_f32 v{mx}, v{mx}, v{P+i}, v{P+i+1}")
        a(f"v_min3_f32 v{mn}, v{mn}, v{P+i}, v{P+i+1}")
    a(f"v_max_f32 v{mx}, v{mx}, v{P+19}")
    a(f"v_min_f32 v{mn}, v{mn}, v{P+19}")
    a(f"v_mul_f32 v{mx}, s{S_L2E+1}, v{mx}")
    a(f"v_mul_f32 v{mn}, s{S_L2E}, v{mn}")
    for i in range(10):
        a(f"v_pk_fma_f32 v[{E+2*i}:{E+2*i+1}], v[{P+2*i}:{P+2*i+1}], s[70:71], v[{mx}:{mx+1}] op_sel_hi:[1,1,0]")
        a(f"v_pk_fma_f32 v[{P+2*i}:{P+2*i+1}], v[{P+2*i}:{P+2*i+1}], s[70:71], v[{mn}:{mn+1}] op_sel_hi:[1,1,0] neg_lo:[1,0,0] neg_hi:[1,0,0]")
    for i in range(20):
        a(f"v_exp_f32 v{E+i}, v{E+i}")
        a(f"v_exp_f32 v{P+i}, v{P+i}")
    a.nop(1)
    sp, sm = T0, T0+2
    a(f"v_pk_add_f32 v[{sp}:{sp+1}], v[{E}:{E+1}], v[{E+2}:{E+3}]")
    a(f"v_pk_add_f32 v[{sm}:{sm+1}], v[{P}:{P+1}], v[{P+2}:{P+3}]")
    for i in range(2, 10):
        a(f"v_pk_add_f32 v[{sp}:{sp+1}], v[{sp}:{sp+1}], v[{E+2*i}:{E+2*i+1}]")
        a(f"v_pk_add_f32 v[{sm}:{sm+1}], v[{sm}:{sm+1}], v[{P+2*i}:{P+2*i+1}]")
    a(f"v_add_f32 v{sp}, v{sp}, v{sp+1}")
    a(f"v_add_f32 v{sm}, v{sm}, v{sm+1}")
    a(f"v_rcp_f32 v{sp}, v{sp}")
    a(f"v_rcp_f32 v{sm}, v{sm}")
    a.nop(1)
    for i in range(10):
        a(f"v_pk_mul_f32 v[{E+2*i}:{E+2*i+1}], v[{E+2*i}:{E+2*i+1}], v[{sp}:{sp+1}] op_sel_hi:[1,0]")
        a(f"v_pk_mul_f32 v[{P+2*i}:{P+2*i+1}], v[{P+2*i}:{P+2*i+1}], v[{sm}:{sm+1}] op_sel_hi:[1,0]")
    for i in range(10):
        a(f"v_cvt_pk_bf16_f32 v{OUT+i}, v{E+2*i}, v{E+2*i+1}")
        a(f"v_cvt_pk_bf16_f32 v{OUT+10+i}, v{P+2*i}, v{P+2*i+1}")

def mf16k16(d, A, B):
    return f"v_mfma_f32_16x16x16_bf16 v[{d}:{d+3}], v[{A}:{A+1}], v[{B}:{B+1}], v[{d}:{d+3}]"

def emit_phi_frags(a, dst, vaddr):
    for t in range(5):
        b = dst + 10*t
        for kk in range(2):
            for q in range(2):
                a(f"ds_read_b64_tr_b16 v[{b+4*kk+2*q}:{b+4*kk+2*q+1}], v{vaddr} offset:{(8*kk+4*q)*40+8*t}")
        a(f"ds_read_b64_tr_b16 v[{b+8}:{b+9}], v{vaddr} offset:{16*40+8*t}")

def emit_phi_mfma(a, PF, KB, P):
    for t in range(5):
        b = PF + 10*t
        d = P + 4*t
        a(f"v_mfma_f32_16x16x32_bf16 v[{d}:{d+3}], v[{b}:{b+3}], v[{KB}:{KB+3}], 0")
    for t in range(5):
        b = PF + 10*t
        d = P + 4*t
        a(f"v_mfma_f32_16x16x32_bf16 v[{d}:{d+3}], v[{b+4}:{b+7}], v[{KB+4}:{KB+7}], v[{d}:{d+3}]")
    for t in range(5):
        b = PF + 10*t
        d = P + 4*t
        a(mf16k16(d, b+8, KB+8))

def emit_phi_addr(a, dst, hh):
    a("v_lshrrev_b32 v232, 4, v1")
    a("v_and_b32 v233, 3, v1")
    a("v_bfe_u32 v234, v1, 2, 2")
    a("v_mul_u32_u24 v234, 40, v234")
    a("v_mul_u32_u24 v235, 800, v232")
    a(f"v_add_u32 v235, {LDS_WPHI+hh*3200}, v235")
    a("v_cmp_eq_u32 vcc, v232, v233")
    a(f"v_mov_b32 v236, {LDS_ZERO}")
    a.nop(1)
    a("v_cndmask_b32 v235, v236, v235, vcc")
    a(f"v_add_u32 v{dst}, v235, v234")

def emit_consts(a):
    a(f"s_mov_b32 s{S_L2E}, 0x3fb8aa3b")
    a(f"s_mov_b32 s{S_L2E+1}, 0xbfb8aa3b")
    a("s_mov_b32 s70, 0x3fb8aa3b")
    a("s_mov_b32 s71, 0x3fb8aa3b")

PF = 120
CSR = 170
KB = 190
PP = 100
EE = 210

def emit_cs_read(a, arr):
    a("v_lshrrev_b32 v233, 4, v1")
    a("v_lshlrev_b32 v234, 4, v233")
    for t in range(5):
        a(f"ds_read_b128 v[{CSR+4*t}:{CSR+4*t+3}], v234 offset:{LDS_CS+(2*arr)*320+64*t}")
        a(f"ds_read_b128 v[{CSR+20+4*t}:{CSR+20+4*t+3}], v234 offset:{LDS_CS+(2*arr+1)*320+64*t}")
    a("s_waitcnt lgkmcnt(0)")
    for i in range(10):
        a(f"v_pk_add_f32 v[{CSR+2*i}:{CSR+2*i+1}], v[{CSR+2*i}:{CSR+2*i+1}], v[{CSR+20+2*i}:{CSR+20+2*i+1}]")

def emit_stat_read(a, cw_reg):
    a("v_and_b32 v232, 15, v1")
    a("v_lshlrev_b32 v232, 3, v232")
    a(f"s_lshl_b32 s60, s{cw_reg}, 8")
    a("v_add_u32 v232, s60, v232")
    a(f"ds_read_b64 v[230:231], v232 offset:{LDS_STAT}")
    a(f"ds_read_b64 v[240:241], v232 offset:{LDS_STAT+128}")

def emit_ln(a, R, st):
    for i in range(10):
        r = R + 2*i
        a(f"v_pk_mul_f32 v[206:207], v[{CSR+2*i}:{CSR+2*i+1}], v[{st}:{st+1}] op_sel:[0,1] op_sel_hi:[1,1]")
        a(f"v_pk_fma_f32 v[{r}:{r+1}], v[{r}:{r+1}], v[{st}:{st+1}], v[206:207] op_sel_hi:[1,0,1]")

def emit_unit(a, R):
    for t in range(5):
        r = R + 4*t
        a(f"v_cvt_pk_bf16_f32 v{KB+2*t}, v{r}, v{r+1}")
        a(f"v_cvt_pk_bf16_f32 v{KB+2*t+1}, v{r+2}, v{r+3}")
    a.nop(2)
    emit_phi_mfma(a, PF, KB, PP)
    a.nop(8)
    emit_softmax(a, PP, EE, R, 250)

def phi_write_addr(a, cw_reg):
    a("v_and_b32 v232, 15, v1")
    a("v_lshrrev_b32 v233, 4, v1")
    a(f"s_lshl_b32 s60, s{cw_reg}, 5")
    a("v_add_u32 v232, s60, v232")
    a(f"v_mul_u32_u24 v234, {PHI_P}, v232")
    a("v_mul_u32_u24 v235, 80, v233")
    a("v_add_u32 v248, v234, v235")
    a(f"v_mul_u32_u24 v234, {V_P}, v232")
    a("v_mul_u32_u24 v235, 48, v233")
    a("v_add_u32 v249, v234, v235")
    a(f"v_add_u32 v249, {LDS_V}, v249")

def q_store_addr(a, cw_reg, hh):
    a("v_and_b32 v232, 15, v1")
    a("v_lshrrev_b32 v233, 4, v1")
    a("v_mul_u32_u24 v233, 2560, v233")
    a("v_lshlrev_b32 v232, 4, v232")
    a("v_add_u32 v248, v232, v233")
    a(f"s_lshl_b32 s60, s{S_RB}, 2")
    a(f"s_add_u32 s60, s60, s{cw_reg}")
    a("s_lshl_b32 s60, s60, 5")
    a(f"s_lshl_b32 s68, s{S_HG}, 3")
    a("s_add_u32 s60, s60, s68")
    if hh: a("s_add_u32 s60, s60, 4")
    a("s_mul_i32 s60, s60, 2560")
    a(f"s_add_u32 s69, s60, {WS_PHIQ}")

def emit_epi_loader(a):
    emit_consts(a)
    RX = 20
    a("v_lshlrev_b32 v2, 4, v1")
    a(f"s_mul_i32 s60, s{S_WAVE}, 10240")
    a(f"s_add_u32 s60, s60, {LDS_ACCX}")
    a("v_add_u32 v2, s60, v2")
    a(f"s_cmp_eq_u32 s{S_ROLE}, 0")
    a("s_cbranch_scc0 Lp1_ld_q")
    for t in range(5):
        a(f"ds_read_b128 v[{RX+4*t}:{RX+4*t+3}], v2 offset:{t*1024}")
    emit_stat_read(a, S_WAVE)
    emit_cs_read(a, 0)
    emit_ln(a, RX, 240)
    emit_unit(a, RX)
    phi_write_addr(a, S_WAVE)
    for i in range(5):
        a(f"ds_write_b128 v248, v[{RX+4*i}:{RX+4*i+3}] offset:{LDS_PHI+16*PHI_P+16*i}")
    a("s_waitcnt lgkmcnt(0)")
    a("s_barrier")
    a("s_branch Lp1_exit")
    a("Lp1_ld_q:")
    for t in range(10):
        a(f"ds_read_b128 v[{RX+4*t}:{RX+4*t+3}], v2 offset:{t*1024}")
    emit_stat_read(a, S_WAVE)
    emit_cs_read(a, 1)
    q_store_addr(a, S_WAVE, 1)
    for mt in range(2):
        R = RX + 20*mt
        emit_ln(a, R, 230 if mt == 0 else 240)
        emit_unit(a, R)
        for p in range(5):
            a(f"buffer_store_dwordx4 v[{R+4*p}:{R+4*p+3}], v248, s[{SRD_WS}:{SRD_WS+3}], s69 offen offset:{p*512+mt*256}{ST}")
    a("s_branch Lp1_exit")

def emit_epi_common(a):
    a("s_waitcnt vmcnt(0)")
    a.nop(8)
    a("v_and_b32 v232, 15, v1")
    a("v_lshrrev_b32 v233, 4, v1")
    a("v_lshlrev_b32 v234, 4, v233")
    a(f"s_mul_i32 s60, s{S_WAVE}, 320")
    a(f"v_add_u32 v234, s60, v234")
    a("v_lshlrev_b32 v2, 4, v1")
    a(f"s_mul_i32 s60, s{S_WAVE}, 10240")
    a(f"s_add_u32 s60, s60, {LDS_ACCX}")
    a("v_add_u32 v2, s60, v2")
    lbq = a.label("xq"); lbd = a.label("xd")
    a(f"s_cmp_eq_u32 s{S_ROLE}, 0")
    a(f"s_cbranch_scc0 {lbq}")
    for t in range(5):
        a(f"ds_write_b128 v2, v[{acc(1,t)}:{acc(1,t)+3}] offset:{t*1024}")
    a(f"s_branch {lbd}")
    a(f"{lbq}:")
    for mt in range(2):
        for t in range(5):
            a(f"ds_write_b128 v2, v[{acc(mt,5+t)}:{acc(mt,5+t)+3}] offset:{(mt*5+t)*1024}")
    a(f"{lbd}:")
    emit_consts(a)
    emit_phi_addr(a, 14, 0)
    emit_phi_frags(a, PF, 14)
    a("s_waitcnt lgkmcnt(0)")
    a("s_barrier")

def emit_epi_kv(a):
    a(f"s_lshl_b32 s68, s{S_HG}, 2")
    a("s_add_u32 s68, s68, 32")
    a("v_mov_b32 v246, s68")
    a(f"buffer_load_dword v247, v246, s[{SRD_DBG}:{SRD_DBG+3}], 0 offen sc1")
    emit_stat_read(a, S_WAVE)
    phi_write_addr(a, S_WAVE)
    emit_cs_read(a, 1)
    for mt in range(2):
        emit_ln(a, acc(mt, 5), 230 if mt == 0 else 240)
        vb = 210
        for t in range(5):
            r = acc(mt, 5+t)
            a(f"v_cvt_pk_bf16_f32 v{vb+2*t}, v{r}, v{r+1}")
            a(f"v_cvt_pk_bf16_f32 v{vb+2*t+1}, v{r+2}, v{r+3}")
        a(f"v_mov_b32 v{vb+10}, 0x3f80")
        a(f"v_mov_b32 v{vb+11}, 0")
        for i in range(3):
            a(f"ds_write_b128 v249, v[{vb+4*i}:{vb+4*i+3}] offset:{mt*16*V_P+16*i}")
        a.nop(2)
    emit_cs_read(a, 0)
    emit_ln(a, acc(0, 0), 230)
    emit_unit(a, acc(0, 0))
    o = acc(0, 0)
    for i in range(5):
        a(f"ds_write_b128 v248, v[{o+4*i}:{o+4*i+3}] offset:{LDS_PHI+16*i}")
    a("s_waitcnt lgkmcnt(0)")
    a("s_barrier")
    if "bw" not in EXP: stamp(a, 6)
    a("v_lshrrev_b32 v232, 4, v1")
    a("v_lshlrev_b32 v232, 2, v232")
    a("v_bfe_u32 v233, v1, 2, 2")
    a("v_add_u32 v232, v232, v233")
    a("v_and_b32 v233, 3, v1")
    a("v_lshlrev_b32 v233, 3, v233")
    a(f"v_mul_u32_u24 v234, {PHI_P}, v232")
    a("v_add_u32 v234, v234, v233")
    a(f"s_mul_i32 s60, s{S_WAVE}, 80")
    a("v_add_u32 v234, s60, v234")
    a(f"v_mul_u32_u24 v235, {V_P}, v232")
    a("v_add_u32 v235, v235, v233")
    a(f"s_mul_i32 s60, s{S_WAVE}, 48")
    a("v_add_u32 v235, s60, v235")
    a(f"v_add_u32 v235, {LDS_V}, v235")
    KD = 100
    FA, FB = 136, 184
    for s in range(4):
        for ft in range(3):
            for q in range(2):
                a(f"ds_read_b64_tr_b16 v[{FA+12*s+4*ft+2*q}:{FA+12*s+4*ft+2*q+1}], v234 offset:{LDS_PHI+(32*s+16*q)*PHI_P+32*ft}")
        for dt in range(2):
            for q in range(2):
                a(f"ds_read_b64_tr_b16 v[{FB+8*s+4*dt+2*q}:{FB+8*s+4*dt+2*q+1}], v235 offset:{(32*s+16*q)*V_P+32*dt}")
    for s in range(4):
        a(f"s_waitcnt lgkmcnt({min(15, 10*(3-s))})")
        for ft in range(3):
            for dt in range(2):
                d = KD+4*(ft*2+dt)
                if s == 0:
                    a(f"v_mfma_f32_16x16x32_bf16 v[{d}:{d+3}], v[{FA+4*ft}:{FA+4*ft+3}], v[{FB+4*dt}:{FB+4*dt+3}], 0")
                else:
                    a(mf16(d, FA+12*s+4*ft, FB+8*s+4*dt))
    a("v_and_b32 v232, 15, v1")
    a("v_lshrrev_b32 v233, 4, v1")
    a("v_and_b32 v234, 1, v233")
    a("v_lshrrev_b32 v235, 1, v233")
    a("v_lshlrev_b32 v236, 1, v234")
    a("v_add_u32 v236, v236, v235")
    a("v_mul_u32_u24 v236, 336, v236")
    a("v_lshlrev_b32 v237, 4, v232")
    a("v_add_u32 v236, v236, v237")
    a(f"s_mul_i32 s60, s{S_WAVE}, 3360")
    a(f"s_add_u32 s61, s60, {LDS_KVO}")
    a("v_add_u32 v236, s61, v236")
    a("v_mul_u32_u24 v238, 336, v234")
    a("v_add_u32 v238, v238, v237")
    a("v_add_u32 v238, s61, v238")
    a("v_cmp_gt_u32 s[68:69], 5, v232")
    a("v_cmp_eq_u32 s[70:71], 0, v235")
    a("s_and_b64 s[72:73], s[68:69], s[70:71]")
    for ft in range(2):
        a(f"ds_write_b128 v236, v[{KD+4*(ft*2)}:{KD+4*(ft*2)+3}] offset:{ft*4*336}")
    a("s_mov_b64 exec, s[68:69]")
    for ft in range(2):
        a(f"ds_write_b128 v236, v[{KD+4*(ft*2+1)}:{KD+4*(ft*2+1)+3}] offset:{ft*4*336+256}")
    a("s_mov_b64 exec, s[70:71]")
    a(f"ds_write_b128 v238, v[{KD+16}:{KD+19}] offset:{8*336}")
    a("s_mov_b64 exec, s[72:73]")
    a(f"ds_write_b128 v238, v[{KD+20}:{KD+23}] offset:{8*336+256}")
    a("s_mov_b64 exec, -1")
    a("v_lshlrev_b32 v232, 2, v1")
    a("v_add_u32 v233, s61, v232")
    a("s_waitcnt lgkmcnt(0)")
    for i in range(14):
        a(f"ds_read_b32 v{136+i}, v233 offset:{256*i}")
    lp = a.label("poll"); lpd = a.label("polld")
    a(f"{lp}:")
    a("s_waitcnt vmcnt(0)")
    a("v_readfirstlane_b32 s69, v247")
    a("s_nop 3")
    a("s_cmp_lg_u32 s69, 0")
    a(f"s_cbranch_scc1 {lpd}")
    a(f"buffer_load_dword v247, v246, s[{SRD_DBG}:{SRD_DBG+3}], 0 offen sc1")
    a(f"s_branch {lp}")
    a(f"{lpd}:")
    if "bw" not in EXP: stamp(a, 7)
    a(f"s_mul_i32 s68, s{S_HG}, 13440")
    a("s_add_u32 s68, s68, s60")
    a("s_waitcnt lgkmcnt(0)")
    for i in range(13):
        a(f"buffer_atomic_add_f32 v{136+i}, v232, s[{SRD_WS}:{SRD_WS+3}], s68 offen offset:{256*i}")
    a("s_mov_b64 exec, 0xff")
    a(f"buffer_atomic_add_f32 v{136+13}, v232, s[{SRD_WS}:{SRD_WS+3}], s68 offen offset:{256*13}")
    a("s_mov_b64 exec, -1")
    a("s_branch Lp1_end")

def emit_epi_q(a):
    emit_stat_read(a, S_WAVE)
    emit_cs_read(a, 0)
    q_store_addr(a, S_WAVE, 0)
    for mt in range(2):
        R = acc(mt, 0)
        emit_ln(a, R, 230 if mt == 0 else 240)
        emit_unit(a, R)
        for p in range(5):
            a(f"buffer_store_dwordx4 v[{R+4*p}:{R+4*p+3}], v248, s[{SRD_WS}:{SRD_WS+3}], s69 offen offset:{p*512+mt*256}{ST}")
    a("s_branch Lp1_end")

def emit_p1(a):
    kernel_begin(a, "p1_kernel")
    a("s_cmp_ge_u32 s2, 256")
    a("s_cbranch_scc1 Lp1_exit")
    stamp_init(a)
    if "cp0" in EXP: code_prefetch(a, "p1_kernel", "Lcode_end", 0, 254, 255)
    a("s_load_dwordx8 s[4:11], s[0:1], 0")
    a("s_load_dwordx8 s[12:19], s[0:1], 32")
    a("s_load_dwordx4 s[20:23], s[0:1], 64")
    a("s_load_dwordx2 s[24:25], s[0:1], 80")
    a("v_lshrrev_b32 v1, 6, v0")
    a(f"s_and_b32 s{S_XCD}, s2, 7")
    a(f"s_lshr_b32 s{S_SLOT}, s2, 3")
    a(f"v_readfirstlane_b32 s{S_WAVE}, v1")
    a("s_waitcnt lgkmcnt(0)")
    stamp(a, 1)
    srd(a, SRD_WS, 24, WS_END)
    a(f"s_cmp_ge_u32 s{S_SLOT}, 24")
    a("s_cbranch_scc1 Lp1_pack")
    a(f"s_lshr_b32 s60, s{S_XCD}, 1")
    a(f"s_and_b32 s66, s{S_XCD}, 1")
    a(f"s_cmp_ge_u32 s{S_SLOT}, 16")
    a("s_cbranch_scc1 Lp1_q")
    a(f"s_mov_b32 s{S_ROLE}, 0")
    a(f"s_lshl_b32 s{S_RB}, s60, 2")
    a(f"s_lshr_b32 s67, s{S_SLOT}, 2")
    a(f"s_add_u32 s{S_RB}, s{S_RB}, s67")
    a(f"s_lshl_b32 s{S_HG}, s66, 2")
    a(f"s_and_b32 s67, s{S_SLOT}, 3")
    a(f"s_add_u32 s{S_HG}, s{S_HG}, s67")
    a("s_branch Lp1_main")
    a("Lp1_q:")
    a(f"s_mov_b32 s{S_ROLE}, 1")
    a(f"s_sub_u32 s67, s{S_SLOT}, 16")
    a(f"s_lshl_b32 s{S_RB}, s60, 2")
    a(f"s_lshr_b32 s68, s67, 1")
    a(f"s_add_u32 s{S_RB}, s{S_RB}, s68")
    a(f"s_lshl_b32 s{S_HG}, s66, 1")
    a(f"s_and_b32 s68, s67, 1")
    a(f"s_add_u32 s{S_HG}, s{S_HG}, s68")
    a("Lp1_main:")
    a(f"s_cmp_ge_u32 s{S_WAVE}, 4")
    a("s_cbranch_scc0 Lp1_cons")
    a(f"s_sub_u32 s{S_WAVE}, s{S_WAVE}, 4")
    emit_loader(a)
    a("Lp1_cons:")
    if os.environ.get("PRIO"): a("s_setprio " + os.environ["PRIO"])
    emit_main(a)
    stamp(a, 4)
    emit_epi_common(a)
    stamp(a, 5)
    a(f"s_cmp_eq_u32 s{S_ROLE}, 0")
    a("s_cbranch_scc0 Lp1_epi_q")
    emit_epi_kv(a)
    a("Lp1_epi_q:")
    emit_epi_q(a)
    a("Lp1_pack:")
    emit_pack(a)
    a("Lp1_end:")
    stamp_store(a, 0)
    a("Lp1_exit:")
    a("s_endpgm")
```

```python
from common import *
PF2 = __import__('os').environ.get('PF2', '1') == '1'
PFH = int(__import__('os').environ.get('PFH', '5'))
import os
CP1 = 'cp1' in os.environ.get('EXP', '')
CP = 'nocp' not in os.environ.get('EXP', '') and not CP1
import os
ST2 = os.environ.get('ST2', 'sc0 sc1')
ST2 = (' ' + ST2) if ST2 else ''

S_WAVE, S_XCD, S_SLOT, S_TB, S_NB = 26, 27, 28, 29, 30
SRD_WS, SRD_X = 32, 36
KVL_W = 27648
LDS_XT = 110592
LDS_ST = 120832
LDS_RED = 0

def mf32(d, A, B, c):
    return f"v_mfma_f32_32x32x16_bf16 {d}, {A}, {B}, {c}"

def emit_p2(a):
    kernel_begin(a, "p2_kernel")
    a("s_cmp_ge_u32 s2, 256")
    a("s_cbranch_scc1 Lp2_exit")
    stamp_init(a)
    if CP1: code_prefetch(a, "p2_kernel", "Lp2_exit", 0, 254, 255)
    a("s_load_dwordx2 s[4:5], s[0:1], 0")
    a("s_load_dwordx2 s[24:25], s[0:1], 80")
    a("v_lshrrev_b32 v1, 6, v0")
    a(f"s_and_b32 s{S_XCD}, s2, 7")
    a(f"s_lshr_b32 s{S_SLOT}, s2, 3")
    a(f"v_readfirstlane_b32 s{S_WAVE}, v1")
    a(f"s_lshl_b32 s{S_TB}, s{S_XCD}, 3")
    a(f"s_lshr_b32 s31, s{S_SLOT}, 2")
    a(f"s_add_u32 s{S_TB}, s{S_TB}, s31")
    a(f"s_and_b32 s{S_NB}, s{S_SLOT}, 3")
    a("v_and_b32 v1, 63, v0")
    a("v_lshlrev_b32 v2, 4, v1")
    if CP: code_prefetch(a, "p2_kernel", "Lp2_exit", 1, 3, 255)
    a("s_waitcnt lgkmcnt(0)")
    stamp(a, 1)
    srd(a, SRD_WS, 24, WS_END)
    srd(a, SRD_X, 4, S*D*2)
    a(f"s_mul_i32 s40, s{S_WAVE}, 26880")
    if WS_KV: a(f"s_add_u32 s40, s40, {WS_KV}")
    a(f"s_mul_i32 s41, s{S_WAVE}, {KVL_W}")
    a(f"s_lshl_b32 s42, s{S_TB}, 5")
    a(f"s_lshl_b32 s43, s{S_WAVE}, 3")
    a("s_add_u32 s42, s42, s43")
    a("s_mul_i32 s42, s42, 2560")
    a(f"s_add_u32 s42, s42, {WS_PHIQ}")
    a("v_and_b32 v3, 31, v1")
    a("v_lshlrev_b32 v11, 4, v3")
    QQ = []
    done = [-1]
    def need(name):
        last = max(i for i, n in enumerate(QQ) if n == name)
        if last <= done[0]: return
        done[0] = last
        a(f"s_waitcnt vmcnt({min(63, len(QQ)-1-last)})")
    kvi = [0]
    def issue_head(h):
        last = -(-((h+1)*3360) // 1024)
        while kvi[0] < last:
            i = kvi[0]
            a(f"s_add_u32 m0, s41, {(i//4)*4096}")
            a("s_nop 0")
            a(f"buffer_load_dwordx4 v2, s[{SRD_WS}:{SRD_WS+3}], s40 offen offset:{(i%4)*1024} lds")
            if i % 4 == 3: a("s_add_u32 s40, s40, 4096")
            kvi[0] += 1; QQ.append(f"H{h}")
        a(f"buffer_load_dwordx4 a[{12*h}:{12*h+3}], v2, s[{SRD_WS}:{SRD_WS+3}], s42 offen")
        a(f"buffer_load_dwordx4 a[{12*h+4}:{12*h+7}], v2, s[{SRD_WS}:{SRD_WS+3}], s42 offen offset:1024")
        a(f"buffer_load_dwordx4 a[{12*h+8}:{12*h+11}], v11, s[{SRD_WS}:{SRD_WS+3}], s42 offen offset:2048")
        a("s_add_u32 s42, s42, 2560")
        QQ.extend([f"H{h}"]*3)
    for h in range(3): issue_head(h)
    def wreg(j): return f"a[{96+4*j}:{96+4*j+3}]" if j < 40 else f"v[{200+4*(j-40)}:{200+4*(j-40)+3}]"
    a(f"s_lshl_b32 s46, s{S_NB}, 3")
    a(f"s_lshl_b32 s47, s{S_WAVE}, 1")
    a("s_add_u32 s46, s46, s47")
    a(f"s_mul_i32 s46, s46, {25*1024}")
    a(f"s_add_u32 s46, s46, {WS_WOP}")
    wo_issued = [0]
    def issue_wo(n):
        for _ in range(n):
            j = wo_issued[0]
            if j >= 50: return
            a(f"buffer_load_dwordx4 {wreg(j)}, v2, s[{SRD_WS}:{SRD_WS+3}], s46 offen offset:{(j%4)*1024}")
            if j % 4 == 3: a("s_add_u32 s46, s46, 4096")
            wo_issued[0] += 1; QQ.append(f"W{j}")
    a("v_lshrrev_b32 v4, 5, v1")
    a("v_min_u32 v5, 20, v3")
    a("v_subrev_u32 v6, 4, v3")
    a("v_min_u32 v6, 20, v6")
    a("v_cmp_gt_u32 vcc, 16, v3")
    a.nop(1)
    a("v_cndmask_b32 v6, v6, v3, vcc")
    a("v_mul_u32_u24 v7, 336, v4")
    a(f"v_add_u32 v7, s41, v7")
    a("v_lshlrev_b32 v5, 4, v5")
    a("v_lshlrev_b32 v6, 4, v6")
    a("v_add_u32 v5, v5, v7")
    a("v_add_u32 v6, v6, v7")
    a("v_cmp_gt_u32 s[48:49], 32, v1")
    for jj in range(3):
        lb = a.label("xt")
        if jj == 2:
            a(f"s_cmp_ge_u32 s{S_WAVE}, 2")
            a(f"s_cbranch_scc1 {lb}")
        a(f"s_lshl_b32 s50, s{S_WAVE}, 6")
        a(f"s_add_u32 s50, s50, {256*jj}")
        a("v_add_u32 v8, s50, v1")
        a("v_mul_u32_u24 v9, 3277, v8")
        a("v_lshrrev_b32 v9, 16, v9")
        a("v_mul_u32_u24 v10, 20, v9")
        a("v_sub_u32 v10, v8, v10")
        a("v_mul_u32_u24 v9, 1280, v9")
        a("v_lshlrev_b32 v10, 4, v10")
        a("v_add_u32 v9, v9, v10")
        a(f"s_mul_i32 s51, s{S_TB}, {32*1280}")
        a(f"s_mul_i32 s52, s{S_NB}, 320")
        a("s_add_u32 s51, s51, s52")
        a("s_lshl_b32 s50, s50, 4")
        a(f"s_add_u32 m0, s50, {LDS_XT}")
        a("s_nop 0")
        a(f"buffer_load_dwordx4 v9, s[{SRD_X}:{SRD_X+3}], s51 offen lds")
        a(f"{lb}:")
    QQ.extend(["X", "X"])
    ACC = 16
    DD = 96
    KF = 112
    AF = 136
    OF = 148
    RF = 180
    for r in range(ACC, ACC+80): a(f"v_mov_b32 v{r}, 0")
    stamp(a, 2)
    for h in range(8):
        va = 5 if h % 2 == 0 else 6
        if h + 3 < 8: issue_head(h+3)
        issue_wo(4 if h + 3 < 8 else 10)
        if h == PFH and PF2:
            a(f"s_and_b32 s52, s{S_XCD}, 3")
            a(f"s_mul_i32 s52, s52, {27*41984}")
            a(f"s_add_u32 s52, s52, {WS_WGU}")
            a(f"s_mul_i32 s53, s{S_SLOT}, 288")
            for j in range(2):
                a(f"s_add_u32 s54, s53, {256*j}")
                a("v_add_u32 v12, s54, v0")
                a(f"v_min_u32 v12, {28*41984//128 - 1}, v12")
                a("v_lshlrev_b32 v12, 7, v12")
                if j == 1: a("s_mov_b64 exec, 0xffff")
                a(f"buffer_load_dword v{250+j}, v12, s[{SRD_WS}:{SRD_WS+3}], s52 offen")
                if j == 1: a("s_mov_b64 exec, -1")
                QQ.append("PF")
        need(f"H{h}")
        if h == 0: stamp(a, 3)
        for s in range(3):
            for q in range(2):
                blk = (4*s + 2*q) if s < 2 else (8 + q)
                r = KF + 8*s + 4*q
                a(f"ds_read_b128 v[{r}:{r+3}], v{va} offset:{h*3360 + blk*336}")
        a("s_waitcnt lgkmcnt(0)")
        for s in range(3):
            for i in range(4):
                a(f"v_cvt_pk_bf16_f32 v{AF+4*s+i}, v{KF+8*s+2*i}, v{KF+8*s+2*i+1}")
        for i in range(4):
            a(f"v_cndmask_b32 v{AF+8+i}, 0, v{AF+8+i}, s[48:49]")
        a.nop(2)
        a(mf32(f"v[{DD}:{DD+15}]", f"v[{AF}:{AF+3}]", f"a[{12*h}:{12*h+3}]", "0"))
        a(mf32(f"v[{DD}:{DD+15}]", f"v[{AF+4}:{AF+7}]", f"a[{12*h+4}:{12*h+7}]", f"v[{DD}:{DD+15}]"))
        a(mf32(f"v[{DD}:{DD+15}]", f"v[{AF+8}:{AF+11}]", f"a[{12*h+8}:{12*h+11}]", f"v[{DD}:{DD+15}]"))
        a.nop(13)
        a(f"v_add_f32 v188, 0x358637bd, v{DD+12}")
        a("v_rcp_f32 v188, v188")
        a.nop(1)
        for i in range(6):
            a(f"v_pk_mul_f32 v[{DD+2*i}:{DD+2*i+1}], v[{DD+2*i}:{DD+2*i+1}], v[188:189] op_sel_hi:[1,0]")
        for i in range(4):
            a(f"v_cvt_pk_bf16_f32 v{OF+4*h+i}, v{DD+2*i}, v{DD+2*i+1}")
        Q, m = divmod(h, 4)
        rr = RF + 4*Q + 2*(m >> 1)
        a("s_mov_b64 exec, s[48:49]" if m % 2 == 0 else "s_not_b64 exec, s[48:49]")
        a(f"v_cvt_pk_bf16_f32 v{rr}, v{DD+8}, v{DD+9}")
        a(f"v_cvt_pk_bf16_f32 v{rr+1}, v{DD+10}, v{DD+11}")
        a("s_mov_b64 exec, -1")
    assert wo_issued[0] == 50
    stamp(a, 4)
    for j in range(50):
        Q, rem = divmod(j, 25)
        m, nt = divmod(rem, 5)
        if j % 5 == 0:
            need(f"W{j+4}")
        B = f"v[{OF+4*(4*Q+m)}:{OF+4*(4*Q+m)+3}]" if m < 4 else f"v[{RF+4*Q}:{RF+4*Q+3}]"
        d = ACC + 16*nt
        a(mf32(f"v[{d}:{d+15}]", wreg(j), B, f"v[{d}:{d+15}]"))
    a("s_waitcnt vmcnt(0)")
    stamp(a, 5)
    a("s_barrier")
    a.nop(12)
    for j in range(1, 4):
        a(f"s_add_u32 s50, s{S_WAVE}, {j}")
        a("s_and_b32 s50, s50, 3")
        a(f"s_mul_i32 s50, s50, {15*1024}")
        a(f"s_add_u32 s50, s50, {(j-1)*5*1024}")
        a(f"v_add_u32 v{8+j}, s50, v2")
        for nt in range(5):
            r = ACC + 16*nt + 4*j
            a(f"ds_write_b128 v{8+j}, v[{r}:{r+3}] offset:{nt*1024}")
    a(f"s_mul_i32 s50, s{S_WAVE}, {15*1024}")
    a("v_add_u32 v8, s50, v2")
    a("s_waitcnt lgkmcnt(0)")
    a("s_barrier")
    RD = 96
    for i in range(15):
        a(f"ds_read_b128 v[{RD+4*i}:{RD+4*i+3}], v8 offset:{i*1024}")
    OWN = 160
    for j in range(3):
        a(f"s_waitcnt lgkmcnt({min(15, 10-5*j)})")
        for nt in range(5):
            for p in range(2):
                src = (ACC + 16*nt + 2*p) if j == 0 else (OWN + 4*nt + 2*p)
                r = RD + 4*(5*j+nt) + 2*p
                a(f"v_pk_add_f32 v[{OWN+4*nt+2*p}:{OWN+4*nt+2*p+1}], v[{src}:{src+1}], v[{r}:{r+1}]")
    stamp(a, 6)
    a("v_mul_u32_u24 v8, 320, v3")
    a("v_lshlrev_b32 v9, 3, v4")
    a("v_add_u32 v8, v8, v9")
    a(f"s_lshl_b32 s50, s{S_WAVE}, 4")
    a(f"s_add_u32 s50, s50, {LDS_XT}")
    a("v_add_u32 v8, s50, v8")
    for nt in range(5):
        a(f"ds_read_b64 v[{ACC+2*nt}:{ACC+2*nt+1}], v8 offset:{64*nt}")
    a("s_waitcnt lgkmcnt(0)")
    HB = 40
    for nt in range(5):
        for p in range(2):
            x = ACC + 2*nt + p
            a(f"v_lshlrev_b32 v60, 16, v{x}")
            a(f"v_and_b32 v61, 0xffff0000, v{x}")
            a(f"v_pk_add_f32 v[60:61], v[60:61], v[{OWN+4*nt+2*p}:{OWN+4*nt+2*p+1}]")
            a(f"v_cvt_pk_bf16_f32 v{HB+2*nt+p}, v60, v61")
    a("v_lshlrev_b32 v8, 4, v3")
    a("v_lshlrev_b32 v9, 3, v4")
    a("v_add_u32 v8, v8, v9")
    a(f"s_mul_i32 s50, s{S_TB}, 40")
    a(f"s_mul_i32 s51, s{S_NB}, 10")
    a("s_add_u32 s50, s50, s51")
    a(f"s_lshr_b32 s51, s{S_WAVE}, 1")
    a("s_add_u32 s50, s50, s51")
    a("s_lshl_b32 s50, s50, 10")
    a(f"s_and_b32 s51, s{S_WAVE}, 1")
    a("s_lshl_b32 s51, s51, 9")
    a("s_add_u32 s50, s50, s51")
    a(f"s_add_u32 s50, s50, {WS_H}")
    for nt in range(5):
        a(f"buffer_store_dwordx2 v[{HB+2*nt}:{HB+2*nt+1}], v8, s[{SRD_WS}:{SRD_WS+3}], s50 offen{ST2}")
        a("s_add_u32 s50, s50, 2048")
    a("v_mov_b32 v62, 0\nv_mov_b32 v63, 0\nv_mov_b32 v64, 0\nv_mov_b32 v65, 0")
    for i in range(10):
        a(f"v_lshlrev_b32 v60, 16, v{HB+i}")
        a(f"v_and_b32 v61, 0xffff0000, v{HB+i}")
        a("v_pk_add_f32 v[62:63], v[62:63], v[60:61]")
        a("v_pk_fma_f32 v[64:65], v[60:61], v[60:61], v[64:65]")
    a("v_add_f32 v66, v62, v63")
    a("v_add_f32 v67, v64, v65")
    a(f"s_lshl_b32 s50, s{S_WAVE}, 9")
    a(f"s_add_u32 s50, s50, {LDS_ST}")
    a("v_lshlrev_b32 v8, 3, v1")
    a("v_add_u32 v8, s50, v8")
    a("ds_write_b64 v8, v[66:67]")
    a("s_waitcnt lgkmcnt(0)")
    a("s_barrier")
    a(f"s_cmp_lg_u32 s{S_WAVE}, 0")
    a("s_cbranch_scc1 Lp2_end")
    a("s_mov_b64 exec, s[48:49]")
    a("v_lshlrev_b32 v8, 3, v3")
    a(f"v_add_u32 v8, {LDS_ST}, v8")
    for i in range(8):
        a(f"ds_read_b64 v[{70+2*i}:{71+2*i}], v8 offset:{256*i}")
    a("s_waitcnt lgkmcnt(0)")
    for i in range(1, 8):
        a(f"v_pk_add_f32 v[70:71], v[70:71], v[{70+2*i}:{71+2*i}]")
    a("v_lshlrev_b32 v8, 5, v3")
    a(f"s_lshl_b32 s50, s{S_TB}, 10")
    a(f"s_lshl_b32 s51, s{S_NB}, 3")
    a("s_add_u32 s50, s50, s51")
    a(f"s_add_u32 s50, s50, {WS_STAT}")
    a(f"buffer_store_dwordx2 v[70:71], v8, s[{SRD_WS}:{SRD_WS+3}], s50 offen")
    a("s_mov_b64 exec, -1")
    a("Lp2_end:")
    stamp_store(a, 1)
    a("Lp2_exit:")
    a("s_endpgm")
```

```python
from common import *
import os
CP1 = 'cp1' in os.environ.get('EXP', '')
CP = 'nocp' not in os.environ.get('EXP', '') and not CP1
import os
ST3 = os.environ.get('ST3', 'sc0 sc1')
ST3 = (' ' + ST3) if ST3 else ''

S_WAVE, S_XCD, S_SLOT, S_RB, S_T0 = 26, 27, 28, 29, 30
SRD_WS = 32
NST = 7
STG = 22528
NSTAGE = 21

def mf32(d, A, B, c=None):
    c = c or d
    return f"v_mfma_f32_32x32x16_bf16 {d}, {A}, {B}, {c}"

def emit_epi(a, ACC, tiles, t_first):
    T = 128
    a("v_and_b32 v3, 31, v1")
    a("v_lshrrev_b32 v6, 4, v3")
    a(f"v_mul_u32_u24 v6, {54*1024}, v6")
    a("v_and_b32 v7, 15, v3")
    a("v_lshrrev_b32 v8, 5, v1")
    a("v_lshlrev_b32 v8, 4, v8")
    a("v_add_u32 v7, v7, v8")
    a("v_lshlrev_b32 v7, 4, v7")
    a("v_add_u32 v6, v6, v7")
    a(f"s_lshl_b32 s40, s{S_RB}, 3")
    a(f"s_lshl_b32 s41, s{S_WAVE}, 1")
    a("s_add_u32 s40, s40, s41")
    a(f"s_mul_i32 s40, s40, {54*1024}")
    a(f"s_add_u32 s40, s40, {WS_ACT + 512*t_first}")
    a(f"s_lshl_b32 s41, s{S_T0}, 9")
    a("s_add_u32 s40, s40, s41")
    import math, struct
    c1 = -2*math.sqrt(2/math.pi)*math.log2(math.e)
    c2 = c1*0.044715
    f2u = lambda f: struct.unpack("<I", struct.pack("<f", f))[0]
    a(f"s_mov_b32 s50, 0x{f2u(c1):08x}\ns_mov_b32 s51, 0x{f2u(c1):08x}")
    a(f"s_mov_b32 s52, 0x{f2u(c2):08x}\ns_mov_b32 s53, 0x{f2u(c2):08x}")
    a("v_mov_b32 v210, s50\nv_mov_b32 v211, s51")
    a.nop(4)
    for t in tiles:
        d = ACC + 16*t
        for i in range(8):
            a(f"v_pk_mul_f32 v[{d+2*i}:{d+2*i+1}], v[{d+2*i}:{d+2*i+1}], v[208:209] op_sel_hi:[1,0]")
        for i in range(4):
            g = d + 2*i
            a(f"v_pk_mul_f32 v[{T+2*i}:{T+2*i+1}], v[{g}:{g+1}], v[{g}:{g+1}]")
            a(f"v_pk_fma_f32 v[{T+2*i}:{T+2*i+1}], v[{T+2*i}:{T+2*i+1}], s[52:53], v[210:211]")
            a(f"v_pk_mul_f32 v[{T+2*i}:{T+2*i+1}], v[{T+2*i}:{T+2*i+1}], v[{g}:{g+1}]")
        for i in range(8):
            a(f"v_exp_f32 v{T+i}, v{T+i}")
        for i in range(4):
            g = d + 2*i
            a(f"v_pk_mul_f32 v[{g}:{g+1}], v[{g}:{g+1}], v[{g+8}:{g+9}]")
        for i in range(4):
            a(f"v_pk_add_f32 v[{T+2*i}:{T+2*i+1}], v[{T+2*i}:{T+2*i+1}], 1.0 op_sel_hi:[1,0]")
        for i in range(8):
            a(f"v_rcp_f32 v{T+i}, v{T+i}")
        a.nop(1)
        for i in range(4):
            g = d + 2*i
            a(f"v_pk_mul_f32 v[{g}:{g+1}], v[{g}:{g+1}], v[{T+2*i}:{T+2*i+1}]")
        for i in range(4):
            a(f"v_cvt_pk_bf16_f32 v{T+8+i}, v{d+2*i}, v{d+2*i+1}")
        a(f"buffer_store_dwordx4 v[{T+8}:{T+11}], v6, s[{SRD_WS}:{SRD_WS+3}], s40 offen{ST3}")
        a("s_add_u32 s40, s40, 512")
        a.nop(2)

def emit_loader(a, part):
    nW = 4 if part == 0 else 3
    t0 = 0 if part == 0 else 4
    n = nW + 2
    a("v_and_b32 v1, 63, v0")
    a("v_lshlrev_b32 v2, 4, v1")
    for j in range(nW):
        a(f"v_add_u32 v{4+j}, {(t0+j)*41*1024 - j*1024}, v2")
    a(f"s_and_b32 s40, s{S_WAVE}, 1")
    a(f"s_mul_i32 s41, s{S_T0}, {41*1024}")
    a("s_lshl_b32 s42, s40, 10")
    a("s_add_u32 s41, s41, s42")
    a(f"s_add_u32 s41, s41, {WS_WGU}")
    for i in range(2):
        a(f"v_add_u32 v{10+i}, {i*40*1024 - i*1024}, v2")
    a(f"s_lshl_b32 s43, s{S_RB}, 2")
    a(f"s_lshr_b32 s44, s{S_WAVE}, 1")
    a("s_lshl_b32 s45, s44, 1")
    a("s_add_u32 s43, s43, s45")
    a(f"s_mul_i32 s43, s43, {40*1024}")
    a("s_add_u32 s43, s43, s42")
    a(f"s_add_u32 s43, s43, {WS_H}")
    a(f"s_mul_i32 s46, s40, {7*1024}")
    a(f"s_add_u32 s46, s46, {t0*1024}")
    a("s_lshl_b32 s47, s40, 12")
    a("s_lshl_b32 s45, s45, 10")
    a("s_add_u32 s47, s47, s45")
    a("s_add_u32 s47, s47, 14336")
    a("s_mov_b32 s48, 0")
    ROT = os.environ.get("ROT3", "0") == "1"
    if ROT:
        a(f"s_mul_i32 s57, s{S_SLOT}, 20")
        a("s_lshr_b32 s57, s57, 5")
        a("s_sub_u32 s56, 20, s57")
        a("s_mov_b32 s58, s41")
        a("s_lshl_b32 s57, s57, 11")
        a("s_add_u32 s41, s41, s57")
        a("s_add_u32 s43, s43, s57")
    def loads(with_h=True):
        if with_h:
            a("s_add_u32 m0, s48, s47")
            a("s_nop 0")
            for i in range(2):
                a(f"buffer_load_dwordx4 v{10+i}, s[{SRD_WS}:{SRD_WS+3}], s43 offen offset:{i*1024} lds")
        a("s_add_u32 m0, s48, s46")
        a("s_nop 0")
        for j in range(nW):
            a(f"buffer_load_dwordx4 v{4+j}, s[{SRD_WS}:{SRD_WS+3}], s41 offen offset:{j*1024} lds")
        a("s_add_u32 s41, s41, 2048")
        a("s_add_u32 s43, s43, 2048")
        if ROT and with_h:
            a("s_sub_u32 s56, s56, 1")
            a("s_cmp_eq_u32 s56, 0")
            a("s_cselect_b32 s57, 40960, 0")
            a("s_sub_u32 s41, s41, s57")
            a("s_sub_u32 s43, s43, s57")
        a(f"s_add_u32 s48, s48, {STG}")
        a(f"s_cmp_ge_u32 s48, {NST*STG}")
        a("s_cselect_b32 s48, 0, s48")
    RAMP = os.environ.get("RAMP", "1") == "1"
    hi = -1
    def issue_upto(k):
        nonlocal hi
        while hi < k:
            loads(); hi += 1
    if RAMP:
        issue_upto(int(os.environ.get('R34', '2')))
        a(f"s_waitcnt vmcnt({hi*n})")
        a("s_barrier")
        issue_upto(hi + 2)
        i = 0
        while True:
            a(f"s_waitcnt vmcnt({(hi-(i+1))*n})")
            a("s_barrier")
            issue_upto(min(hi+2, i+NST))
            i += 1
            if hi == (i-1) + NST: break
        start = i
    else:
        issue_upto(NST-1)
        a(f"s_waitcnt vmcnt({(NST-1)*n})")
        a("s_barrier")
        start = 0
    lp = a.label("p3ld")
    a(f"s_mov_b32 s49, {start}")
    a(f"{lp}:")
    a(f"s_waitcnt vmcnt({5*n})")
    a("s_barrier")
    loads()
    a("s_add_u32 s49, s49, 1")
    a("s_cmp_lt_u32 s49, 13")
    a(f"s_cbranch_scc1 {lp}")
    a(f"s_waitcnt vmcnt({5*n})")
    a("s_barrier")
    lb = a.label("p3x")
    a(f"s_cmp_lg_u32 s40, 0")
    a(f"s_cbranch_scc1 {lb}")
    if ROT: a("s_add_u32 s41, s58, 40960")
    loads(with_h=False)
    a(f"{lb}:")
    if os.environ.get("PF3", "1") == "1":
        a(f"s_and_b32 s52, s{S_XCD}, 1")
        a(f"s_mul_i32 s52, s52, {4*270*1024}")
        a(f"s_add_u32 s52, s52, {WS_WD}")
        a(f"s_mul_i32 s53, s{S_SLOT}, 270")
        a(f"s_lshl_b32 s54, s{S_WAVE}, 6")
        a("s_add_u32 s53, s53, s54")
        for j in range(2):
            a(f"s_add_u32 s54, s53, {256*j}")
            a("v_add_u32 v12, s54, v1")
            a(f"v_min_u32 v12, {4*270*1024//128 - 1}, v12")
            a("v_lshlrev_b32 v12, 7, v12")
            if j == 1: a("s_mov_b64 exec, 0xf")
            a(f"buffer_load_dword v{250+j}, v12, s[{SRD_WS}:{SRD_WS+3}], s52 offen")
            if j == 1: a("s_mov_b64 exec, -1")
    for i in range(14, 19):
        a(f"s_waitcnt vmcnt({(18-i)*n})") if i < 18 else a("s_waitcnt vmcnt(0)")
        a("s_barrier")
    a("s_barrier")
    a("s_barrier")
    if os.environ.get("P3SPLIT", "0") == "1":
        a(f"s_mul_i32 s41, s{S_WAVE}, 13312")
        a("v_add_u32 v6, s41, v2")
        a("v_lshlrev_b32 v7, 2, v1")
        a("v_add_u32 v7, s41, v7")
        a("s_barrier")
        for i in range(12):
            a(f"ds_read_b128 v[{16+4*i}:{19+4*i}], v6 offset:{i*1024}")
        a("ds_read_b32 v208, v7 offset:12288")
        a("s_waitcnt lgkmcnt(0)")
        emit_epi(a, 16, range(3), 4)
    a("s_branch Lp3_exit")

def emit_p3(a):
    kernel_begin(a, "p3_kernel")
    a("s_cmp_ge_u32 s2, 256")
    a("s_cbranch_scc1 Lp3_exit")
    stamp_init(a)
    if CP1: code_prefetch(a, "p3_kernel", "Lp3_exit", 0, 254, 255)
    a("s_load_dwordx2 s[24:25], s[0:1], 80")
    a("v_lshrrev_b32 v1, 6, v0")
    a(f"s_and_b32 s{S_XCD}, s2, 7")
    a(f"s_lshr_b32 s{S_SLOT}, s2, 3")
    a(f"v_readfirstlane_b32 s{S_WAVE}, v1")
    a(f"s_lshr_b32 s{S_RB}, s{S_XCD}, 2")
    a(f"s_lshl_b32 s{S_RB}, s{S_RB}, 3")
    a(f"s_lshr_b32 s31, s{S_SLOT}, 2")
    a(f"s_add_u32 s{S_RB}, s{S_RB}, s31")
    a(f"s_and_b32 s{S_T0}, s{S_XCD}, 3")
    a(f"s_lshl_b32 s{S_T0}, s{S_T0}, 2")
    a(f"s_and_b32 s31, s{S_SLOT}, 3")
    a(f"s_add_u32 s{S_T0}, s{S_T0}, s31")
    a(f"s_mul_i32 s{S_T0}, s{S_T0}, 27")
    a(f"s_lshr_b32 s{S_T0}, s{S_T0}, 2")
    a("s_waitcnt lgkmcnt(0)")
    stamp(a, 1)
    srd(a, SRD_WS, 24, WS_END)
    a(f"s_cmp_lt_u32 s{S_WAVE}, 4")
    a("s_cbranch_scc1 Lp3_cons")
    a(f"s_sub_u32 s{S_WAVE}, s{S_WAVE}, 4")
    a(f"s_cmp_lt_u32 s{S_WAVE}, 2")
    a("s_cbranch_scc0 Lp3_ld1")
    emit_loader(a, 0)
    a("Lp3_ld1:")
    emit_loader(a, 1)
    a("Lp3_cons:")
    a("v_and_b32 v1, 63, v0")
    if CP: code_prefetch(a, "p3_kernel", "Lp3_exit", 1, 3, 255)
    ACC = 16
    A0, A1 = 128, 156
    B0, B1 = 184, 188
    MB = 192
    VW, VH = 4, 5
    a("v_and_b32 v1, 63, v0")
    a("v_lshlrev_b32 v2, 4, v1")
    a("v_and_b32 v3, 31, v1")
    a(f"s_lshl_b32 s40, s{S_RB}, 7")
    a(f"s_lshl_b32 s41, s{S_WAVE}, 5")
    a("s_add_u32 s40, s40, s41")
    a("s_lshl_b32 s40, s40, 5")
    a(f"s_add_u32 s40, s40, {WS_STAT}")
    a("v_lshlrev_b32 v6, 5, v3")
    a(f"buffer_load_dwordx4 v[200:203], v6, s[{SRD_WS}:{SRD_WS+3}], s40 offen")
    a(f"buffer_load_dwordx4 v[204:207], v6, s[{SRD_WS}:{SRD_WS+3}], s40 offen offset:16")
    a(f"v_mov_b32 v{VW}, v2")
    a(f"s_lshl_b32 s41, s{S_WAVE}, 10")
    a("s_add_u32 s41, s41, 14336")
    a(f"v_add_u32 v{VH}, s41, v2")
    for r in range(ACC, ACC+112): a(f"v_mov_b32 v{r}, 0")
    a("s_mov_b32 s42, 0")
    a(f"s_mov_b32 s44, {STG}")
    a(f"s_mov_b32 s45, {(-(NST-1)*STG) & 0xffffffff}")
    def reads(setA, setB, ks, withB=True):
        R = []
        if withB: R.append(f"ds_read_b128 v[{setB}:{setB+3}], v{VH} offset:{ks*4096}")
        for t in range(7):
            R.append(f"ds_read_b128 v[{setA+4*t}:{setA+4*t+3}], v{VW} offset:{(ks*7+t)*1024}")
        return R
    def half(curA, curB, R):
        ri = 0
        for t in range(7):
            d = ACC + 16*t
            a(mf32(f"v[{d}:{d+15}]", f"v[{curA+4*t}:{curA+4*t+3}]", f"v[{curB}:{curB+3}]"))
            for _ in range(2):
                if ri < len(R): a(R[ri]); ri += 1
        while ri < len(R): a(R[ri]); ri += 1
    def adv():
        a(f"s_add_u32 s42, s42, {STG}")
        a(f"s_cmp_ge_u32 s42, {NST*STG}")
        a("s_cselect_b32 s43, s45, s44")
        a("s_cselect_b32 s42, 0, s42")
        a(f"v_add_u32 v{VW}, s43, v{VW}")
        a(f"v_add_u32 v{VH}, s43, v{VH}")
    stamp(a, 2)
    a("s_barrier")
    stamp(a, 3)
    for r in reads(A0, B0, 0): a(r)
    a("s_waitcnt vmcnt(0)")
    a("v_add_f32 v200, v200, v202\nv_add_f32 v201, v201, v203\nv_add_f32 v204, v204, v206\nv_add_f32 v205, v205, v207")
    a("v_add_f32 v200, v200, v204\nv_add_f32 v201, v201, v205")
    a("s_mov_b32 s46, 0x3acccccd")
    a("v_mul_f32 v200, s46, v200")
    a("v_mul_f32 v201, s46, v201")
    a("v_fma_f32 v201, -v200, v200, v201")
    a("v_max_f32 v201, 0, v201")
    a("v_add_f32 v201, 0x3727c5ac, v201")
    a("v_rsq_f32 v208, v201")
    a("v_sub_f32 v200, 0, v200")
    a("v_cvt_pk_bf16_f32 v202, v200, v200")
    a("v_lshlrev_b32 v203, 16, v202")
    a("v_sub_f32 v203, v200, v203")
    a("v_cvt_pk_bf16_f32 v203, v203, v203")
    a("v_cmp_gt_u32 vcc, 32, v1")
    a.nop(2)
    a(f"v_cndmask_b32 v{MB}, 0, v202, vcc")
    a(f"v_cndmask_b32 v{MB+1}, 0, v203, vcc")
    a(f"v_mov_b32 v{MB+2}, 0")
    a(f"v_mov_b32 v{MB+3}, 0")
    a("s_waitcnt lgkmcnt(0)")
    lp = a.label("p3main")
    a("s_mov_b32 s47, 0")
    a(f"{lp}:")
    half(A0, B0, reads(A1, B1, 1))
    adv()
    a("s_waitcnt lgkmcnt(0)")
    a("s_barrier")
    half(A1, B1, reads(A0, B0, 0))
    a("s_waitcnt lgkmcnt(0)")
    a("s_add_u32 s47, s47, 1")
    a("s_cmp_lt_u32 s47, 20")
    a(f"s_cbranch_scc1 {lp}")
    half(A0, MB, [])
    a("s_barrier")
    stamp(a, 4)
    SPLIT = os.environ.get("P3SPLIT", "0") == "1"
    if SPLIT:
        a.nop(10)
        a(f"s_mul_i32 s41, s{S_WAVE}, 13312")
        a("v_add_u32 v6, s41, v2")
        for i in range(12):
            r = ACC + 64 + 4*i
            a(f"ds_write_b128 v6, v[{r}:{r+3}] offset:{i*1024}")
        a("v_lshlrev_b32 v7, 2, v1")
        a("v_add_u32 v7, s41, v7")
        a("ds_write_b32 v7, v208 offset:12288")
        a("s_waitcnt lgkmcnt(0)")
        a("s_barrier")
        emit_epi(a, ACC, range(4), 0)
    else:
        emit_epi(a, ACC, range(7), 0)
    stamp_store(a, 2)
    a("Lp3_exit:")
    a("s_endpgm")
```
